```python
import torch

def _softmax(x, axis=-1):
    return torch.softmax(x, dim=axis)
def _gelu(x):
    return torch.nn.functional.gelu(x, approximate="tanh")
def _silu(x):
    return torch.nn.functional.silu(x)
def _sigmoid(x):
    return torch.sigmoid(x)
def _layernorm(x, axis=-1, eps=1e-5):
    m = x.mean(dim=axis, keepdim=True)
    v = x.var(dim=axis, keepdim=True, unbiased=False)
    return (x - m) / torch.sqrt(v + eps)
def _scatter_add(tgt, idx, src, axis=0):
    return tgt.clone().index_add_(axis, idx, src)
def _segment_sum(src, seg, n):
    out = torch.zeros((n,) + src.shape[1:], dtype=src.dtype)
    return out.index_add_(0, seg, src)
def _pad(x, pw):
    flat = tuple(v for pair in reversed(pw) for v in pair)
    return torch.nn.functional.pad(x, flat)

kernel_name = 'sequential_preLN__mha_block_cached__swiglu_ffn__decode'

def setup_inputs():

    _w = (lambda a: (lambda t: t.to(torch.bfloat16) if t.is_floating_point() else t)(torch.as_tensor(a)))
    def _A_setup():
        B, Sq, D = 1, 1, 640
        H, Sk, Dh = 32, 16384, 128
        return {
            "x": _w((lambda *s: torch.randn(*s, dtype=torch.bfloat16) * 0.05)(B, Sq, D)),
            "k_cache": _w((lambda *s: torch.randn(*s, dtype=torch.bfloat16) * 3.2)(B, H, Sk, Dh)),
            "v_cache": _w((lambda *s: torch.randn(*s, dtype=torch.bfloat16) * 0.4)(B, H, Sk, Dh)),
            "wq": _w((lambda *s: torch.randn(*s, dtype=torch.bfloat16) * 3.2)(D, H * Dh) * (D ** -0.5)),
            "wo": _w((lambda *s: torch.randn(*s, dtype=torch.bfloat16) * 0.4)(H * Dh, D) * ((H * Dh) ** -0.5)),
        }
    _A_in = _A_setup()

    def _B_setup():
        B, S, D, F = 1, 1, 640, 1728
        return {
            "x": _w((lambda *s: torch.randn(*s, dtype=torch.bfloat16) * 0.05)(B, S, D)),
            "w_gate": _w((lambda *s: torch.randn(*s, dtype=torch.bfloat16) * 0.05)(D, F)),
            "w_up": _w((lambda *s: torch.randn(*s, dtype=torch.bfloat16) * 0.05)(D, F)),
            "w_down": _w((lambda *s: torch.randn(*s, dtype=torch.bfloat16) * 0.05)(F, D)),
        }
    _B_in = _B_setup()

    return {
        "A_x": _A_in["x"],
        "A_k_cache": _A_in["k_cache"],
        "A_v_cache": _A_in["v_cache"],
        "A_wq": _A_in["wq"],
        "A_wo": _A_in["wo"],
        "B_x": _B_in["x"],
        "B_w_gate": _B_in["w_gate"],
        "B_w_up": _B_in["w_up"],
        "B_w_down": _B_in["w_down"],
    }

def reference(A_x, A_k_cache, A_v_cache, A_wq, A_wo, B_x, B_w_gate, B_w_up, B_w_down):
    def _A_ref(x, k_cache, v_cache, wq, wo):
        B, Sq, D = x.shape
        H, Dh = 32, 128
        q = (lambda x, *d: x.permute(*d))((x @ wq).reshape(B, Sq, H, Dh), 0, 2, 1, 3)
        scores = torch.einsum("bhqd,bhkd->bhqk", q, k_cache) * (Dh ** -0.5)
        p = _softmax(scores, axis=-1)
        o = torch.einsum("bhqk,bhkd->bhqd", p, v_cache)
        return (lambda x, *d: x.permute(*d))(o, 0, 2, 1, 3).reshape(B, Sq, H * Dh) @ wo

    def _B_ref(x, w_gate, w_up, w_down):
        g = _silu(x @ w_gate)
        u = x @ w_up
        return (g * u) @ w_down

    x = A_x
    h = x + _A_ref(_layernorm(x, axis=-1), A_k_cache, A_v_cache, A_wq, A_wo)
    h2 = h + _B_ref(_layernorm(h, axis=-1), B_w_gate, B_w_up, B_w_down)
    return h2
```

```python
import re
NAME = 'sequential_preLN__mha_block_cached__swiglu_ffn__decode'
HEADER = open('cdna_kernels/' + NAME + '.s.ref').read().split('; Override launch')[0]

TRANS = ('v_exp_f32', 'v_log_f32', 'v_rcp_f32', 'v_rsq_f32', 'v_sqrt_f32', 'v_sin_f32', 'v_cos_f32', 'v_rcp_iflag_f32')

def _regs(tok):
    tok = tok.strip()
    tok = tok.lstrip('-')
    m = re.match(r'^(?:abs\(|\|)(.*?)(?:\)|\|)$', tok)
    if m: tok = m.group(1)
    m = re.match(r'^([vsa])(\d+)$', tok)
    if m: return {(m.group(1), int(m.group(2)))}
    m = re.match(r'^([vsa])\[(\d+):(\d+)\]$', tok)
    if m: return {(m.group(1), i) for i in range(int(m.group(2)), int(m.group(3)) + 1)}
    if tok == 'vcc': return {('s', 106), ('s', 107)}
    if tok == 'vcc_lo': return {('s', 106)}
    if tok == 'vcc_hi': return {('s', 107)}
    if tok == 'exec': return {('s', 126), ('s', 127)}
    if tok == 'm0': return {('s', 124)}
    return set()

class Ins:
    def __init__(self, text):
        self.text = text
        t = text.split(';')[0].strip()
        parts = t.split(None, 1)
        self.op = parts[0]
        rest = parts[1] if len(parts) > 1 else ''
        ops = []; depth = 0; cur = ''
        for ch in rest:
            if ch == '[': depth += 1
            if ch == ']': depth -= 1
            if ch == ',' and depth == 0:
                ops.append(cur); cur = ''
            else: cur += ch
        if cur.strip(): ops.append(cur)
        clean = []
        for o in ops:
            o = o.strip()
            clean.append(o.split()[0] if o else o)
        self.ops = clean
        op = self.op
        self.valu = op.startswith('v_')
        self.mfma = op.startswith('v_mfma')
        self.dot = op.startswith('v_dot')
        self.trans = any(op.startswith(x) for x in TRANS)
        self.dpp = '_dpp' in op or 'row_' in rest or 'quad_perm' in rest
        self.perml = op.startswith('v_permlane')
        self.rdlane = op.startswith('v_readlane') or op.startswith('v_readfirstlane')
        self.vmem = op.startswith('buffer_') or op.startswith('global_')
        self.ds = op.startswith('ds_')
        self.salu = op.startswith('s_')
        self.wr = set(); self.rd = set()
        R = [_regs(x) for x in clean]
        self.R = R
        if self.valu:
            if self.perml:
                self.wr = R[0] | R[1]; self.rd = R[0] | R[1]
            else:
                self.wr = set(R[0]); self.rd = set().union(*R[1:]) if len(R) > 1 else set()
                if re.match(r'v_(add|sub|subrev)_co_u32|v_addc_co|v_subb_co|v_div_scale|v_mad_u64', op):
                    self.wr |= R[1]; self.rd = set().union(*R[2:])
                if op.startswith('v_fmac') or op.startswith('v_dot2c') or op.startswith('v_pk_fmac') or op.startswith('v_writelane'):
                    self.rd |= R[0]
                if self.dpp and ('bank_mask:0xf' not in rest or 'row_mask:0xf' not in rest):
                    self.rd |= R[0]
                if op.startswith('v_cmpx'): self.wr |= {('s', 126), ('s', 127)}
                if op.startswith('v_div_fmas'): self.rd |= {('s', 106), ('s', 107)}
        elif self.vmem:
            isstore = '_store' in op
            isatomic = '_atomic' in op
            if op in ('buffer_inv', 'buffer_wbl2'): pass
            elif op.startswith('buffer_'):
                if ' lds' in rest: self.rd = set().union(*R)
                elif isstore: self.rd = set().union(*R)
                elif isatomic: self.rd = set().union(*R); self.wr = set(R[0]) if 'sc0' in rest else set()
                else:
                    self.wr = set(R[0]); self.rd = set().union(*R[1:])
                    if 'd16' in op: self.rd |= R[0]
            else:
                if isstore or (isatomic and 'sc0' not in rest): self.rd = set().union(*R)
                else: self.wr = set(R[0]); self.rd = set().union(*R[1:])
            self.widestore = isstore and ('x3' in op or 'x4' in op)
            if self.widestore: self.sdata = R[0] if op.startswith('buffer_') else R[1]
        elif self.ds:
            if op.startswith('ds_read') or 'permute' in op or 'swizzle' in op or '_rtn' in op:
                self.wr = set(R[0]); self.rd = set().union(*R[1:]) if len(R) > 1 else set()
            else: self.rd = set().union(*R)
        self.states = 1
        if op == 's_nop': self.states = int(clean[0], 0) + 1

def need(prev, cur):
    n = 0
    pv = {r for r in prev.wr if r[0] in 'va'}
    ps = {r for r in prev.wr if r[0] == 's'}
    if prev.valu and not prev.mfma:
        hit = pv & cur.rd
        if hit:
            if cur.dpp: n = max(n, 2)
            if cur.perml: n = max(n, 2)
            if cur.rdlane: n = max(n, 1)
            if prev.trans and cur.valu and not cur.trans: n = max(n, 1)
            if cur.mfma: n = max(n, 2)
        if prev.dot:
            if pv & (cur.rd | cur.wr):
                same = cur.dot and cur.op.replace('_dpp', '').replace('_e32', '') == prev.op.replace('_dpp', '').replace('_e32', '')
                if same:
                    ab = cur.R[1] | cur.R[2]
                    if pv & ab: n = max(n, 3)
                else: n = max(n, 3)
        if ps & cur.rd:
            if cur.valu:
                n = max(n, 2)
                if cur.op.startswith('v_readlane') or cur.op.startswith('v_writelane') or cur.op.startswith('v_div_fmas'): n = max(n, 4)
            if cur.vmem: n = max(n, 5)
        if ('s', 126) in ps:
            if cur.dpp: n = max(n, 5)
            if cur.rdlane or cur.perml or cur.mfma: n = max(n, 4)
    if prev.mfma:
        passes = 4 if '16x16' in prev.op else 8
        big = {4: 8, 8: 12}[passes]
        if cur.mfma:
            if pv & (cur.R[1] | cur.R[2]): n = max(n, big)
            c = cur.R[3]
            if pv & c and c != pv: n = max(n, big - 2)
            if pv & cur.R[0] and cur.R[0] != pv: n = max(n, big)
        else:
            if pv & (cur.rd | cur.wr): n = max(n, big)
            if cur.valu and (prev.R[3] & cur.wr): n = max(n, passes - 1)
    if prev.vmem and getattr(prev, 'widestore', False):
        if prev.sdata & cur.wr: n = max(n, 2 if cur.valu else 1)
    if prev.salu and prev.ops and prev.ops[0].startswith('exec') and (cur.mfma or cur.dpp or cur.perml): n = max(n, 2)
    if prev.salu and prev.ops and prev.ops[0] == 'm0' and cur.vmem and ' lds' in cur.text: n = max(n, 1)
    return n

class Asm:
    def __init__(self):
        self.lines = []
        self.hists = [[]]
        self.snap = {}
        self.seen = set()
        self.nops = 0
    def _push(self, ins):
        self.hists = [(h + [ins])[-24:] for h in self.hists]
        uniq = []
        for h in self.hists:
            if not any(len(h) == len(u) and all(x is y for x, y in zip(h, u)) for u in uniq): uniq.append(h)
        self.hists = uniq
    def _emit(self, l):
        if l.endswith(':'):
            lab = l[:-1]
            self.lines.append(l)
            self.seen.add(lab)
            self.hists += self.snap.get(lab, [])
            if not self.hists: self.hists = [[]]
            return
        if l.startswith(';') or l.startswith('.'):
            self.lines.append('    ' + l); return
        ins = Ins(l)
        req = 0
        for hist in self.hists:
            dist = 0
            for p in reversed(hist):
                req = max(req, need(p, ins) - dist)
                dist += p.states
                if dist >= 20: break
        isbr = ins.op.startswith('s_cbranch') or ins.op == 's_branch'
        if isbr and ins.ops[0] in self.seen:
            for hist in self.hists:
                dist = 1
                for p in reversed(hist):
                    worst = 12 if p.mfma else (5 if (p.valu and any(r[0] == 's' and r[1] < 106 for r in p.wr)) else (3 if p.valu else 0))
                    req = max(req, worst - dist)
                    dist += p.states
                    if dist >= 20: break
        while req > 0:
            k = min(req, 16)
            self._push(Ins(f's_nop {k - 1}')); self.lines.append(f'    s_nop {k - 1}'); self.nops += 1
            req -= k
        self._push(ins)
        self.lines.append('    ' + l)
        if isbr:
            self.snap.setdefault(ins.ops[0], []).extend([list(h) for h in self.hists])
            if ins.op == 's_branch': self.hists = []
        if ins.op == 's_endpgm': self.hists = []
    def __call__(self, s):
        for l in s.split('\n'):
            l = l.strip()
            if l: self._emit(l)
    def c(self, s):
        self.lines.append('    ; ' + s)
    def text(self):
        return '\n'.join(self.lines) + '\n'

def kernel_begin(label):
    return f'.globl {label}\n.p2align 8\n.type {label},@function\n{label}:\n'

def kernel_desc(label, vgpr, sgpr=102):
    acc = (vgpr + 3) // 4 * 4
    return f'''.p2align 6
.amdhsa_kernel {label}
  .amdhsa_next_free_vgpr {vgpr}
  .amdhsa_next_free_sgpr {sgpr}
  .amdhsa_accum_offset {acc}
  .amdhsa_group_segment_fixed_size 0
  .amdhsa_kernarg_size 96
  .amdhsa_user_sgpr_count 2
  .amdhsa_user_sgpr_kernarg_segment_ptr 1
  .amdhsa_system_sgpr_workgroup_id_x 1
  .amdhsa_float_denorm_mode_32 3
  .amdhsa_float_denorm_mode_16_64 3
.end_amdhsa_kernel
'''

def build_file(launch_lines, kernels):
    s = HEADER
    for l in launch_lines:
        s += l + '\n'
    s += '.amdgcn_target "amdgcn-amd-amdhsa--gfx950"\n.text\n'
    for label, body, v, sg in kernels:
        s += kernel_begin(label) + body
    s += '.section .rodata,"a"\n'
    for label, body, v, sg in kernels:
        s += kernel_desc(label, v, sg)
    return s

class Alloc:
    def __init__(self, start=0, limit=256):
        self.next = start; self.limit = limit; self.high = start
    def get(self, n=1, align=1):
        self.next = (self.next + align - 1) // align * align
        r = self.next; self.next += n
        assert self.next <= self.limit, f'out of registers {self.next}'
        self.high = max(self.high, self.next)
        return r
    def mark(self): return self.next
    def release(self, m): self.next = m
```

```python
import sys, struct
from asmlib import *

def f2u(x): return struct.unpack('<I', struct.pack('<f', x))[0]
LOG2E = f2u(1.4426950408889634)
SCALE = f2u(128 ** -0.5)
INV640 = f2u(1.0 / 640)
EPS = f2u(1e-5)
NEGINF = 0xff800000

P1 = 0
P2 = 0x40000
P3 = 0x50000
WS_END = P3 + 216 * 2560
OOB = 0x40000000
L_QP = 0; L_OP = 4096; L_M = 8192; L_L = 8224; L_ZP = 8448; L_ST = 9472; L_GP = 9600; L_HH = 10240; L_FP = 12800

DPPF = 'row_mask:0xf bank_mask:0xf'

def gen(NE=17, NO=15, HROT=75, S=16, stamps=False, kvflags='nt', wqflags='', wflags='', kfirst=0, lds=84000, spin=200000, tww=8, twg=0):
    a = Asm()
    V = Alloc(1, 256)
    U = 4
    NL = NE * U
    NT = (NL + 15) // 16
    sW, sH, sIDX, sPAR, sJ, sXCD = 3, 4, 5, 6, 7, 93
    K_, V_, WQ_, WS_, X_, WO_, WG_, WU_, WD_, OUT_, DBG_ = [f's[{b}:{b+3}]' for b in (8, 12, 40, 44, 48, 52, 56, 60, 64, 68, 72)]
    sOFF, sOFF0, sEX0, sT0, sT1, sT2, sT3 = 76, 77, 78, 80, 81, 82, 83
    sP1OWN, sWROLE, sGROLE, sFROLE, sCS, sFS, sGAM, sSPIN = 84, 85, 86, 87, 88, 89, 90, 91
    sC1, sC2 = 94, 95
    sM1, sM0 = 's[16:17]', 's[18:19]'
    sVAL = {NT - 2: 's[20:21]', NT - 1: 's[22:23]'}
    sEXS = 's[24:25]'
    sST = 26
    nst = [0]
    def stamp():
        if stamps:
            a(f's_memrealtime s[{96}:{97}]\ns_waitcnt lgkmcnt(0)\ns_mov_b32 s{sST + nst[0]}, s96')
        nst[0] += 1
        assert nst[0] <= 14
    q = []
    def vm(tag, text):
        a(text); q.append(tag)
    def wait(tag):
        idx = max(i for i, t in enumerate(q) if t == tag)
        n = len(q) - 1 - idx
        assert n <= 63, n
        a(f's_waitcnt vmcnt({n})')

    vLANE = V.get(); vG = V.get(); vC = V.get(); vKV = V.get()
    vT = [V.get() for _ in range(8)]
    vMASK = V.get(4, 4)
    vA = [V.get(4, 4), V.get(4, 4)]
    vD = V.get(4, 4)
    vQ = V.get(4, 4)
    vSC = [V.get() for _ in range(NT)]
    vACC = V.get(16, 4)
    ring = V.get(4 * S, 4)
    big = V.get(80, 4)

    def allreduce(r, op, t):
        for k in (8, 4, 2, 1):
            a(f'{op}_dpp v{r}, v{r}, v{r} row_ror:{k} {DPPF}')
        for sw in ('v_permlane16_swap_b32', 'v_permlane32_swap_b32'):
            a(f'v_mov_b32 v{t}, v{r}\n{sw} v{r}, v{t}\n{op} v{r}, v{r}, v{t}')
    def allreduce2(r0, r1, op, t0, t1):
        for k in (8, 4, 2, 1):
            a(f'{op}_dpp v{r0}, v{r0}, v{r0} row_ror:{k} {DPPF}\n{op}_dpp v{r1}, v{r1}, v{r1} row_ror:{k} {DPPF}')
        for sw in ('v_permlane16_swap_b32', 'v_permlane32_swap_b32'):
            a(f'v_mov_b32 v{t0}, v{r0}\nv_mov_b32 v{t1}, v{r1}\n{sw} v{r0}, v{t0}\n{sw} v{r1}, v{t1}\n{op} v{r0}, v{r0}, v{t0}\n{op} v{r1}, v{r1}, v{t1}')
    def rbf(d, s):
        a(f'v_cvt_pk_bf16_f32 v{d}, v{s}, v{s}\nv_lshlrev_b32 v{d}, 16, v{d}')
    def tswap(sw, x, y):
        a(f'{sw} v{x}, v{y}')
    def ln_consts(vmean, vvar, vm_bf, vs_bf, vr):
        rbf(vm_bf, vmean)
        rbf(vs_bf, vvar)
        a(f'v_add_f32 v{vs_bf}, {EPS:#x}, v{vs_bf}')
        rbf(vs_bf, vs_bf)
        a(f'v_sqrt_f32 v{vs_bf}, v{vs_bf}')
        rbf(vs_bf, vs_bf)
        a(f'v_rcp_f32 v{vr}, v{vs_bf}')
    def ln_apply(x, vm_bf, vs_bf, vr, t):
        a(f'v_sub_f32 v{x}, v{x}, v{vm_bf}')
        rbf(x, x)
        a(f'v_mul_f32 v{t}, v{x}, v{vr}\nv_fma_f32 v{x}, -v{t}, v{vs_bf}, v{x}\nv_fma_f32 v{x}, v{x}, v{vr}, v{t}')
    def onehot_mfma(pk, n, data, k, first=False):
        A = vA[k & 1]
        for jj in range(4):
            a(f'v_and_b32_dpp v{A + jj}, v{pk}, v{vMASK + jj} row_newbcast:{n} {DPPF}')
        c = '0' if first else f'v[{vD}:{vD+3}]'
        return f'v_mfma_f32_16x16x32_bf16 v[{vD}:{vD+3}], v[{A}:{A+3}], v[{data}:{data+3}], {c}'
    npoll = [0]
    def poll(loads, regs):
        L = f'L_poll{npoll[0]}'; npoll[0] += 1
        a(f's_mov_b32 s{sSPIN}, {spin}')
        a(f'{L}:')
        for l in loads: a(l)
        a('s_waitcnt vmcnt(0)')
        t = vT[7]
        rs = list(regs)
        if len(rs) == 2: a(f'v_max_u32 v{t}, v{rs[0]}, v{rs[1]}'); rs = []
        else:
            a(f'v_max3_u32 v{t}, v{rs[0]}, v{rs[1]}, v{rs[2]}'); rs = rs[3:]
        while rs:
            if len(rs) >= 2: a(f'v_max3_u32 v{t}, v{t}, v{rs[0]}, v{rs[1]}'); rs = rs[2:]
            else: a(f'v_max_u32 v{t}, v{t}, v{rs[0]}'); rs = []
        a(f'''
        v_cmp_eq_u32 vcc, -1, v{t}
        s_cbranch_vccz {L}_done
        s_sub_u32 s{sSPIN}, s{sSPIN}, 1
        s_cbranch_scc1 {L}_done
        s_sleep 1
        s_branch {L}
        {L}_done:
        ''')

    a(f'''
    s_cmp_ge_u32 s2, 256
    s_cbranch_scc1 L_end
    s_load_dwordx16 s[16:31], s[0:1], 0
    s_load_dwordx8 s[32:39], s[0:1], 64
    ''')
    if stamps: a('s_memrealtime s[98:99]')
    a(f'''
    v_lshrrev_b32 v{vT[0]}, 6, v0
    v_and_b32 v{vLANE}, 63, v0
    v_readfirstlane_b32 s{sW}, v{vT[0]}
    v_lshrrev_b32 v{vG}, 4, v{vLANE}
    v_and_b32 v{vC}, 15, v{vLANE}
    v_lshlrev_b32 v{vKV}, 4, v{vLANE}
    s_and_b32 s{sXCD}, s2, 7
    s_lshr_b32 s{sJ}, s2, 3
    s_and_b32 s{sPAR}, s2, 1
    s_and_b32 s{sH}, s2, 6
    s_lshl_b32 s{sH}, s{sH}, 2
    s_lshr_b32 s{sT0}, s2, 5
    s_add_u32 s{sH}, s{sH}, s{sT0}          ; h
    s_and_b32 s{sT0}, s{sJ}, 3               ; jj
    s_lshl_b32 s{sIDX}, s{sT0}, 3
    s_add_u32 s{sIDX}, s{sIDX}, s{sW}
    s_lshl_b32 s{sT1}, s{sT0}, 1
    s_or_b32 s{sT1}, s{sT1}, s{sPAR}
    s_lshl_b32 s{sP1OWN}, s{sH}, 3
    s_add_u32 s{sP1OWN}, s{sP1OWN}, s{sT1}
    s_lshl_b32 s{sP1OWN}, s{sP1OWN}, 10
    s_lshr_b32 s{sGAM}, s{sH}, 2             ; group
    s_and_b32 s{sT1}, s{sJ}, 15              ; m = (h&3)*4 + jj
    s_mul_i32 s{sCS}, s{sPAR}, 10
    s_add_u32 s{sCS}, s{sCS}, s{sT1}
    s_cmp_lt_u32 s{sT1}, 10
    s_cselect_b32 s{sWROLE}, 1, 0
    s_mul_i32 s{sFS}, s{sXCD}, 27
    s_add_u32 s{sFS}, s{sFS}, s{sJ}
    s_cmp_lt_u32 s{sJ}, 27
    s_cselect_b32 s{sGROLE}, 1, 0
    s_cmp_lt_u32 s{sJ}, 5
    s_cselect_b32 s{sFROLE}, 1, 0
    s_mul_i32 s{sT2}, s{sH}, {HROT}
    s_add_u32 s{sT2}, s{sT2}, s{sIDX}
    s_lshl_b32 s{sT3}, s{sPAR}, 5
    s_add_u32 s{sOFF0}, s{sT2}, s{sT3}
    s_lshl_b32 s{sOFF0}, s{sOFF0}, 12
    s_and_b32 s{sOFF0}, s{sOFF0}, 0x3fffff
    ''')
    assert NE - NO == 2 and (NE + NO) * 32 == 1024
    for e in range(NE - NO):
        a(f'''
        s_add_u32 s{sEX0 + e}, s{sT2}, {NO * 64 + e * 32}
        s_lshl_b32 s{sEX0 + e}, s{sEX0 + e}, 12
        s_and_b32 s{sEX0 + e}, s{sEX0 + e}, 0x3fffff
        s_cmp_eq_u32 s{sPAR}, 0
        s_cselect_b32 s{sEX0 + e}, s{sEX0 + e}, {OOB:#x}
        ''')
    a(f'''
    s_lshl_b32 s{sT0}, s{sH}, 22
    s_lshl_b32 s{sT1}, s{sH}, 8
    s_mul_i32 s{sT2}, s{sW}, {80 * 8192}
    s_add_u32 s{sT1}, s{sT1}, s{sT2}
    s_mov_b32 s10, 0x400000
    s_mov_b32 s11, 0x20000
    s_mov_b32 s14, 0x400000
    s_mov_b32 s15, 0x20000
    s_mov_b32 s42, {80 * 8192}
    s_mov_b32 s43, 0x20000
    s_mov_b32 s50, 1280
    s_mov_b32 s51, 0x20000
    s_mov_b32 s46, {WS_END:#x}
    s_mov_b32 s47, 0x20000
    v_lshlrev_b32 v{vT[1]}, 13, v{vG}
    v_lshl_add_u32 v{vT[1]}, v{vC}, 4, v{vT[1]}
    v_lshlrev_b32 v{vT[2]}, 2, v{vLANE}             ; lane*4
    v_lshl_add_u32 v{vT[3]}, v{vC}, 2, v{vG}        ; 4c+g
    v_lshlrev_b32 v{vT[3]}, 1, v{vT[3]}
    s_mul_i32 s{sT3}, s{sW}, 160
    s_waitcnt lgkmcnt(0)
    s_mov_b32 s48, s16
    s_mov_b32 s49, s17
    s_add_u32 s40, s22, s{sT1}
    s_addc_u32 s41, s23, 0
    s_add_u32 s8, s18, s{sT0}
    s_addc_u32 s9, s19, 0
    s_add_u32 s12, s20, s{sT0}
    s_addc_u32 s13, s21, 0
    s_mov_b32 s44, s38
    s_mov_b32 s45, s39
    ''')
    vX = V.get(5); vXS = V.get(2)
    for i in range(5): vm('x', f'buffer_load_dword v{vX + i}, v{vT[2]}, {X_}, 0 offen offset:{256 * i}')
    vm('x', f'buffer_load_ushort v{vXS}, v{vT[3]}, {X_}, s{sT3} offen')
    vm('x', f'buffer_load_ushort v{vXS + 1}, v{vT[3]}, {X_}, s{sT3} offen offset:128')
    seq = [('K', n) for n in range(NL)] + [('V', n) for n in range(NL)]
    N = len(seq)
    def issue(x):
        m, n = seq[x]
        k, i = divmod(n, U)
        if i == 0:
            if k == 0: a(f's_mov_b32 s{sOFF}, s{sOFF0}')
            elif k < NO: a(f's_add_u32 s{sOFF}, s{sOFF}, {64 * 4096}\ns_and_b32 s{sOFF}, s{sOFF}, 0x3fffff')
            else: a(f's_mov_b32 s{sOFF}, s{sEX0 + k - NO}')
        r = ring + (x % S) * 4
        vm(('r', x), f'buffer_load_dwordx4 v[{r}:{r+3}], v{vKV}, {K_ if m == "K" else V_}, s{sOFF} offen offset:{i * 1024} {kvflags}')
    for x in range(kfirst): issue(x)
    for i in range(20):
        if i: a(f's_mov_b32 s{sT0}, {i * 32768}')
        vm(('wq', i), f'buffer_load_dwordx4 v[{big + 4*i}:{big + 4*i + 3}], v{vT[1]}, {WQ_}, {"0" if i == 0 else "s%d" % sT0} offen {wqflags}')
    for x in range(kfirst, S): issue(x)
    for b, p, n in ((52, 24, 4096 * 1280), (56, 28, 640 * 3456), (60, 30, 640 * 3456), (64, 32, 1728 * 1280), (68, 34, 1280), (72, 36, 256)):
        a(f's_mov_b32 s{b}, s{p}\ns_mov_b32 s{b+1}, s{p+1}\ns_mov_b32 s{b+2}, {n}\ns_mov_b32 s{b+3}, 0x20000')
    if stamps:
        a(f's_mov_b32 s{sST}, s98')
        for k in range(1, 12): a(f's_mov_b32 s{sST + k}, 0')
    nst[0] = 1
    a(f'''
    s_mov_b32 s16, 0xcccccccc
    s_mov_b32 s17, 0xcccccccc
    s_mov_b32 s18, 0xaaaaaaaa
    s_mov_b32 s19, 0xaaaaaaaa
    s_mov_b32 s{sC1}, {LOG2E:#x}
    s_mov_b32 s{sC2}, 0xffff0000
    v_and_b32 v{vT[5]}, 1, v{vC}
    v_lshlrev_b32 v{vT[5]}, 4, v{vT[5]}
    v_mov_b32 v{vT[6]}, 0xffff
    v_lshlrev_b32 v{vT[5]}, v{vT[5]}, v{vT[6]}
    v_lshrrev_b32 v{vT[6]}, 1, v{vC}
    ''')
    for jj in range(4):
        a(f'v_cmp_eq_u32 vcc, {jj}, v{vT[6]}\nv_cndmask_b32 v{vMASK + jj}, 0, v{vT[5]}, vcc')
    def lanemask(nvalid):
        nvalid = max(0, min(16, nvalid))
        m = (1 << nvalid) - 1
        return m | (m << 16)
    for t, sp in sVAL.items():
        lo = int(sp[2:].split(':')[0])
        me, mo = lanemask(NE * U - 16 * t), lanemask(NO * U - 16 * t)
        a(f's_mov_b32 s{lo}, {me:#x}\ns_cmp_eq_u32 s{sPAR}, 0\ns_cselect_b32 s{lo}, s{lo}, {mo:#x}\ns_mov_b32 s{lo+1}, s{lo}')
    wait('x')
    xs = vACC
    for i in range(5):
        a(f'v_lshlrev_b32 v{xs + 2*i}, 16, v{vX + i}\nv_and_b32 v{xs + 2*i + 1}, s{sC2}, v{vX + i}')
    sm = vT[0]
    a(f'v_add_f32 v{sm}, v{xs}, v{xs+1}')
    for i in range(2, 10): a(f'v_add_f32 v{sm}, v{sm}, v{xs + i}')
    allreduce(sm, 'v_add_f32', vT[2])
    a(f'v_mul_f32 v{sm}, {INV640:#x}, v{sm}')
    vv = vT[3]
    for i in range(10): a(f'v_sub_f32 v{xs + i}, v{xs + i}, v{sm}')
    a(f'v_mul_f32 v{vv}, v{xs}, v{xs}')
    for i in range(1, 10): a(f'v_fmac_f32 v{vv}, v{xs + i}, v{xs + i}')
    allreduce(vv, 'v_add_f32', vT[2])
    a(f'v_mul_f32 v{vv}, {INV640:#x}, v{vv}')
    ln_consts(sm, vv, vT[4], vT[5], vT[6])
    for i in range(2):
        a(f'v_lshlrev_b32 v{vXS + i}, 16, v{vXS + i}')
        ln_apply(vXS + i, vT[4], vT[5], vT[6], vT[2])
        a(f'v_cvt_pk_bf16_f32 v{vXS + i}, v{vXS + i}, v{vXS + i}')
    for i in range(20):
        mf = onehot_mfma(vXS + i // 16, i % 16, big + 4 * i, i, first=(i == 0))
        if i % 2 == 0: wait(('wq', i + 1))
        a(mf)
    vDA = V.get()
    a(f'''
    v_lshlrev_b32 v{vDA}, 5, v{vC}
    v_lshl_add_u32 v{vDA}, v{vG}, 4, v{vDA}
    s_lshl_b32 s{sT0}, s{sW}, 9
    v_add_u32 v{vDA}, s{sT0}, v{vDA}
    v_lshlrev_b32 v{vT[0]}, 5, v{vC}
    s_mov_b32 exec_hi, 0
    ds_write_b128 v{vDA}, v[{vD}:{vD+3}] offset:{L_QP}
    s_mov_b64 exec, -1
    ''')
    a('s_waitcnt lgkmcnt(0)\ns_barrier')
    for i in range(8):
        a(f'ds_read_b128 v[{big + 8*i}:{big + 8*i + 3}], v{vT[0]} offset:{L_QP + 512 * i}')
        a(f'ds_read_b128 v[{big + 8*i + 4}:{big + 8*i + 7}], v{vT[0]} offset:{L_QP + 512 * i + 16}')
    vS = vA[0]
    a(f'''
    s_cmp_lg_u32 s{sW}, 0
    s_cbranch_scc1 L_noclr
    v_mov_b32 v{vS}, -1
    v_mov_b32 v{vS+1}, -1
    v_mov_b32 v{vS+2}, -1
    v_mov_b32 v{vS+3}, -1
    s_mul_i32 s{sT0}, s{sFS}, 2560
    s_add_u32 s{sT0}, s{sT0}, {P3:#x}
    s_cmp_eq_u32 s{sGROLE}, 1
    s_cselect_b32 s{sT0}, s{sT0}, {OOB:#x}
    s_mul_i32 s{sT2}, s{sGAM}, 2560
    s_lshl_b32 s{sT3}, s{sCS}, 7
    s_add_u32 s{sT2}, s{sT2}, s{sT3}
    s_add_u32 s{sT2}, s{sT2}, {P2:#x}
    s_cmp_eq_u32 s{sWROLE}, 1
    s_cselect_b32 s{sT2}, s{sT2}, {OOB:#x}
    buffer_store_dwordx4 v[{vS}:{vS+3}], v{vKV}, {WS_}, s{sT0} offen sc1
    buffer_store_dwordx4 v[{vS}:{vS+3}], v{vKV}, {WS_}, s{sT0} offen offset:1024 sc1
    buffer_store_dwordx4 v[{vS}:{vS+3}], v{vKV}, {WS_}, s{sP1OWN} offen sc1
    s_mov_b32 exec_hi, 0
    buffer_store_dwordx4 v[{vS}:{vS+3}], v{vKV}, {WS_}, s{sT0} offen offset:2048 sc1
    s_mov_b64 exec, 0xff
    buffer_store_dwordx4 v[{vS}:{vS+3}], v{vKV}, {WS_}, s{sT2} offen sc1
    s_mov_b64 exec, -1
    L_noclr:
    ''')
    for i in range(1, 8):
        a(f's_waitcnt lgkmcnt({14 - 2*i})')
        for e in range(8): a(f'v_add_f32 v{big + e}, v{big + e}, v{big + 8*i + e}')
    for jj in range(4): a(f'v_cvt_pk_bf16_f32 v{vQ + jj}, v{big + 2*jj}, v{big + 2*jj + 1}')
    stamp()

    wW = big
    wWlo = big + 16
    wG = big + 32
    wGp = big + 48
    wD = big + 64
    wDp = big + 72
    vXH = V.get(); vCNT = V.get(); vAW = V.get(); vAG = V.get(); vAX = V.get()
    def tail_addr():
        a(f'''
        v_lshrrev_b32 v{vT[0]}, 1, v{vG}
        v_and_b32 v{vT[1]}, 1, v{vG}
        v_lshlrev_b32 v{vT[0]}, 5, v{vT[0]}
        v_lshl_add_u32 v{vT[0]}, v{vT[1]}, 1, v{vT[0]}
        v_mul_u32_u24 v{vT[0]}, 1280, v{vT[0]}
        v_lshl_add_u32 v{vAW}, v{vC}, 2, v{vT[0]}
        v_lshlrev_b32 v{vT[0]}, 5, v{vG}
        v_and_b32 v{vT[1]}, 7, v{vLANE}
        v_lshl_add_u32 v{vT[0]}, v{vT[1]}, 2, v{vT[0]}
        v_bfe_u32 v{vT[1]}, v{vLANE}, 3, 1
        v_lshl_add_u32 v{vT[0]}, v{vT[1]}, 1, v{vT[0]}
        v_lshlrev_b32 v{vAX}, 1, v{vT[0]}
        v_mul_u32_u24 v{vAG}, 3456, v{vT[0]}
        ''')
    def cnt_load():
        a(f'v_mov_b32 v{vT[5]}, 0')
        vm('cnt', f'buffer_load_dword v{vCNT}, v{vT[5]}, {DBG_}, 0 offen sc1')
    def tail_loads_w():
        a(f'''
        s_lshl_b32 s{sT0}, s{sGAM}, 9
        s_lshl_b32 s{sT1}, s{sW}, 6
        s_add_u32 s{sT0}, s{sT0}, s{sT1}
        s_mul_i32 s{sT0}, s{sT0}, 1280
        s_lshl_b32 s{sT1}, s{sCS}, 6
        s_add_u32 s{sT0}, s{sT0}, s{sT1}
        s_cmp_eq_u32 s{sWROLE}, 1
        s_cselect_b32 s{sT0}, s{sT0}, {OOB:#x}
        ''')
        for n in range(16):
            row = 4 * (n & 7) + (n >> 3)
            a(f's_add_u32 s{sT1}, s{sT0}, {(row & ~1) * 1280}')
            vm('tw', f'buffer_load_dword v{wW + n}, v{vAW}, {WO_}, s{sT1} offen offset:{(row & 1) * 1280} {wflags}')
    def tail_loads_g():
        a(f'''
        s_cmp_lt_u32 s{sW}, 5
        s_cselect_b32 s{sT3}, s{sGROLE}, 0
        s_mul_i32 s{sT0}, s{sW}, {128 * 3456}
        s_lshl_b32 s{sT1}, s{sFS}, 4
        s_add_u32 s{sT0}, s{sT0}, s{sT1}
        s_mul_i32 s{sT1}, s{sFS}, {8 * 1280}
        s_lshl_b32 s{sT2}, s{sW}, 8
        s_add_u32 s{sT1}, s{sT1}, s{sT2}
        s_cmp_eq_u32 s{sT3}, 1
        s_cselect_b32 s{sT0}, s{sT0}, {OOB:#x}
        s_cselect_b32 s{sT1}, s{sT1}, {OOB:#x}
        s_cselect_b32 s{sT2}, s{sT2}, {OOB:#x}
        v_lshlrev_b32 v{vT[6]}, 2, v{vLANE}
        v_mov_b32 v{vT[5]}, 0
        ''')
        vm('tw', f'buffer_load_dwordx4 v[{wG}:{wG+3}], v{vAG}, {WG_}, s{sT0} offen {wflags}')
        vm('tw', f'buffer_load_dwordx4 v[{wG+4}:{wG+7}], v{vAG}, {WG_}, s{sT0} offen offset:3456 {wflags}')
        vm('tw', f'buffer_load_dwordx4 v[{wG+8}:{wG+11}], v{vAG}, {WU_}, s{sT0} offen {wflags}')
        vm('tw', f'buffer_load_dwordx4 v[{wG+12}:{wG+15}], v{vAG}, {WU_}, s{sT0} offen offset:3456 {wflags}')
        for f in range(8):
            if f and f % 3 == 0: a(f's_add_u32 s{sT1}, s{sT1}, {3 * 1280}')
            vm('tw', f'buffer_load_dword v{wD + f}, v{vT[6]}, {WD_}, s{sT1} offen offset:{(f % 3) * 1280} {wflags}')
        vm('tw', f'buffer_load_dword v{vXH}, v{vAX}, {X_}, s{sT2} offen')
    tail_addr()

    def reduce_tile(t, n):
        A = [vACC + i if i < n else None for i in range(16)]
        B = []
        for jj in range(8):
            x, y = A[jj], A[jj + 8]
            if x is None: B.append(None); continue
            if y is None: a(f'v_add_f32_dpp v{x}, v{x}, v{x} row_ror:8 {DPPF}')
            else:
                a(f'v_add_f32_dpp v{x}, v{x}, v{x} row_ror:8 row_mask:0xf bank_mask:0x3')
            B.append(x)
        for jj in range(8):
            x, y = A[jj], A[jj + 8]
            if x is not None and y is not None:
                a(f'v_add_f32_dpp v{x}, v{y}, v{y} row_ror:8 row_mask:0xf bank_mask:0xc')
        C = []
        for jj in range(4):
            x, y = B[jj], B[jj + 4]
            if x is None: C.append(None); continue
            d = vACC + 8 + jj
            a(f'v_add_f32_dpp v{d}, v{x}, v{x} row_shl:4 row_mask:0xf bank_mask:0x5')
            C.append(d)
        for jj in range(4):
            x, y = B[jj], B[jj + 4]
            if x is None: continue
            z = y if y is not None else x
            a(f'v_add_f32_dpp v{C[jj]}, v{z}, v{z} row_shr:4 row_mask:0xf bank_mask:0xa')
        assert all(c is not None for c in C)
        for jj in range(4): a(f'v_add_f32_dpp v{C[jj]}, v{C[jj]}, v{C[jj]} quad_perm:[2,3,0,1] {DPPF}')
        a(f'v_cndmask_b32 v{C[0]}, v{C[0]}, v{C[2]}, {sM1}\nv_cndmask_b32 v{C[1]}, v{C[1]}, v{C[3]}, {sM1}')
        for jj in range(2): a(f'v_add_f32_dpp v{C[jj]}, v{C[jj]}, v{C[jj]} quad_perm:[1,0,3,2] {DPPF}')
        s = vSC[t]
        a(f'v_cndmask_b32 v{s}, v{C[0]}, v{C[1]}, {sM0}')
        rbf(s, s)
        a(f'v_mul_f32 v{s}, {SCALE:#x}, v{s}')
        rbf(s, s)
        if t in sVAL:
            a(f'v_mov_b32 v{C[0]}, {NEGINF:#x}\nv_cndmask_b32 v{s}, v{C[0]}, v{s}, {sVAL[t]}')
    issued = [S]
    def refill(upto):
        while issued[0] < min(N, upto):
            issue(issued[0]); issued[0] += 1
            if issued[0] == N - 8: cnt_load()
            if issued[0] == N - tww: tail_loads_w()
            if issued[0] == N - twg: tail_loads_g()
    for x in range(0, NL, 2):
        wait(('r', x + 1))
        r0, r1 = ring + (x % S) * 4, ring + ((x + 1) % S) * 4
        a0, a1 = vACC + x % 16, vACC + (x + 1) % 16
        for jj in range(4):
            a(f'v_dot2_f32_bf16 v{a0}, v{r0 + jj}, v{vQ + jj}, {"0" if jj == 0 else "v%d" % a0}')
            a(f'v_dot2_f32_bf16 v{a1}, v{r1 + jj}, v{vQ + jj}, {"0" if jj == 0 else "v%d" % a1}')
        refill(x + 2 + S)
        if (x + 2) % 16 == 0 or x + 2 == NL:
            t = x // 16
            reduce_tile(t, x + 2 - 16 * t)
    m = vT[0]
    a(f'v_max_f32 v{m}, v{vSC[0]}, v{vSC[1]}')
    for t in range(2, NT): a(f'v_max_f32 v{m}, v{m}, v{vSC[t]}')
    allreduce(m, 'v_max_f32', vT[1])
    for t in range(NT): a(f'v_sub_f32 v{vSC[t]}, v{vSC[t]}, v{m}')
    for t in range(NT): a(f'v_mul_f32 v{vSC[t]}, s{sC1}, v{vSC[t]}')
    for t in range(NT): a(f'v_exp_f32 v{vSC[t]}, v{vSC[t]}')
    for t in range(NT): a(f'v_cvt_pk_bf16_f32 v{vSC[t]}, v{vSC[t]}, v{vSC[t]}')
    l = vT[2]
    a(f'v_lshlrev_b32 v{l}, 16, v{vSC[0]}')
    for t in range(1, NT): a(f'v_lshlrev_b32 v{vT[3]}, 16, v{vSC[t]}\nv_add_f32 v{l}, v{l}, v{vT[3]}')
    allreduce(l, 'v_add_f32', vT[1])
    a(f'''
    s_lshl_b32 s{sT0}, s{sW}, 2
    v_mov_b32 v{vT[3]}, s{sT0}
    ds_write_b32 v{vT[3]}, v{m} offset:{L_M}
    ds_write_b32 v{vT[3]}, v{l} offset:{L_L}
    ''')
    a(f'''
    s_cmp_lg_u32 s{sW}, 0
    s_cbranch_scc1 L_nocnt
    v_mov_b32 v{vT[4]}, 1
    v_mov_b32 v{vT[5]}, 0
    s_mov_b64 exec, 1
    buffer_atomic_add v{vT[4]}, v{vT[5]}, {DBG_}, 0 offen sc1
    s_mov_b64 exec, -1
    L_nocnt:
    ''')
    stamp()
    for n in range(NL):
        x = NL + n
        mf = onehot_mfma(vSC[n // 16], n % 16, ring + (x % S) * 4, n, first=(n == 0))
        wait(('r', x))
        a(mf)
        if n % 2 == 1: refill(x + 1 + S)
    a(f'''
    s_mov_b32 exec_hi, 0
    ds_write_b128 v{vDA}, v[{vD}:{vD+3}] offset:{L_OP}
    s_mov_b64 exec, -1
    ''')
    stamp()
    a(f'''
    s_mov_b32 s{sSPIN}, {spin}
    L_cnt:
    v_cmp_gt_u32 vcc, 256, v{vCNT}
    s_cbranch_vccz L_cnt_done
    s_sub_u32 s{sSPIN}, s{sSPIN}, 1
    s_cbranch_scc1 L_cnt_done
    s_sleep 8
    v_mov_b32 v{vT[5]}, 0
    buffer_load_dword v{vCNT}, v{vT[5]}, {DBG_}, 0 offen sc1
    s_waitcnt vmcnt(0)
    s_branch L_cnt
    L_cnt_done:
    s_waitcnt lgkmcnt(0)
    s_barrier
    ''')
    stamp()
    t = vACC
    a(f'''
    s_cmp_lg_u32 s{sW}, 0
    s_cbranch_scc1 L_pub_done
    v_lshrrev_b32 v{vT[0]}, 5, v{vLANE}          ; half
    v_and_b32 v{vT[1]}, 31, v{vLANE}
    v_lshlrev_b32 v{vT[2]}, 4, v{vT[0]}
    ds_read_b128 v[{vA[0]}:{vA[0]+3}], v{vT[2]} offset:{L_M}
    ds_read_b128 v[{vA[1]}:{vA[1]+3}], v{vT[2]} offset:{L_L}
    v_lshlrev_b32 v{vT[3]}, 11, v{vT[0]}
    v_lshl_add_u32 v{vT[3]}, v{vT[1]}, 4, v{vT[3]}
    ''')
    assert t % 2 == 0
    for i in range(4): a(f'ds_read_b128 v[{ring + 4*i}:{ring + 4*i + 3}], v{vT[3]} offset:{L_OP + 512 * i}')
    mm, ll = vA[0], vA[1]
    M, L_ = vD, vD + 1
    a(f'''
    v_lshlrev_b32 v{vT[4]}, 4, v{vT[1]}
    v_lshl_add_u32 v{vT[4]}, v{vT[0]}, 3, v{vT[4]}
    s_waitcnt lgkmcnt(5)
    v_max3_f32 v{M}, v{mm}, v{mm+1}, v{mm+2}
    v_max_f32 v{M}, v{M}, v{mm+3}
    v_mov_b32 v{vT[5]}, v{M}
    v_permlane32_swap_b32 v{M}, v{vT[5]}
    v_max_f32 v{M}, v{M}, v{vT[5]}
    ''')
    for i in range(4): a(f'v_sub_f32 v{mm+i}, v{mm+i}, v{M}')
    for i in range(4): a(f'v_mul_f32 v{mm+i}, s{sC1}, v{mm+i}')
    for i in range(4): a(f'v_exp_f32 v{mm+i}, v{mm+i}')
    a('s_waitcnt lgkmcnt(0)')
    for e in range(4): a(f'v_mul_f32 v{t+e}, v{mm}, v{ring + e}')
    a(f'v_mul_f32 v{L_}, v{mm}, v{ll}')
    for i in range(1, 4):
        for e in range(4): a(f'v_fmac_f32 v{t+e}, v{mm+i}, v{ring + 4*i + e}')
        a(f'v_fmac_f32 v{L_}, v{mm+i}, v{ll+i}')
    a(f'''
    v_mov_b32 v{vT[5]}, v{L_}
    v_permlane32_swap_b32 v{t}, v{t+2}
    v_permlane32_swap_b32 v{t+1}, v{t+3}
    v_permlane32_swap_b32 v{L_}, v{vT[5]}
    v_add_f32 v{t}, v{t}, v{t+2}
    v_add_f32 v{t+1}, v{t+1}, v{t+3}
    v_add_f32 v{L_}, v{L_}, v{vT[5]}
    buffer_store_dwordx2 v[{t}:{t+1}], v{vT[4]}, {WS_}, s{sP1OWN} offen sc1
    s_mov_b64 exec, 1
    buffer_store_dwordx2 v[{M}:{M+1}], v{vT[4]}, {WS_}, s{sP1OWN} offen offset:512 sc1
    s_mov_b64 exec, -1
    L_pub_done:
    ''')
    a('s_waitcnt vmcnt(0)')
    for n in range(16):
        a(f'v_lshlrev_b32 v{wWlo + n}, 16, v{wW + n}\nv_and_b32 v{wW + n}, s{sC2}, v{wW + n}')
    a(f's_mov_b32 s{sT0}, 0x05040100\ns_mov_b32 s{sT1}, 0x07060302')
    for mtx in range(2):
        for jj in range(4):
            r0, r1 = wG + 8 * mtx + jj, wG + 8 * mtx + 4 + jj
            a(f'v_perm_b32 v{wGp + 8*mtx + 2*jj}, v{r1}, v{r0}, s{sT0}\nv_perm_b32 v{wGp + 8*mtx + 2*jj + 1}, v{r1}, v{r0}, s{sT1}')
    for fp in range(4):
        a(f'v_perm_b32 v{wDp + 2*fp}, v{wD + 2*fp + 1}, v{wD + 2*fp}, s{sT0}\nv_perm_b32 v{wDp + 2*fp + 1}, v{wD + 2*fp + 1}, v{wD + 2*fp}, s{sT1}')
    g = ring
    a(f'''
    s_cmp_eq_u32 s{sWROLE}, 0
    s_cbranch_scc1 L_w_done
    v_lshrrev_b32 v{vT[0]}, 3, v{vLANE}
    v_and_b32 v{vT[1]}, 7, v{vLANE}
    v_lshlrev_b32 v{vT[0]}, 10, v{vT[0]}            ; s*1024
    v_lshl_add_u32 v{vT[1]}, v{vT[1]}, 4, v{vT[0]}   ; + ch*16
    s_lshl_b32 s{sT0}, s{sGAM}, 2
    s_lshr_b32 s{sT1}, s{sW}, 1
    s_add_u32 s{sT0}, s{sT0}, s{sT1}
    s_lshl_b32 s{sT0}, s{sT0}, 13                    ; head*8192
    s_and_b32 s{sT1}, s{sW}, 1
    s_lshl_b32 s{sT1}, s{sT1}, 8
    s_add_u32 s{sT1}, s{sT1}, s{sT0}
    ''')
    poll([f'buffer_load_dwordx4 v[{g}:{g+3}], v{vT[1]}, {WS_}, s{sT1} offen sc1',
          f'buffer_load_dwordx4 v[{g+4}:{g+7}], v{vT[1]}, {WS_}, s{sT1} offen offset:128 sc1',
          f'buffer_load_dwordx2 v[{g+8}:{g+9}], v{vT[0]}, {WS_}, s{sT0} offen offset:512 sc1'], range(g, g + 10))
    stamp()
    mS, lS = g + 8, g + 9
    M = vT[2]
    a(f'''
    v_max_f32_dpp v{M}, v{mS}, v{mS} row_ror:8 {DPPF}
    v_mov_b32 v{vT[3]}, v{M}
    v_permlane16_swap_b32 v{M}, v{vT[3]}
    v_max_f32 v{M}, v{M}, v{vT[3]}
    v_mov_b32 v{vT[3]}, v{M}
    v_permlane32_swap_b32 v{M}, v{vT[3]}
    v_max_f32 v{M}, v{M}, v{vT[3]}
    v_sub_f32 v{mS}, v{mS}, v{M}
    v_mul_f32 v{mS}, s{sC1}, v{mS}
    v_exp_f32 v{mS}, v{mS}
    ''')
    a(f'v_mul_f32 v{lS}, v{lS}, v{mS}')
    for i in range(8): a(f'v_mul_f32 v{g+i}, v{g+i}, v{mS}')
    a(f'v_add_f32_dpp v{lS}, v{lS}, v{lS} row_ror:8 {DPPF}')
    for e in range(4): a(f'v_permlane32_swap_b32 v{g+e}, v{g+4+e}')
    a(f'v_mov_b32 v{vT[3]}, v{lS}')
    for e in range(4): a(f'v_add_f32 v{g+e}, v{g+e}, v{g+4+e}')
    a(f'''
    v_permlane16_swap_b32 v{lS}, v{vT[3]}
    v_permlane16_swap_b32 v{g}, v{g+2}
    v_permlane16_swap_b32 v{g+1}, v{g+3}
    v_add_f32 v{lS}, v{lS}, v{vT[3]}
    v_add_f32 v{g}, v{g}, v{g+2}
    v_add_f32 v{g+1}, v{g+1}, v{g+3}
    v_mov_b32 v{vT[3]}, v{lS}
    v_add_f32_dpp v{g}, v{g}, v{g} row_ror:8 row_mask:0xf bank_mask:0x3
    v_permlane32_swap_b32 v{lS}, v{vT[3]}
    v_add_f32_dpp v{g}, v{g+1}, v{g+1} row_ror:8 row_mask:0xf bank_mask:0xc
    v_add_f32 v{lS}, v{lS}, v{vT[3]}
    v_rcp_f32 v{vT[3]}, v{lS}
    v_mul_f32 v{g}, v{g}, v{vT[3]}
    ''')
    rbf(g, g)
    z = vACC
    for n in range(16):
        k = n & 1
        if n < 2:
            a(f'v_mul_f32_dpp v{z + 2*k}, v{g}, v{wWlo + n} row_newbcast:{n} {DPPF}\nv_mul_f32_dpp v{z + 2*k + 1}, v{g}, v{wW + n} row_newbcast:{n} {DPPF}')
        else:
            a(f'v_fmac_f32_dpp v{z + 2*k}, v{g}, v{wWlo + n} row_newbcast:{n} {DPPF}\nv_fmac_f32_dpp v{z + 2*k + 1}, v{g}, v{wW + n} row_newbcast:{n} {DPPF}')
    a(f'''
    v_add_f32 v{z}, v{z}, v{z+2}
    v_add_f32 v{z+1}, v{z+1}, v{z+3}
    v_lshrrev_b32 v{vT[0]}, 5, v{vLANE}
    v_lshl_add_u32 v{vT[0]}, v{vC}, 1, v{vT[0]}     ; col = 2c + b5
    v_permlane32_swap_b32 v{z}, v{z+1}
    s_lshl_b32 s{sT0}, s{sW}, 7
    v_add_f32 v{z}, v{z}, v{z+1}
    v_lshlrev_b32 v{vT[0]}, 2, v{vT[0]}
    v_mov_b32 v{z+1}, v{z}
    v_add_u32 v{vT[0]}, s{sT0}, v{vT[0]}
    v_permlane16_swap_b32 v{z}, v{z+1}
    v_add_f32 v{z}, v{z}, v{z+1}
    ds_write_b32 v{vT[0]}, v{z} offset:{L_ZP}
    s_waitcnt lgkmcnt(0)
    s_barrier
    s_cmp_lg_u32 s{sW}, 7
    s_cbranch_scc1 L_w_done
    v_and_b32 v{vT[0]}, 31, v{vLANE}
    v_lshlrev_b32 v{vT[0]}, 2, v{vT[0]}
    v_lshrrev_b32 v{vT[1]}, 5, v{vLANE}
    v_lshl_add_u32 v{vT[1]}, v{vT[1]}, 9, v{vT[0]}
    ds_read_b32 v{z}, v{vT[1]} offset:{L_ZP}
    ds_read_b32 v{z+1}, v{vT[1]} offset:{L_ZP + 128}
    ds_read_b32 v{z+2}, v{vT[1]} offset:{L_ZP + 256}
    ds_read_b32 v{z+3}, v{vT[1]} offset:{L_ZP + 384}
    s_mul_i32 s{sT2}, s{sGAM}, 2560
    s_lshl_b32 s{sT3}, s{sCS}, 7
    s_add_u32 s{sT2}, s{sT2}, s{sT3}
    s_add_u32 s{sT2}, s{sT2}, {P2:#x}
    s_waitcnt lgkmcnt(0)
    v_add_f32 v{z}, v{z}, v{z+1}
    v_add_f32 v{z+2}, v{z+2}, v{z+3}
    v_add_f32 v{z}, v{z}, v{z+2}
    v_mov_b32 v{z+1}, v{z}
    v_permlane32_swap_b32 v{z}, v{z+1}
    v_add_f32 v{z}, v{z}, v{z+1}
    s_mov_b32 exec_hi, 0
    buffer_store_dword v{z}, v{vT[0]}, {WS_}, s{sT2} offen sc1
    s_mov_b64 exec, -1
    L_w_done:
    ''')
    nst[0] = 6
    stamp()
    a(f'''
    s_cmp_eq_u32 s{sGROLE}, 0
    s_cbranch_scc1 L_fin
    s_cmp_gt_u32 s{sW}, 4
    s_cbranch_scc1 L_fin
    v_lshrrev_b32 v{vT[0]}, 3, v{vLANE}
    v_and_b32 v{vT[1]}, 7, v{vLANE}
    v_mul_u32_u24 v{vT[0]}, 2560, v{vT[0]}
    v_lshl_add_u32 v{vT[1]}, v{vT[1]}, 4, v{vT[0]}
    s_lshl_b32 s{sT0}, s{sW}, 9
    s_add_u32 s{sT0}, s{sT0}, {P2:#x}
    ''')
    poll([f'buffer_load_dwordx4 v[{g+4*i}:{g+4*i+3}], v{vT[1]}, {WS_}, s{sT0} offen offset:{128*i} sc1' for i in range(4)], range(g, g + 16))
    stamp()
    for i in range(8): a(f'v_permlane32_swap_b32 v{g+i}, v{g+8+i}')
    for i in range(8): a(f'v_add_f32 v{g+i}, v{g+i}, v{g+8+i}')
    for i in range(4): a(f'v_permlane16_swap_b32 v{g+i}, v{g+4+i}')
    for i in range(4): a(f'v_add_f32 v{g+i}, v{g+i}, v{g+4+i}')
    for i in range(2): a(f'v_add_f32_dpp v{g+i}, v{g+i}, v{g+i} row_ror:8 row_mask:0xf bank_mask:0x3')
    for i in range(2): a(f'v_add_f32_dpp v{g+i}, v{g+2+i}, v{g+2+i} row_ror:8 row_mask:0xf bank_mask:0xc')
    h0, h1 = g, g + 1
    a(f'''
    v_cvt_pk_bf16_f32 v{g+2}, v{h0}, v{h1}
    v_lshlrev_b32 v{g+4}, 16, v{vXH}
    v_and_b32 v{g+5}, s{sC2}, v{vXH}
    v_lshlrev_b32 v{h0}, 16, v{g+2}
    v_and_b32 v{h1}, s{sC2}, v{g+2}
    v_add_f32 v{h0}, v{h0}, v{g+4}
    v_add_f32 v{h1}, v{h1}, v{g+5}
    v_cvt_pk_bf16_f32 v{g+2}, v{h0}, v{h1}
    s_lshl_b32 s{sT0}, s{sW}, 9
    v_lshlrev_b32 v{h0}, 16, v{g+2}
    v_and_b32 v{h1}, s{sC2}, v{g+2}
    v_lshlrev_b32 v{vT[0]}, 1, v{vAX}
    v_add_f32 v{g+4}, v{h0}, v{h1}
    v_mul_f32 v{g+5}, v{h0}, v{h0}
    v_add_u32 v{vT[0]}, s{sT0}, v{vT[0]}
    v_fmac_f32 v{g+5}, v{h1}, v{h1}
    ds_write_b64 v{vT[0]}, v[{h0}:{h1}] offset:{L_HH}
    ''')
    allreduce2(g + 4, g + 5, 'v_add_f32', g + 6, g + 7)
    a(f'''
    s_lshl_b32 s{sT0}, s{sW}, 3
    v_mov_b32 v{vT[0]}, s{sT0}
    v_mov_b32 v{vT[1]}, 0
    ds_write_b64 v{vT[0]}, v[{g+4}:{g+5}] offset:{L_ST}
    s_waitcnt lgkmcnt(0)
    s_barrier
    ds_read_b128 v[{g+4}:{g+7}], v{vT[1]} offset:{L_ST}
    ds_read_b128 v[{g+8}:{g+11}], v{vT[1]} offset:{L_ST + 16}
    ds_read_b64 v[{g+12}:{g+13}], v{vT[1]} offset:{L_ST + 32}
    s_waitcnt lgkmcnt(0)
    v_add_f32 v{g+4}, v{g+4}, v{g+6}
    v_add_f32 v{g+5}, v{g+5}, v{g+7}
    v_add_f32 v{g+8}, v{g+8}, v{g+10}
    v_add_f32 v{g+9}, v{g+9}, v{g+11}
    v_add_f32 v{g+4}, v{g+4}, v{g+12}
    v_add_f32 v{g+5}, v{g+5}, v{g+13}
    v_add_f32 v{g+4}, v{g+4}, v{g+8}
    v_add_f32 v{g+5}, v{g+5}, v{g+9}
    v_mul_f32 v{g+4}, {INV640:#x}, v{g+4}
    v_mul_f32 v{g+5}, {INV640:#x}, v{g+5}
    v_fma_f32 v{g+5}, -v{g+4}, v{g+4}, v{g+5}
    v_max_f32 v{g+5}, 0, v{g+5}
    ''')
    ln_consts(g + 4, g + 5, g + 6, g + 7, g + 8)
    ln_apply(h0, g + 6, g + 7, g + 8, g + 9)
    ln_apply(h1, g + 6, g + 7, g + 8, g + 10)
    a(f'v_cvt_pk_bf16_f32 v{g+2}, v{h0}, v{h1}')
    r = vACC
    for i in range(16): a(f'v_dot2_f32_bf16 v{r+i}, v{g+2}, v{wGp+i}, 0')
    for i in range(8): a(f'v_permlane32_swap_b32 v{r+i}, v{r+8+i}')
    for i in range(8): a(f'v_add_f32 v{r+i}, v{r+i}, v{r+8+i}')
    for i in range(4): a(f'v_permlane16_swap_b32 v{r+i}, v{r+4+i}')
    for i in range(4): a(f'v_add_f32 v{r+i}, v{r+i}, v{r+4+i}')
    for i in range(2): a(f'v_add_f32_dpp v{r+i}, v{r+i}, v{r+i} row_ror:8 row_mask:0xf bank_mask:0x3')
    for i in range(2): a(f'v_add_f32_dpp v{r+i}, v{r+2+i}, v{r+2+i} row_ror:8 row_mask:0xf bank_mask:0xc')
    a(f'''
    v_add_f32_dpp v{r+2}, v{r}, v{r} row_shl:4 row_mask:0xf bank_mask:0x5
    v_add_f32_dpp v{r+2}, v{r+1}, v{r+1} row_shr:4 row_mask:0xf bank_mask:0xa
    v_and_b32 v{vT[0]}, 0x3c, v{vLANE}
    s_lshl_b32 s{sT0}, s{sW}, 6
    v_add_f32_dpp v{r+2}, v{r+2}, v{r+2} quad_perm:[2,3,0,1] {DPPF}
    v_add_u32 v{vT[0]}, s{sT0}, v{vT[0]}
    v_lshlrev_b32 v{vT[1]}, 2, v{vC}
    v_add_f32_dpp v{r+2}, v{r+2}, v{r+2} quad_perm:[1,0,3,2] {DPPF}
    ds_write_b32 v{vT[0]}, v{r+2} offset:{L_GP}
    s_waitcnt lgkmcnt(0)
    s_barrier
    ''')
    for i in range(5): a(f'ds_read_b32 v{r+i}, v{vT[1]} offset:{L_GP + 64*i}')
    a(f'''
    s_mul_i32 s{sT0}, s{sFS}, 2560
    s_lshl_b32 s{sT1}, s{sW}, 9
    s_add_u32 s{sT0}, s{sT0}, s{sT1}
    s_add_u32 s{sT0}, s{sT0}, {P3:#x}
    v_lshlrev_b32 v{vT[0]}, 3, v{vLANE}
    s_waitcnt lgkmcnt(0)
    v_add_f32 v{r}, v{r}, v{r+1}
    v_add_f32 v{r+2}, v{r+2}, v{r+3}
    v_add_f32 v{r}, v{r}, v{r+4}
    v_add_f32 v{r}, v{r}, v{r+2}
    ''')
    rbf(r, r)
    a(f'''
    v_mul_f32 v{r+1}, s{sC1}, v{r}
    v_exp_f32 v{r+1}, -v{r+1}
    v_add_f32 v{r+1}, 1.0, v{r+1}
    v_rcp_f32 v{r+2}, v{r+1}
    v_mul_f32 v{r+3}, v{r}, v{r+2}
    ''')
    rbf(r + 3, r + 3)
    a(f'''
    v_mul_f32_dpp v{r+3}, v{r}, v{r+3} row_ror:8 {DPPF}
    v_mov_b32_dpp v{r+4}, v{r+3} quad_perm:[1,0,3,2] {DPPF}
    v_cvt_pk_bf16_f32 v{r+3}, v{r+3}, v{r+4}
    v_mov_b32 v{r+6}, 0
    v_mov_b32 v{r+7}, 0
    ''')
    for fp in range(4):
        a(f'v_dot2c_f32_bf16_dpp v{r+6}, v{r+3}, v{wDp + 2*fp} row_newbcast:{2*fp} {DPPF}')
        a(f'v_dot2c_f32_bf16_dpp v{r+7}, v{r+3}, v{wDp + 2*fp + 1} row_newbcast:{2*fp} {DPPF}')
    a(f'buffer_store_dwordx2 v[{r+6}:{r+7}], v{vT[0]}, {WS_}, s{sT0} offen sc1')
    stamp()
    a(f'''
    s_cmp_eq_u32 s{sFROLE}, 0
    s_cbranch_scc1 L_fin
    v_lshrrev_b32 v{vT[0]}, 2, v{vLANE}
    v_and_b32 v{vT[1]}, 3, v{vLANE}
    v_mul_u32_u24 v{vT[0]}, 2560, v{vT[0]}
    v_lshl_add_u32 v{vT[1]}, v{vT[1]}, 4, v{vT[0]}
    s_mul_i32 s{sT3}, s{sXCD}, 5
    s_add_u32 s{sT3}, s{sT3}, s{sJ}              ; r
    s_lshl_b32 s{sT0}, s{sT3}, 6
    s_mul_i32 s{sT1}, s{sW}, {48 * 2560}
    s_add_u32 s{sT0}, s{sT0}, s{sT1}
    s_add_u32 s{sT0}, s{sT0}, {P3:#x}
    s_add_u32 s{sT1}, s{sT0}, {16 * 2560}
    s_add_u32 s{sT2}, s{sT0}, {32 * 2560}
    ''')
    poll([f'buffer_load_dwordx4 v[{g+4*i}:{g+4*i+3}], v{vT[1]}, {WS_}, s{(sT0, sT1, sT2)[i]} offen sc1' for i in range(3)], range(g, g + 12))
    stamp()
    for e in range(4): a(f'v_add_f32 v{g+e}, v{g+e}, v{g+4+e}')
    for e in range(4): a(f'v_add_f32 v{g+e}, v{g+e}, v{g+8+e}')
    a(f'''
    v_permlane32_swap_b32 v{g}, v{g+2}
    v_permlane32_swap_b32 v{g+1}, v{g+3}
    v_add_f32 v{g}, v{g}, v{g+2}
    v_add_f32 v{g+1}, v{g+1}, v{g+3}
    v_and_b32 v{vT[0]}, 3, v{vLANE}
    v_lshl_add_u32 v{vT[0]}, v{vT[0]}, 2, v{vG}
    v_permlane16_swap_b32 v{g}, v{g+1}
    s_lshl_b32 s{sT0}, s{sW}, 6
    v_add_f32 v{g}, v{g}, v{g+1}
    v_lshlrev_b32 v{vT[0]}, 2, v{vT[0]}
    v_add_u32 v{vT[0]}, s{sT0}, v{vT[0]}
    v_add_f32_dpp v{g}, v{g}, v{g} row_ror:8 {DPPF}
    v_lshlrev_b32 v{vT[1]}, 2, v{vC}
    s_lshl_b32 s{sT1}, s{sT3}, 6
    v_add_f32_dpp v{g}, v{g}, v{g} row_ror:4 {DPPF}
    v_add_u32 v{vT[2]}, s{sT1}, v{vT[1]}
    ds_write_b32 v{vT[0]}, v{g} offset:{L_FP}
    s_waitcnt lgkmcnt(0)
    s_barrier
    s_cmp_lg_u32 s{sW}, 0
    s_cbranch_scc1 L_fin
    ''')
    for i in range(5): a(f'ds_read_b32 v{r+i}, v{vT[1]} offset:{L_FP + 64*i}')
    a(f'''
    ds_read_b32 v{r+5}, v{vT[2]} offset:{L_HH}
    v_lshrrev_b32 v{vT[2]}, 1, v{vT[2]}
    s_waitcnt lgkmcnt(0)
    v_add_f32 v{r}, v{r}, v{r+1}
    v_add_f32 v{r+2}, v{r+2}, v{r+3}
    v_add_f32 v{r}, v{r}, v{r+4}
    v_add_f32 v{r}, v{r}, v{r+2}
    ''')
    rbf(r, r)
    a(f'''
    v_add_f32 v{r}, v{r}, v{r+5}
    v_cvt_pk_bf16_f32 v{r}, v{r}, v{r}
    s_mov_b64 exec, 0xffff
    buffer_store_short v{r}, v{vT[2]}, {OUT_}, 0 offen
    s_mov_b64 exec, -1
    L_fin:
    ''')
    if stamps:
        nst[0] = 10
        stamp()
        a(f'''
        s_cmp_lg_u32 s{sW}, 0
        s_cbranch_scc1 L_end
        s_add_u32 s44, s44, 0x10000000
        s_addc_u32 s45, s45, 0
        s_lshl_b32 s{sT0}, s2, 6
        v_mov_b32 v{vT[0]}, 0
        s_mov_b64 exec, 1
        ''')
        for k in range(0, 12, 4):
            for e in range(4): a(f'v_mov_b32 v{ring + k + e}, s{sST + k + e}')
            a(f'buffer_store_dwordx4 v[{ring + k}:{ring + k + 3}], v{vT[0]}, {WS_}, s{sT0} offen offset:{4 * k}')
    a('L_end:\ns_endpgm')
    return build_file([f'; @launch grid=(256,1,1) block=(512,1,1) lds={lds}'], [(NAME + '_kernel', a.text(), V.high, 102)])

if __name__ == '__main__':
    import json
    out = sys.argv[1]
    kw = json.loads(sys.argv[2]) if len(sys.argv) > 2 else {}
    open(out, 'w').write(gen(**kw))
```

```python
import sys, struct
from asmlib import *

def f2u(x): return struct.unpack('<I', struct.pack('<f', x))[0]
LOG2E = f2u(1.4426950408889634)
SCALE = f2u(128 ** -0.5)
INV640 = f2u(1.0 / 640)
EPS = f2u(1e-5)
NEGINF = 0xff800000

EPOCH = 0x0
CTR = 0x1000
CTRS = 0x1100
QS = 0x40000
P1 = 0x80000
P2 = 0xC0000
P3 = 0xD0000
WS_END = P3 + 54 * 2560
OOB = 0x40000000
L_Q = 0; L_CNT = 256; L_M = 320; L_L = 352; L_ST = 384; L_OP = 4096; L_ZP = 8192; L_GP = 12288; L_HH = 16384; L_WT = 20480

DPPF = 'row_mask:0xf bank_mask:0xf'

def gen(NEo=17, NOo=15, NEy=11, NOy=9, HROT=74, S=32, LA=16, stamps=False, kvflags='nt', wqflags='nt', wflags='nt', lds=104448,
        spin=200000, stampwave=0, notail=False, now=False, n0=4, psleep=0, mapping='all', gstop=0, g1=6, pipe=False, gflags=None, wgate=4, wstop=0, dflags=None, dgate=9, gstart=True, wstart=True, dmaw='young'):
    a = Asm()
    V = Alloc(1, 256)
    U = 4
    if gflags is None: gflags = wflags
    if dflags is None: dflags = wflags
    OY = 16 * (NEo + NOo)
    OP = OY + 16 * (NEy + NOy)
    NCH = (1024 - OP) // 2
    assert OP <= 1024 and HROT % 2 == 0
    NTMAX = (max(NEo, NEy) * U + 15) // 16
    sW, sH, sIDX, sPAR, sS = 3, 4, 5, 6, 7
    K_, V_, WQ_, WS_, X_, WO_, WG_, WU_, WD_, OUT_ = [f's[{b}:{b+3}]' for b in (8, 12, 40, 44, 48, 52, 56, 60, 64, 68)]
    sOFF, sOFF0, sEX0, sT0, sT1, sT2, sT3 = 76, 77, 78, 80, 81, 82, 83
    sSLOT, sROLE, sGAM, sCS, sFS, sSPIN, sTAG, sTAG8 = 84, 85, 87, 88, 89, 91, 92, 93
    sC1, sC2 = 94, 95
    sROT, sCTR, sNXT, sLIM, sAOFF, sMSK8 = 72, 73, 74, 75, 86, 90
    sM1, sM0 = 's[16:17]', 's[18:19]'
    sVa, sVb = 's[20:21]', 's[22:23]'
    sLO8 = 's[26:27]'
    slist = stamps if isinstance(stamps, list) else []
    def stamp(name):
        if name in slist:
            a(f's_memrealtime s[96:97]\ns_waitcnt lgkmcnt(0)\nv_writelane_b32 v{vSTAMP}, s96, {1 + slist.index(name)}')
    q = []
    def vm(tag, text):
        a(text); q.append(tag)
    def wait(tag):
        idx = max(i for i, t in enumerate(q) if t == tag)
        n = len(q) - 1 - idx
        assert n <= 63, n
        a(f's_waitcnt vmcnt({n})')

    vSTAMP = V.get() if stamps else None
    vLANE = V.get(); vG = V.get(); vC = V.get(); vKV = V.get(); vKV2 = V.get()
    vT = [V.get() for _ in range(8)]
    vDA = V.get(); vXH = V.get(); vTAG = V.get(); vTK = V.get(); vM = V.get(); vL = V.get(); vZ = V.get()
    vMASK = V.get(4, 4)
    vA = [V.get(4, 4), V.get(4, 4)]
    vD = V.get(4, 4)
    vQ = V.get(4, 4)
    vSC = [V.get() for _ in range(NTMAX)]
    vACC = V.get(16, 4)
    gat = V.get(16, 4)
    ring = V.get(4 * S, 4)
    wqs = ring + 4 * (S - 20)
    assert n0 <= S - 20 and S == 32
    pA, pB = ring + 96, ring + 112

    def allreduce(r, op, t):
        for k in (8, 4, 2, 1):
            a(f'{op}_dpp v{r}, v{r}, v{r} row_ror:{k} {DPPF}')
        for sw in ('v_permlane16_swap_b32', 'v_permlane32_swap_b32'):
            a(f'v_mov_b32 v{t}, v{r}\n{sw} v{r}, v{t}\n{op} v{r}, v{r}, v{t}')
    def allreduce2(r0, r1, op, t0, t1):
        for k in (8, 4, 2, 1):
            a(f'{op}_dpp v{r0}, v{r0}, v{r0} row_ror:{k} {DPPF}\n{op}_dpp v{r1}, v{r1}, v{r1} row_ror:{k} {DPPF}')
        for sw in ('v_permlane16_swap_b32', 'v_permlane32_swap_b32'):
            a(f'v_mov_b32 v{t0}, v{r0}\nv_mov_b32 v{t1}, v{r1}\n{sw} v{r0}, v{t0}\n{sw} v{r1}, v{t1}\n{op} v{r0}, v{r0}, v{t0}\n{op} v{r1}, v{r1}, v{t1}')
    def rbf(d, s):
        a(f'v_cvt_pk_bf16_f32 v{d}, v{s}, v{s}\nv_lshlrev_b32 v{d}, 16, v{d}')
    def ln_consts(vmean, vvar, vm_bf, vs_bf, vr):
        rbf(vs_bf, vvar)
        rbf(vm_bf, vmean)
        a(f'v_add_f32 v{vs_bf}, {EPS:#x}, v{vs_bf}')
        rbf(vs_bf, vs_bf)
        a(f'v_sqrt_f32 v{vs_bf}, v{vs_bf}')
        rbf(vs_bf, vs_bf)
        a(f'v_rcp_f32 v{vr}, v{vs_bf}')
    def ln_apply(xs, vm_bf, vs_bf, vr, ts):
        for x in xs: a(f'v_sub_f32 v{x}, v{x}, v{vm_bf}')
        for x in xs: a(f'v_cvt_pk_bf16_f32 v{x}, v{x}, v{x}')
        for x in xs: a(f'v_lshlrev_b32 v{x}, 16, v{x}')
        for x, t in zip(xs, ts): a(f'v_mul_f32 v{t}, v{x}, v{vr}')
        for x, t in zip(xs, ts): a(f'v_fma_f32 v{x}, -v{t}, v{vs_bf}, v{x}')
        for x, t in zip(xs, ts): a(f'v_fma_f32 v{x}, v{x}, v{vr}, v{t}')
        for x in xs: a(f'v_cvt_pk_bf16_f32 v{x}, v{x}, v{x}')
    def ands(pk, sel, k):
        A = vA[k & 1]
        for jj in range(4): a(f'v_and_b32_dpp v{A + jj}, v{pk}, v{vMASK + jj} {sel} {DPPF}')
    def mfma(data, k, first=False):
        A = vA[k & 1]
        c = '0' if first else f'v[{vD}:{vD+3}]'
        a(f'v_mfma_f32_16x16x32_bf16 v[{vD}:{vD+3}], v[{A}:{A+3}], v[{data}:{data+3}], {c}')
    def onehot_chain(items, pre=None):
        ands(items[0][0], items[0][1], 0)
        for k, (pk, sel, data) in enumerate(items):
            if k + 1 < len(items): ands(items[k+1][0], items[k+1][1], k + 1)
            if pre: pre(k)
            mfma(data, k, first=(k == 0))
    def tagw(regs, rnd=False):
        if rnd:
            for r in regs: a(f'v_add_u32 v{r}, 0x80, v{r}')
        for r in regs: a(f'v_and_or_b32 v{r}, v{r}, s{sMSK8}, v{vTAG}')
    def check(src, dst, n):
        t = vT[7]
        for i in range(n): a(f'v_xor_b32 v{dst+i}, s{sTAG8}, v{src+i}')
        rs = [dst + i for i in range(n)]
        a(f'v_or3_b32 v{t}, v{rs[0]}, v{rs[1]}, v{rs[2]}'); rs = rs[3:]
        while rs:
            if len(rs) >= 2: a(f'v_or3_b32 v{t}, v{t}, v{rs[0]}, v{rs[1]}'); rs = rs[2:]
            else: a(f'v_or_b32 v{t}, v{t}, v{rs[0]}'); rs = []
        a(f'v_and_b32 v{t}, 0xff, v{t}\nv_cmp_ne_u32 vcc, 0, v{t}')
    npoll = [0]
    def poll(loads, n, dst, nl):
        L = f'L_poll{npoll[0]}'; npoll[0] += 1
        a(f's_mov_b32 s{sSPIN}, {spin}')
        if pipe:
            loads(pA)
            a(f'{L}:')
            loads(pB)
            a(f's_waitcnt vmcnt({nl})')
            check(pA, dst, n)
            a(f's_cbranch_vccz {L}_done')
            loads(pA)
            a(f's_waitcnt vmcnt({nl})')
            check(pB, dst, n)
            a(f'''
            s_cbranch_vccz {L}_done
            s_sub_u32 s{sSPIN}, s{sSPIN}, 1
            s_cbranch_scc0 {L}
            {L}_done:
            ''')
        else:
            a(f'{L}:')
            loads(pA)
            a('s_waitcnt vmcnt(0)')
            check(pA, dst, n)
            a(f's_cbranch_vccz {L}_done')
            if psleep: a(f's_sleep {psleep}')
            a(f's_sub_u32 s{sSPIN}, s{sSPIN}, 1\ns_cbranch_scc0 {L}\n{L}_done:')
    def lds_reduce16(base, r):
        for i in range(4): a(f'ds_read_b128 v[{r + 4*i}:{r + 4*i + 3}], v{vRA} offset:{base + 256 * i}')
    def lds_reduce16b(r):
        a('s_waitcnt lgkmcnt(2)')
        for e in range(4): a(f'v_add_f32 v{r+e}, v{r+e}, v{r+4+e}')
        a('s_waitcnt lgkmcnt(0)')
        for e in range(4): a(f'v_add_f32 v{r+8+e}, v{r+8+e}, v{r+12+e}')
        for e in range(4): a(f'v_add_f32 v{r+e}, v{r+e}, v{r+8+e}')
        a(f'''
        v_permlane32_swap_b32 v{r}, v{r+2}
        v_permlane32_swap_b32 v{r+1}, v{r+3}
        v_add_f32 v{r}, v{r}, v{r+2}
        v_add_f32 v{r+1}, v{r+1}, v{r+3}
        v_permlane16_swap_b32 v{r}, v{r+1}
        v_add_f32 v{r}, v{r}, v{r+1}
        ''')
    def write_d_rr(base):
        a(f'''
        s_mov_b32 exec_lo, 0x00ff00ff
        s_mov_b32 exec_hi, 0xff00ff00
        ds_write_b128 v{vDA2}, v[{vD}:{vD+3}] offset:{base}
        s_mov_b64 exec, -1
        s_waitcnt lgkmcnt(0)
        s_barrier
        ''')
    def lds_add(off, rtn=None):
        a(f'v_mov_b32 v{vT[6]}, 1\ns_mov_b64 exec, 1')
        if rtn: a(f'ds_add_rtn_u32 v{vT[6]}, v{vZ}, v{vT[6]} offset:{off}')
        else: a(f'ds_add_u32 v{vZ}, v{vT[6]} offset:{off}')
        a('s_mov_b64 exec, -1')
    ngate = [0]
    def lds_gate(off, val):
        L = f'L_gate{ngate[0]}'; ngate[0] += 1
        a(f'''
        {L}:
        ds_read_b32 v{vT[6]}, v{vZ} offset:{off}
        s_waitcnt lgkmcnt(0)
        v_cmp_gt_u32 vcc, {val}, v{vT[6]}
        s_cbranch_vccz {L}_done
        s_sleep 2
        s_branch {L}
        {L}_done:
        ''')

    a(f'''
    s_cmp_ge_u32 s2, 256
    s_cbranch_scc1 L_end
    s_load_dwordx16 s[16:31], s[0:1], 0
    s_load_dwordx8 s[32:39], s[0:1], 64
    ''')
    if stamps: a(f's_memrealtime s[98:99]\nv_mov_b32 v{vSTAMP}, 0')
    a(f'''
    v_lshrrev_b32 v{vT[0]}, 6, v0
    v_and_b32 v{vLANE}, 63, v0
    v_readfirstlane_b32 s{sW}, v{vT[0]}
    v_lshrrev_b32 v{vG}, 4, v{vLANE}
    v_and_b32 v{vC}, 15, v{vLANE}
    v_lshlrev_b32 v{vKV}, 4, v{vLANE}
    v_mov_b32 v{vZ}, 0
    s_and_b32 s{sPAR}, s2, 1
    ''')
    if mapping == 'all':
        a(f's_lshr_b32 s{sH}, s2, 3\ns_and_b32 s{sS}, s2, 7')
    elif mapping == 'pair':
        a(f'''
        s_and_b32 s{sH}, s2, 6
        s_lshl_b32 s{sH}, s{sH}, 2
        s_lshr_b32 s{sT0}, s2, 5
        s_add_u32 s{sH}, s{sH}, s{sT0}
        s_lshr_b32 s{sS}, s2, 2
        s_and_b32 s{sS}, s{sS}, 6
        s_or_b32 s{sS}, s{sS}, s{sPAR}
        ''')
    else:
        a(f'''
        s_and_b32 s{sH}, s2, 2
        s_lshl_b32 s{sH}, s{sH}, 3
        s_lshr_b32 s{sT0}, s2, 4
        s_add_u32 s{sH}, s{sH}, s{sT0}
        s_lshr_b32 s{sS}, s2, 1
        s_and_b32 s{sS}, s{sS}, 6
        s_or_b32 s{sS}, s{sS}, s{sPAR}
        ''')
    a(f'''
    s_lshl_b32 s{sT1}, s{sH}, 8
    s_mul_i32 s{sT2}, s{sS}, {80 * 8192}
    s_add_u32 s{sT1}, s{sT1}, s{sT2}
    s_mov_b32 s42, {80 * 8192}
    s_mov_b32 s43, 0x20000
    s_mov_b32 s50, 1280
    s_mov_b32 s51, 0x20000
    s_mov_b32 s46, {WS_END}
    s_mov_b32 s47, 0x20000
    v_lshlrev_b32 v{vT[1]}, 13, v{vG}
    v_lshl_add_u32 v{vT[1]}, v{vC}, 4, v{vT[1]}
    v_lshlrev_b32 v{vT[2]}, 2, v{vLANE}
    v_lshl_add_u32 v{vT[3]}, v{vC}, 2, v{vG}
    v_lshlrev_b32 v{vT[3]}, 1, v{vT[3]}
    s_mul_i32 s{sT3}, s{sS}, 160
    s_lshr_b32 s{sIDX}, s{sS}, 1
    s_lshl_b32 s{sIDX}, s{sIDX}, 2
    s_and_b32 s{sT2}, s{sW}, 3
    s_add_u32 s{sIDX}, s{sIDX}, s{sT2}
    s_mul_i32 s{sROT}, s{sH}, {HROT}
    s_cmp_lt_u32 s{sW}, 4
    s_cselect_b32 s{sT2}, 0, {OY}
    s_add_u32 s{sIDX}, s{sIDX}, s{sT2}
    s_add_u32 s{sIDX}, s{sIDX}, s{sROT}
    s_lshl_b32 s{sOFF0}, s{sPAR}, 4
    s_add_u32 s{sOFF0}, s{sOFF0}, s{sIDX}
    s_lshl_b32 s{sOFF0}, s{sOFF0}, 12
    s_and_b32 s{sOFF0}, s{sOFF0}, 0x3fffff
    s_lshl_b32 s{sT0}, s{sH}, 22
    s_mul_i32 s{sCTR}, s{sH}, {CTRS}
    s_add_u32 s{sCTR}, s{sCTR}, {CTR}
    s_mov_b32 s10, 0x400000
    s_mov_b32 s11, 0x20000
    s_waitcnt lgkmcnt(0)
    s_mov_b32 s48, s16
    s_mov_b32 s49, s17
    s_add_u32 s40, s22, s{sT1}
    s_addc_u32 s41, s23, 0
    s_add_u32 s8, s18, s{sT0}
    s_addc_u32 s9, s19, 0
    s_mov_b32 s44, s38
    s_mov_b32 s45, s39
    s_load_dword s{sTAG}, s[38:39], {EPOCH}
    ''')
    if stamps: a(f'v_writelane_b32 v{vSTAMP}, s98, 0')
    vX = gat; vXS = gat + 5
    a(f'''
    s_cmp_lg_u32 s{sW}, 0
    s_cbranch_scc1 L_noq1
    s_cmp_eq_u32 s{sS}, 0
    s_cselect_b32 s{sT1}, s{sCTR}, {OOB:#x}
    s_mov_b64 exec, 1
    buffer_store_dword v{vZ}, v{vZ}, {WS_}, s{sT1} offen sc1
    s_mov_b64 exec, -1
    ''')
    for i in range(20):
        if i: a(f's_mov_b32 s{sT1}, {i * 32768}')
        vm(('wq', i), f'buffer_load_dwordx4 v[{wqs + 4*i}:{wqs + 4*i + 3}], v{vT[1]}, {WQ_}, {"0" if i == 0 else "s%d" % sT1} offen {wqflags}')
        if i == 3:
            for k in range(5): vm('x', f'buffer_load_dword v{vX + k}, v{vT[2]}, {X_}, 0 offen offset:{256 * k}')
            vm('x', f'buffer_load_ushort v{vXS}, v{vT[3]}, {X_}, s{sT3} offen')
            vm('x', f'buffer_load_ushort v{vXS + 1}, v{vT[3]}, {X_}, s{sT3} offen offset:128')
    a('L_noq1:\ns_barrier')

    def issue_static(m, n, x, NX, track=True):
        k, i = divmod(n, U)
        so = sOFF
        if 8 <= k < 8 + NX: so = sEX0 + k - 8
        elif i == 0:
            if k == 0: a(f's_mov_b32 s{sOFF}, s{sOFF0}')
            else: a(f's_add_u32 s{sOFF}, s{sOFF}, {32 * 4096}\ns_and_b32 s{sOFF}, s{sOFF}, 0x3fffff')
        r = ring + (x % S) * 4
        txt = f'buffer_load_dwordx4 v[{r}:{r+3}], v{vKV}, {K_ if m == "K" else V_}, s{so} offen offset:{i * 1024} {kvflags}'
        if track: vm(('r', x), txt)
        else: a(txt)
    assert min(NOo, NOy) * U >= S
    def lanemask(nvalid):
        nvalid = max(0, min(16, nvalid))
        m = (1 << nvalid) - 1
        return m | (m << 16)
    def common_setup():
        a(f'''
        s_add_u32 s12, s20, s{sT0}
        s_addc_u32 s13, s21, 0
        s_mov_b32 s14, 0x400000
        s_mov_b32 s15, 0x20000
        s_lshl_b32 s{sSLOT}, s{sH}, 3
        s_add_u32 s{sSLOT}, s{sSLOT}, s{sS}
        s_and_b32 s{sGAM}, s2, 7
        s_lshr_b32 s{sT1}, s2, 3
        s_lshl_b32 s{sT2}, s{sGAM}, 2
        s_add_u32 s{sT1}, s{sT1}, s{sT2}
        s_and_b32 s{sT1}, s{sT1}, 31
        s_lshr_b32 s{sFS}, s{sT1}, 1
        s_lshl_b32 s{sFS}, s{sFS}, 3
        s_add_u32 s{sFS}, s{sFS}, s{sGAM}
        s_cmp_lt_u32 s{sFS}, 27
        s_cselect_b32 s{sROLE}, 2, 0
        s_mov_b32 s{sLIM}, {NCH}
        s_cselect_b32 s{sLIM}, {max(0, NCH - gstop)}, s{sLIM}
        s_lshl_b32 s{sFS}, s{sFS}, 1
        s_and_b32 s{sT2}, s{sT1}, 1
        s_add_u32 s{sFS}, s{sFS}, s{sT2}
        s_sub_u32 s{sCS}, s{sT1}, 8
        s_cmp_lt_u32 s{sCS}, 10
        s_cselect_b32 s{sROLE}, 1, s{sROLE}
        s_cselect_b32 s{sLIM}, {max(0, NCH - wstop)}, s{sLIM}
        ''')
        for b, p, n in ((52, 24, 4096 * 1280), (56, 28, 640 * 3456), (60, 30, 640 * 3456), (64, 32, 1728 * 1280), (68, 34, 1280)):
            a(f's_mov_b32 s{b}, s{p}\ns_mov_b32 s{b+1}, s{p+1}\ns_mov_b32 s{b+2}, {n}\ns_mov_b32 s{b+3}, 0x20000')
        a(f'''
        s_mov_b32 s16, 0xcccccccc
        s_mov_b32 s17, 0xcccccccc
        s_mov_b32 s18, 0xaaaaaaaa
        s_mov_b32 s19, 0xaaaaaaaa
        s_mov_b32 s26, 0x00ff00ff
        s_mov_b32 s27, 0x00ff00ff
        s_mov_b32 s{sC1}, {LOG2E:#x}
        s_mov_b32 s{sC2}, 0xffff0000
        s_mov_b32 s{sMSK8}, 0xffffff00
        v_add_u32 v{vKV2}, 4096, v{vKV}
        v_and_b32 v{vT[5]}, 1, v{vC}
        v_lshlrev_b32 v{vT[5]}, 4, v{vT[5]}
        v_mov_b32 v{vT[6]}, 0xffff
        v_lshlrev_b32 v{vT[5]}, v{vT[5]}, v{vT[6]}
        v_bfe_u32 v{vT[6]}, v{vC}, 1, 2
        ''')
        for jj in range(4):
            a(f'v_cmp_eq_u32 vcc, {jj}, v{vT[6]}\nv_cndmask_b32 v{vMASK + jj}, 0, v{vT[5]}, vcc')
        a(f'''
        v_lshlrev_b32 v{vDA}, 5, v{vC}
        v_lshl_add_u32 v{vDA}, v{vG}, 4, v{vDA}
        s_waitcnt lgkmcnt(0)
        s_add_u32 s{sTAG}, s{sTAG}, 1
        s_and_b32 s{sTAG8}, s{sTAG}, 0xff
        v_mov_b32 v{vTAG}, s{sTAG8}
        ''')
    a(f's_cmp_eq_u32 s{sW}, 0\ns_cbranch_scc1 L_q')
    for x in range(4): issue_static('K', x, x, 0, track=False)
    a('L_q:')
    common_setup()
    a(f's_cmp_eq_u32 s{sW}, 0\ns_cbranch_scc1 L_q2')
    if (gstart or wstart) and not now:
        a(f'''
        s_cmp_lt_u32 s{sW}, 4
        s_cbranch_scc1 L_dma_done
        v_bfe_u32 v{vT[0]}, v{vLANE}, 3, 1               ; rr
        s_and_b32 s{sT3}, s{sW}, 3
        s_cmp_eq_u32 s{sROLE}, 2
        s_cbranch_scc1 L_dma_g
        s_cmp_eq_u32 s{sROLE}, 1
        s_cbranch_scc0 L_dma_done
        ''')
        if wstart:
            a(f'''
            v_lshrrev_b32 v{vT[4]}, 1, v{vG}
            v_lshlrev_b32 v{vT[4]}, 5, v{vT[4]}
            v_lshl_add_u32 v{vT[4]}, v{vT[0]}, 4, v{vT[4]}
            v_and_b32 v{vT[2]}, 1, v{vG}
            v_lshl_add_u32 v{vT[4]}, v{vT[2]}, 1, v{vT[4]}
            v_mul_u32_u24 v{vT[4]}, 1280, v{vT[4]}
            v_and_b32 v{vT[1]}, 7, v{vLANE}
            v_lshl_add_u32 v{vT[4]}, v{vT[1]}, 4, v{vT[4]}
            s_lshl_b32 s{sT0}, s{sGAM}, 9
            s_lshl_b32 s{sT1}, s{sT3}, 7
            s_add_u32 s{sT0}, s{sT0}, s{sT1}
            s_mul_i32 s{sT0}, s{sT0}, 1280
            s_lshl_b32 s{sT1}, s{sCS}, 7
            s_add_u32 s{sT0}, s{sT0}, s{sT1}
            s_lshl_b32 s{sT3}, s{sT3}, 14
            s_add_u32 s{sT3}, s{sT3}, {L_WT}
            ''')
            for half in range(2):
                for n in range(4):
                    for k in range(2):
                        a(f's_add_u32 m0, s{sT3}, {(8 * half + 4 * k + n) * 1024}\ns_add_u32 s{sT1}, s{sT0}, {(half * 64 + 4 * n + k) * 1280}')
                        a(f'buffer_load_dwordx4 v{vT[4]}, {WO_}, s{sT1} offen {wflags} lds')
        a('s_branch L_dma_done\nL_dma_g:')
        if gstart:
            a(f'''
            v_lshl_add_u32 v{vT[4]}, v{vG}, 1, v{vT[0]}
            v_mul_u32_u24 v{vT[4]}, 3456, v{vT[4]}
            v_and_b32 v{vT[5]}, 3, v{vLANE}
            v_lshl_add_u32 v{vT[4]}, v{vT[5]}, 4, v{vT[4]}
            s_mul_i32 s{sT0}, s{sT3}, {160 * 3456}
            s_lshl_b32 s{sT1}, s{sFS}, 6
            s_add_u32 s{sT0}, s{sT0}, s{sT1}
            s_mul_i32 s{sT3}, s{sT3}, {20 * 1024}
            s_add_u32 s{sT3}, s{sT3}, {L_WT}
            ''')
            for i in range(20):
                a(f's_add_u32 m0, s{sT3}, {i * 1024}\ns_add_u32 s{sT1}, s{sT0}, {8 * i * 3456}')
                a(f's_mov_b32 exec_lo, 0x0f0f0f0f\ns_mov_b32 exec_hi, 0x0f0f0f0f')
                a(f'buffer_load_dwordx4 v{vT[4]}, {WG_}, s{sT1} offen {gflags} lds')
                a(f's_mov_b32 exec_lo, 0xf0f0f0f0\ns_mov_b32 exec_hi, 0xf0f0f0f0')
                a(f'buffer_load_dwordx4 v{vT[4]}, {WU_}, s{sT1} offen {gflags} lds')
            a('s_mov_b64 exec, -1')
        a('L_dma_done:')
    for x in range(4, S): issue_static('K', x, x, 0, track=False)
    a('s_branch L_qdone\nL_q2:')
    a(f'ds_write_b32 v{vZ}, v{vZ} offset:{L_CNT}\nds_write_b32 v{vZ}, v{vZ} offset:{L_CNT+4}\nds_write_b32 v{vZ}, v{vZ} offset:{L_CNT+8}')
    wait('x')
    xs = vACC
    for i in range(5):
        a(f'v_lshlrev_b32 v{xs + 2*i}, 16, v{vX + i}\nv_and_b32 v{xs + 2*i + 1}, s{sC2}, v{vX + i}')
    sm = vT[0]
    a(f'v_add_f32 v{sm}, v{xs}, v{xs+1}')
    for i in range(2, 10): a(f'v_add_f32 v{sm}, v{sm}, v{xs + i}')
    allreduce(sm, 'v_add_f32', vT[2])
    a(f'v_mul_f32 v{sm}, {INV640:#x}, v{sm}')
    vv = vT[3]
    for i in range(10): a(f'v_sub_f32 v{xs + i}, v{xs + i}, v{sm}')
    a(f'v_mul_f32 v{vv}, v{xs}, v{xs}')
    for i in range(1, 10): a(f'v_fmac_f32 v{vv}, v{xs + i}, v{xs + i}')
    allreduce(vv, 'v_add_f32', vT[2])
    a(f'v_mul_f32 v{vv}, {INV640:#x}, v{vv}')
    ln_consts(sm, vv, vT[4], vT[5], vT[6])
    for i in range(2): a(f'v_lshlrev_b32 v{vXS + i}, 16, v{vXS + i}')
    ln_apply([vXS, vXS + 1], vT[4], vT[5], vT[6], [vT[1], vT[2]])
    stamp('ln')
    onehot_chain([(vXS + i // 16, f'row_newbcast:{i % 16}', wqs + 4 * i) for i in range(20)],
                 pre=lambda k: wait(('wq', k + 1)) if k % 2 == 0 else None)
    g = gat
    a(f's_lshl_b32 s{sT0}, s{sSLOT}, 9\ns_add_u32 s{sT0}, s{sT0}, {QS:#x}')
    tagw([vD + i for i in range(4)], rnd=True)
    a(f'''
    s_mov_b32 exec_hi, 0
    buffer_store_dwordx4 v[{vD}:{vD+3}], v{vDA}, {WS_}, s{sT0} offen sc1
    s_mov_b64 exec, -1
    ''')
    stamp('qpub')
    for x in range(n0): issue_static('K', x, x, 0, track=False)
    a(f'''
    s_lshl_b32 s{sT0}, s{sH}, 12
    s_add_u32 s{sT0}, s{sT0}, {QS:#x}
    s_mov_b32 s{sSPIN}, {spin}
    L_qpoll:
    ''')
    for i in range(4):
        a(f'buffer_load_dwordx4 v[{pA+4*i}:{pA+4*i+3}], v{vKV}, {WS_}, s{sT0} offen offset:{i * 1024} sc1')
    a('s_waitcnt vmcnt(0)')
    check(pA, g, 16)
    a(f'''
    s_cbranch_vccz L_qpoll_done
    s_sub_u32 s{sSPIN}, s{sSPIN}, 1
    s_cbranch_scc0 L_qpoll
    L_qpoll_done:
    ''')
    stamp('qgot')
    for e in range(4): a(f'v_add_f32 v{g+e}, v{g+e}, v{g+4+e}\nv_add_f32 v{g+8+e}, v{g+8+e}, v{g+12+e}')
    for e in range(4): a(f'v_add_f32 v{g+e}, v{g+e}, v{g+8+e}')
    a(f'''
    v_and_b32 v{vT[0]}, 31, v{vLANE}
    v_lshrrev_b32 v{vT[1]}, 5, v{vLANE}
    v_permlane32_swap_b32 v{g}, v{g+2}
    v_permlane32_swap_b32 v{g+1}, v{g+3}
    v_lshl_add_u32 v{vT[0]}, v{vT[0]}, 1, v{vT[1]}
    v_add_f32 v{g}, v{g}, v{g+2}
    v_add_f32 v{g+1}, v{g+1}, v{g+3}
    v_lshlrev_b32 v{vT[0]}, 2, v{vT[0]}
    v_cvt_pk_bf16_f32 v{g}, v{g}, v{g+1}
    ds_write_b32 v{vT[0]}, v{g} offset:{L_Q}
    s_waitcnt lgkmcnt(0)
    s_barrier
    ''')
    for x in range(n0, S): issue_static('K', x, x, 0, track=False)
    a('s_branch L_qread\nL_qdone:\ns_barrier\nL_qread:')
    a(f'''
    v_lshlrev_b32 v{vT[0]}, 4, v{vC}
    ds_read_b128 v[{vQ}:{vQ+3}], v{vT[0]} offset:{L_Q}
    s_lshl_b32 s{sT0}, s{sW}, 9
    v_add_u32 v{vDA}, s{sT0}, v{vDA}
    s_waitcnt lgkmcnt(0)
    ''')
    stamp('q')

    def reduce_tile(s, n, valid):
        A = [vACC + i if i < n else None for i in range(16)]
        B = []
        for jj in range(8):
            x, y = A[jj], A[jj + 8]
            if x is None: B.append(None); continue
            if y is None: a(f'v_add_f32_dpp v{x}, v{x}, v{x} row_ror:8 {DPPF}')
            else: a(f'v_add_f32_dpp v{x}, v{x}, v{x} row_ror:8 row_mask:0xf bank_mask:0x3')
            B.append(x)
        for jj in range(8):
            x, y = A[jj], A[jj + 8]
            if x is not None and y is not None:
                a(f'v_add_f32_dpp v{x}, v{y}, v{y} row_ror:8 row_mask:0xf bank_mask:0xc')
        C = []
        for jj in range(4):
            x = B[jj]
            d = vACC + 8 + jj
            a(f'v_add_f32_dpp v{d}, v{x}, v{x} row_shl:4 row_mask:0xf bank_mask:0x5')
            C.append(d)
        for jj in range(4):
            x, y = B[jj], B[jj + 4]
            z = y if y is not None else x
            a(f'v_add_f32_dpp v{C[jj]}, v{z}, v{z} row_shr:4 row_mask:0xf bank_mask:0xa')
        for jj in range(4): a(f'v_add_f32_dpp v{C[jj]}, v{C[jj]}, v{C[jj]} quad_perm:[2,3,0,1] {DPPF}')
        a(f'v_cndmask_b32 v{C[0]}, v{C[0]}, v{C[2]}, {sM1}\nv_cndmask_b32 v{C[1]}, v{C[1]}, v{C[3]}, {sM1}')
        for jj in range(2): a(f'v_add_f32_dpp v{C[jj]}, v{C[jj]}, v{C[jj]} quad_perm:[1,0,3,2] {DPPF}')
        a(f'v_cndmask_b32 v{s}, v{C[0]}, v{C[1]}, {sM0}')
        rbf(s, s)
        a(f'v_mul_f32 v{s}, {SCALE:#x}, v{s}')
        rbf(s, s)
        if valid:
            a(f'v_mov_b32 v{C[0]}, {NEGINF:#x}\nv_cndmask_b32 v{s}, v{C[0]}, v{s}, {valid}')
    def dots(r0, r1, a0):
        for jj in range(4):
            a(f'v_dot2_f32_bf16 v{a0}, v{r0 + jj}, v{vQ + jj}, {"0" if jj == 0 else "v%d" % a0}')
            a(f'v_dot2_f32_bf16 v{a0+1}, v{r1 + jj}, v{vQ + jj}, {"0" if jj == 0 else "v%d" % (a0+1)}')
    def claim():
        a(f'v_mov_b32 v{vTK}, 1\ns_mov_b64 exec, 1')
        vm('A', f'buffer_atomic_add v{vTK}, v{vZ}, {WS_}, s{sAOFF} offen sc0 sc1')
        a('s_mov_b64 exec, -1')
    def ticket():
        a(f'''
        v_readfirstlane_b32 s{sT0}, v{vTK}
        s_cmp_eq_u32 s{sAOFF}, s{sCTR}
        s_cselect_b32 s{sT0}, s{sT0}, {NCH}
        s_cmp_lt_u32 s{sT0}, s{sLIM}
        s_cselect_b32 s{sAOFF}, s{sCTR}, {OOB:#x}
        s_lshl_b32 s{sNXT}, s{sT0}, 1
        s_add_u32 s{sNXT}, s{sNXT}, s{sROT}
        s_add_u32 s{sNXT}, s{sNXT}, {OP}
        s_lshl_b32 s{sNXT}, s{sNXT}, 12
        s_and_b32 s{sNXT}, s{sNXT}, 0x3fffff
        s_cmp_lt_u32 s{sT0}, {NCH}
        s_cselect_b32 s{sNXT}, s{sNXT}, {OOB:#x}
        ''')
    def write_ml():
        a(f'''
        s_lshl_b32 s{sT0}, s{sW}, 2
        v_mov_b32 v{vT[3]}, s{sT0}
        ds_write_b32 v{vT[3]}, v{vM} offset:{L_M}
        ds_write_b32 v{vT[3]}, v{vL} offset:{L_L}
        ''')

    def stream(NE, NO, dyn, tg):
        NL = NE * U
        NT = (NL + 15) // 16
        N = 2 * NL
        assert NE - NO <= 2
        for e in range(NE - NO):
            a(f'''
            s_add_u32 s{sEX0 + e}, s{sIDX}, {NO * 32 + e * 16}
            s_lshl_b32 s{sEX0 + e}, s{sEX0 + e}, 12
            s_and_b32 s{sEX0 + e}, s{sEX0 + e}, 0x3fffff
            s_cmp_eq_u32 s{sPAR}, 0
            s_cselect_b32 s{sEX0 + e}, s{sEX0 + e}, {OOB:#x}
            ''')
        sVAL = {}
        free = [sVa, sVb]
        for t in range(NT):
            me = sum(1 << c for c in range(16) if 16 * t + c < NL)
            mo = sum(1 << c for c in range(16) if 16 * t + c < NL and not (32 <= 16 * t + c < 32 + 4 * (NE - NO)))
            if me == 0xffff and mo == 0xffff: continue
            sp = free.pop(0); lo = int(sp[2:].split(':')[0])
            sVAL[t] = sp
            a(f's_mov_b32 s{lo}, {me * 0x10001:#x}\ns_mov_b32 s{lo+1}, {mo * 0x10001:#x}\ns_cmp_eq_u32 s{sPAR}, 0\ns_cselect_b32 s{lo}, s{lo}, s{lo+1}\ns_mov_b32 s{lo+1}, s{lo}')
        q.clear()
        for x in range(S): q.append(('r', x))
        dK = [ring + ((N + i) % S) * 4 for i in range(8)]
        dV = [ring + ((N + 8 + i) % S) * 4 for i in range(8)]
        def dload(m, i):
            r = (dK if m == 'K' else dV)[i]
            vm(('d' + m, i), f'buffer_load_dwordx4 v[{r}:{r+3}], v{vKV if i < 4 else vKV2}, {K_ if m == "K" else V_}, s{sNXT} offen offset:{(i % 4) * 1024} {kvflags}')
        issued = [S]
        NTOT = N + (16 if dyn else 0)
        if dyn: a(f's_mov_b32 s{sAOFF}, s{sCTR}')
        def refill(upto):
            while issued[0] < min(NTOT, upto):
                x = issued[0]
                if x < N:
                    issue_static('K' if x < NL else 'V', x % NL, x, NE - NO)
                    if dyn and x == N - LA - 4: claim()
                else:
                    if x == N:
                        wait('A')
                        ticket()
                        a(f's_cbranch_scc1 L_t0ok')
                        lds_add(L_CNT)
                        a('L_t0ok:')
                    i = x - N
                    dload('K' if i < 8 else 'V', i % 8)
                    if i == 7: claim()
                issued[0] += 1
        for x in range(0, NL, 2):
            wait(('r', x + 1))
            dots(ring + (x % S) * 4, ring + ((x + 1) % S) * 4, vACC + x % 16)
            la = S if (not dyn or x + 2 + S <= NL) else max(LA, NL - (x + 2))
            refill(x + 2 + la)
            if (x + 2) % 16 == 0 or x + 2 == NL:
                t = x // 16
                reduce_tile(vSC[t], x + 2 - 16 * t, sVAL.get(t))
        a(f'v_max_f32 v{vM}, v{vSC[0]}, v{vSC[1]}')
        for t in range(2, NT): a(f'v_max_f32 v{vM}, v{vM}, v{vSC[t]}')
        allreduce(vM, 'v_max_f32', vT[1])
        for t in range(NT): a(f'v_sub_f32 v{vSC[t]}, v{vSC[t]}, v{vM}')
        for t in range(NT): a(f'v_mul_f32 v{vSC[t]}, s{sC1}, v{vSC[t]}')
        for t in range(NT): a(f'v_exp_f32 v{vSC[t]}, v{vSC[t]}')
        for t in range(NT): a(f'v_cvt_pk_bf16_f32 v{vSC[t]}, v{vSC[t]}, v{vSC[t]}')
        a(f'v_lshlrev_b32 v{vL}, 16, v{vSC[0]}')
        for t in range(1, NT): a(f'v_lshlrev_b32 v{vT[3]}, 16, v{vSC[t]}\nv_add_f32 v{vL}, v{vL}, v{vT[3]}')
        allreduce(vL, 'v_add_f32', vT[1])
        write_ml()
        stamp('k')
        ands(vSC[0], 'row_newbcast:0', 0)
        for n in range(NL):
            x = NL + n
            if n + 1 < NL: ands(vSC[(n+1) // 16], f'row_newbcast:{(n+1) % 16}', n + 1)
            wait(('r', x))
            mfma(ring + (x % S) * 4, n, first=(n == 0))
            if n % 2 == 1: refill(x + 1 + (LA if dyn else S))
        if not dyn: return
        assert issued[0] == NTOT
        stamp('s')
        a(f's_cmp_eq_u32 s{sNXT}, {OOB:#x}\ns_cbranch_scc0 L_dyn\ns_waitcnt vmcnt(0)\ns_branch L_dyn_done\nL_dyn:')
        def body(more):
            q.clear()
            for i in range(8): q.append(('dV', i))
            old = list(q)
            for i in range(0, 8, 2):
                dots(dK[i], dK[i+1], vACC + i)
                if more: dload('K', i); dload('K', i + 1)
            if more: claim()
            s = vSC[0]
            reduce_tile(s, 8, sLO8)
            mn = vT[0]
            a(f'v_max_f32 v{mn}, v{s}, v{vM}')
            allreduce(mn, 'v_max_f32', vT[1])
            a(f'''
            v_sub_f32 v{s}, v{s}, v{mn}
            v_sub_f32 v{vT[2]}, v{vM}, v{mn}
            v_mul_f32 v{s}, s{sC1}, v{s}
            v_mul_f32 v{vT[2]}, s{sC1}, v{vT[2]}
            v_exp_f32 v{s}, v{s}
            v_exp_f32 v{vT[2]}, v{vT[2]}
            v_mov_b32 v{vM}, v{mn}
            v_cvt_pk_bf16_f32 v{s}, v{s}, v{s}
            ''')
            for e in range(4): a(f'v_mul_f32 v{vD+e}, v{vD+e}, v{vT[2]}')
            a(f'v_lshlrev_b32 v{vT[3]}, 16, v{s}')
            allreduce(vT[3], 'v_add_f32', vT[1])
            a(f'v_fma_f32 v{vL}, v{vL}, v{vT[2]}, v{vT[3]}')
            if not more: write_ml()
            ands(s, 'row_newbcast:0', 0)
            for i in range(8):
                if i + 1 < 8: ands(s, f'row_newbcast:{i+1}', i + 1)
                n = len(q) - 1 - i
                a(f's_waitcnt vmcnt({n})')
                mfma(dV[i], i)
                if more and i % 2 == 1: dload('V', i - 1); dload('V', i)
        a('s_waitcnt vmcnt(8)')
        ticket()
        a('s_cbranch_scc0 L_dyn_last')
        body(True)
        a('s_branch L_dyn\nL_dyn_last:')
        lds_add(L_CNT)
        body(False)
        a('L_dyn_done:')
    a(f's_cmp_gt_u32 s{sW}, 3\ns_cbranch_scc1 L_young')
    stream(NEo, NOo, False, 'o')
    a('s_branch L_sdone\nL_young:')
    if NCH > 0: stream(NEy, NOy, True, 'y')
    else:
        stream(NEy, NOy, False, 'y'); lds_add(L_CNT)
    a('L_sdone:')
    a(f'''
    v_lshrrev_b32 v{vT[0]}, 5, v{vLANE}          ; half
    v_and_b32 v{vT[1]}, 31, v{vLANE}
    v_lshlrev_b32 v{vT[2]}, 4, v{vT[0]}
    v_lshlrev_b32 v{vT[3]}, 11, v{vT[0]}
    v_lshl_add_u32 v{vT[3]}, v{vT[1]}, 4, v{vT[3]}
    v_mov_b32 v{vT[6]}, 1
    s_mov_b32 exec_hi, 0
    ds_write_b128 v{vDA}, v[{vD}:{vD+3}] offset:{L_OP}
    s_mov_b64 exec, 1
    ds_add_rtn_u32 v{vT[6]}, v{vZ}, v{vT[6]} offset:{L_CNT + 4}
    s_mov_b64 exec, -1
    v_lshlrev_b32 v{vT[4]}, 4, v{vT[1]}
    v_lshl_add_u32 v{vT[4]}, v{vT[0]}, 3, v{vT[4]}
    s_lshl_b32 s{sT1}, s{sSLOT}, 10
    s_add_u32 s{sT1}, s{sT1}, {P1:#x}
    s_waitcnt lgkmcnt(0)
    v_readfirstlane_b32 s{sT0}, v{vT[6]}
    ''')
    stamp('v')
    t = vACC
    mm, ll = vA[0], vA[1]
    M, L_ = vD, vD + 1
    a(f'''
    s_cmp_lg_u32 s{sT0}, 7
    s_cbranch_scc1 L_pub_done
    s_setprio 3
    ds_read_b128 v[{mm}:{mm+3}], v{vT[2]} offset:{L_M}
    ''')
    for i in range(4): a(f'ds_read_b128 v[{g + 4*i}:{g + 4*i + 3}], v{vT[3]} offset:{L_OP + 512 * i}')
    a(f'''
    ds_read_b128 v[{ll}:{ll+3}], v{vT[2]} offset:{L_L}
    v_mov_b32 v{M+2}, v{vTAG}
    v_mov_b32 v{M+3}, v{vTAG}
    s_waitcnt lgkmcnt(5)
    v_max3_f32 v{M}, v{mm}, v{mm+1}, v{mm+2}
    v_max_f32 v{M}, v{M}, v{mm+3}
    v_mov_b32 v{vT[5]}, v{M}
    v_permlane32_swap_b32 v{M}, v{vT[5]}
    v_max_f32 v{M}, v{M}, v{vT[5]}
    ''')
    for i in range(4): a(f'v_sub_f32 v{mm+i}, v{mm+i}, v{M}')
    for i in range(4): a(f'v_mul_f32 v{mm+i}, s{sC1}, v{mm+i}')
    for i in range(4): a(f'v_exp_f32 v{mm+i}, v{mm+i}')
    a('s_waitcnt lgkmcnt(0)')
    for e in range(4): a(f'v_mul_f32 v{t+e}, v{mm}, v{g + e}')
    a(f'v_mul_f32 v{L_}, v{mm}, v{ll}')
    for i in range(1, 4):
        for e in range(4): a(f'v_fmac_f32 v{t+e}, v{mm+i}, v{g + 4*i + e}')
        a(f'v_fmac_f32 v{L_}, v{mm+i}, v{ll+i}')
    a(f'''
    v_mov_b32 v{vT[5]}, v{L_}
    v_permlane32_swap_b32 v{t}, v{t+2}
    v_permlane32_swap_b32 v{t+1}, v{t+3}
    v_permlane32_swap_b32 v{L_}, v{vT[5]}
    v_add_f32 v{t}, v{t}, v{t+2}
    v_add_f32 v{t+1}, v{t+1}, v{t+3}
    v_add_f32 v{L_}, v{L_}, v{vT[5]}
    ''')
    tagw([t, t + 1, M, L_])
    a(f'''
    buffer_store_dwordx2 v[{t}:{t+1}], v{vT[4]}, {WS_}, s{sT1} offen sc1
    s_mov_b64 exec, 1
    buffer_store_dwordx4 v[{M}:{M+3}], v{vT[4]}, {WS_}, s{sT1} offen offset:512 sc1
    v_mov_b32 v{vT[6]}, 1
    ds_add_u32 v{vZ}, v{vT[6]} offset:{L_CNT + 4}
    s_mov_b64 exec, -1
    s_setprio 0
    ''')
    if 'pub' in slist:
        a(f'''
        s_memrealtime s[96:97]
        s_add_u32 s24, s38, 0x10000000
        s_addc_u32 s25, s39, 0
        s_lshl_b32 s{sT2}, s2, 6
        s_add_u32 s{sT2}, s{sT2}, {4 * 15}
        v_mov_b32 v{vT[5]}, s{sT2}
        s_waitcnt lgkmcnt(0)
        v_mov_b32 v{vT[6]}, s96
        s_mov_b64 exec, 1
        global_store_dword v{vT[5]}, v{vT[6]}, s[24:25]
        s_mov_b64 exec, -1
        ''')
    a('L_pub_done:')
    if notail: a('s_branch L_fin')
    a(f's_cmp_eq_u32 s{sROLE}, 0\ns_cbranch_scc1 L_fin')
    vDA2 = vDA; vRA = vM
    wt = ring
    a(f'''
    v_bfe_u32 v{vT[0]}, v{vLANE}, 3, 1               ; rr
    v_and_b32 v{vT[1]}, 7, v{vLANE}                  ; cc
    v_and_b32 v{vT[2]}, 1, v{vG}                     ; b4
    v_lshrrev_b32 v{vT[3]}, 1, v{vG}                 ; b5
    s_lshl_b32 s{sT3}, s{sW}, 9
    v_lshlrev_b32 v{vDA2}, 8, v{vT[0]}
    v_lshl_add_u32 v{vDA2}, v{vT[1]}, 5, v{vDA2}
    v_lshl_add_u32 v{vDA2}, v{vT[2]}, 4, v{vDA2}
    v_add_u32 v{vDA2}, s{sT3}, v{vDA2}
    v_lshlrev_b32 v{vRA}, 10, v{vG}
    v_lshl_add_u32 v{vRA}, v{vC}, 4, v{vRA}
    s_cmp_eq_u32 s{sROLE}, 2
    s_cbranch_scc1 L_g
    ''')
    nprov = [0]
    def provision(n, loads):
        L = f'L_prov{nprov[0]}'; nprov[0] += 1
        a(f'''
        s_and_b32 s{sT3}, s{sW}, 3
        s_mul_i32 s{sT3}, s{sT3}, {n * 1024}
        v_add_u32 v{vL}, s{sT3}, v{vKV}
        s_cmp_gt_u32 s{sW}, 3
        s_cbranch_scc1 {L}_y
        ''')
        loads()
        a('s_waitcnt vmcnt(0)')
        for i in range(n): a(f'ds_write_b128 v{vL}, v[{wt + 4*(n+i)}:{wt + 4*(n+i) + 3}] offset:{L_WT + 1024 * i}')
        lds_add(L_CNT + 8)
        a(f's_branch {L}_d\n{L}_y:')
        lds_gate(L_CNT + 8, 4)
        for i in range(n): a(f'ds_read_b128 v[{wt + 4*i}:{wt + 4*i + 3}], v{vL} offset:{L_WT + 1024 * i}')
        a(f'{L}_d:\ns_waitcnt lgkmcnt(0)')
    def w_loads():
        a(f'''
        v_lshlrev_b32 v{vT[4]}, 5, v{vT[3]}
        v_lshl_add_u32 v{vT[4]}, v{vT[0]}, 4, v{vT[4]}
        v_lshl_add_u32 v{vT[4]}, v{vT[2]}, 1, v{vT[4]}
        v_mul_u32_u24 v{vT[4]}, 1280, v{vT[4]}
        v_lshl_add_u32 v{vT[4]}, v{vT[1]}, 4, v{vT[4]}
        s_lshl_b32 s{sT0}, s{sGAM}, 9
        s_lshl_b32 s{sT1}, s{sW}, 6
        s_add_u32 s{sT0}, s{sT0}, s{sT1}
        s_mul_i32 s{sT0}, s{sT0}, 1280
        s_lshl_b32 s{sT1}, s{sCS}, 7
        s_add_u32 s{sT0}, s{sT0}, s{sT1}
        ''')
        if wgate: lds_gate(L_CNT, wgate)
        stamp('gate')
        if now: return
        for half in (1, 0):
            for n in range(4):
                a(f's_add_u32 s{sT1}, s{sT0}, {(half * 256 + 4 * n) * 1280}')
                for k in range(2):
                    r = wt + 4 * (8 * half + 4 * k + n)
                    a(f'buffer_load_dwordx4 v[{r}:{r+3}], v{vT[4]}, {WO_}, s{sT1} offen offset:{k * 1280} {wflags}')
    def fetch(n):
        a(f's_mul_i32 s{sT3}, s{sW}, {n * 1024}\nv_add_u32 v{vL}, s{sT3}, v{vKV}')
        lds_gate(L_CNT, 4)
        for i in range(n): a(f'ds_read_b128 v[{wt + 4*i}:{wt + 4*i + 3}], v{vL} offset:{L_WT + 1024 * i}')
        a('s_waitcnt lgkmcnt(0)')
    if wstart: fetch(8)
    else: provision(8, w_loads)
    stamp('gw')
    a(f'''
    v_bfe_u32 v{vT[4]}, v{vLANE}, 2, 1
    v_lshl_add_u32 v{vT[4]}, v{vG}, 1, v{vT[4]}      ; s
    v_lshlrev_b32 v{vT[4]}, 10, v{vT[4]}
    v_and_b32 v{vT[5]}, 3, v{vLANE}
    v_lshl_add_u32 v{vT[5]}, v{vT[0]}, 2, v{vT[5]}   ; chunk
    v_lshl_add_u32 v{vT[5]}, v{vT[5]}, 4, v{vT[4]}
    s_lshl_b32 s{sT0}, s{sGAM}, 2
    s_lshr_b32 s{sT1}, s{sW}, 1
    s_add_u32 s{sT0}, s{sT0}, s{sT1}
    s_lshl_b32 s{sT0}, s{sT0}, 13
    s_add_u32 s{sT0}, s{sT0}, {P1:#x}
    s_and_b32 s{sT1}, s{sW}, 1
    s_lshl_b32 s{sT1}, s{sT1}, 8
    s_add_u32 s{sT1}, s{sT1}, s{sT0}
    s_mul_i32 s{sT2}, s{sGAM}, 2560
    s_lshl_b32 s{sT3}, s{sCS}, 8
    s_add_u32 s{sT2}, s{sT2}, s{sT3}
    s_add_u32 s{sT2}, s{sT2}, {P2:#x}
    v_lshl_add_u32 v{vT[0]}, v{vC}, 2, v{vG}
    v_lshlrev_b32 v{vT[0]}, 2, v{vT[0]}
    ''')
    lds_gate(L_CNT + 4, 9)
    def ld1(b):
        a(f'buffer_load_dwordx4 v[{b+8}:{b+11}], v{vT[4]}, {WS_}, s{sT0} offen offset:512 sc1')
        a(f'buffer_load_dwordx4 v[{b}:{b+3}], v{vT[5]}, {WS_}, s{sT1} offen sc1')
        a(f'buffer_load_dwordx4 v[{b+4}:{b+7}], v{vT[5]}, {WS_}, s{sT1} offen offset:128 sc1')
    poll(ld1, 12, g, 3)
    stamp('h1')
    mS, lS = g + 8, g + 9
    M = vT[2]; tt = vT[3]
    a(f'''
    v_max_f32_dpp v{M}, v{mS}, v{mS} row_half_mirror {DPPF}
    v_mov_b32 v{tt}, v{M}
    v_permlane16_swap_b32 v{M}, v{tt}
    v_max_f32 v{M}, v{M}, v{tt}
    v_mov_b32 v{tt}, v{M}
    v_permlane32_swap_b32 v{M}, v{tt}
    v_max_f32 v{M}, v{M}, v{tt}
    v_sub_f32 v{mS}, v{mS}, v{M}
    v_mul_f32 v{mS}, s{sC1}, v{mS}
    v_exp_f32 v{mS}, v{mS}
    ''')
    a(f'v_mul_f32 v{lS}, v{lS}, v{mS}')
    for i in range(8): a(f'v_mul_f32 v{g+i}, v{g+i}, v{mS}')
    a(f'v_add_f32_dpp v{lS}, v{lS}, v{lS} row_half_mirror {DPPF}')
    for e in range(4): a(f'v_permlane32_swap_b32 v{g+e}, v{g+4+e}')
    a(f'v_mov_b32 v{tt}, v{lS}')
    for e in range(4): a(f'v_add_f32 v{g+e}, v{g+e}, v{g+4+e}')
    a(f'''
    v_permlane16_swap_b32 v{lS}, v{tt}
    v_permlane16_swap_b32 v{g}, v{g+2}
    v_permlane16_swap_b32 v{g+1}, v{g+3}
    v_add_f32 v{lS}, v{lS}, v{tt}
    v_add_f32 v{g}, v{g}, v{g+2}
    v_add_f32 v{g+1}, v{g+1}, v{g+3}
    v_mov_b32 v{tt}, v{lS}
    v_add_f32_dpp v{g+2}, v{g}, v{g} row_shl:4 row_mask:0xf bank_mask:0x5
    v_permlane32_swap_b32 v{lS}, v{tt}
    v_add_f32_dpp v{g+3}, v{g+1}, v{g+1} row_shl:4 row_mask:0xf bank_mask:0x5
    v_add_f32 v{lS}, v{lS}, v{tt}
    v_add_f32_dpp v{g+2}, v{g}, v{g} row_shr:4 row_mask:0xf bank_mask:0xa
    v_rcp_f32 v{tt}, v{lS}
    v_add_f32_dpp v{g+3}, v{g+1}, v{g+1} row_shr:4 row_mask:0xf bank_mask:0xa
    v_mul_f32 v{g+2}, v{g+2}, v{tt}
    v_mul_f32 v{g+3}, v{g+3}, v{tt}
    v_cvt_pk_bf16_f32 v{g+2}, v{g+2}, v{g+2}
    v_cvt_pk_bf16_f32 v{g+3}, v{g+3}, v{g+3}
    ''')
    onehot_chain([(g + 2 + i // 4, f'quad_perm:[{i%4},{i%4},{i%4},{i%4}]', wt + 4 * i) for i in range(8)])
    write_d_rr(L_ZP)
    a(f's_cmp_lg_u32 s{sW}, 0\ns_cbranch_scc1 L_fin')
    lds_reduce16(L_ZP, g)
    lds_reduce16b(g)
    tagw([g])
    a(f'buffer_store_dword v{g}, v{vT[0]}, {WS_}, s{sT2} offen sc1')
    stamp('w')
    a('s_branch L_fin')
    wD = ring + 40
    vHA = vQ; vXA = vQ + 1; vPA = vQ + 2; vWA = vQ + 3
    a(f'''
    L_g:
    v_lshl_add_u32 v{vT[4]}, v{vG}, 1, v{vT[0]}
    v_mul_u32_u24 v{vT[4]}, 3456, v{vT[4]}
    v_and_b32 v{vT[5]}, 3, v{vLANE}
    v_lshl_add_u32 v{vT[4]}, v{vT[5]}, 4, v{vT[4]}
    s_mul_i32 s{sT0}, s{sW}, {80 * 3456}
    s_lshl_b32 s{sT1}, s{sFS}, 6
    s_add_u32 s{sT0}, s{sT0}, s{sT1}
    v_lshl_add_u32 v{vHA}, v{vG}, 1, v{vT[0]}
    v_lshl_add_u32 v{vHA}, v{vT[5]}, 3, v{vHA}
    s_mul_i32 s{sT3}, s{sW}, 80
    v_add_u32 v{vHA}, s{sT3}, v{vHA}
    v_lshlrev_b32 v{vHA}, 2, v{vHA}
    v_mul_u32_u24 v{vWA}, 1280, v{vG}
    v_lshl_add_u32 v{vWA}, v{vC}, 4, v{vWA}
    v_lshlrev_b32 v{vXA}, 5, v{vG}
    v_lshl_add_u32 v{vXA}, v{vT[1]}, 2, v{vXA}
    v_lshl_add_u32 v{vXA}, v{vT[0]}, 1, v{vXA}
    v_lshlrev_b32 v{vXA}, 1, v{vXA}
    v_lshrrev_b32 v{vPA}, 3, v{vLANE}
    v_mul_u32_u24 v{vPA}, 2560, v{vPA}
    v_lshl_add_u32 v{vPA}, v{vT[1]}, 4, v{vPA}
    ''')
    def g_loads():
        if now: return
        for half in (1, 0):
            for i in range(10):
                r = wt + 4 * (10 * half + i)
                a(f's_add_u32 s{sT1}, s{sT0}, {(half * 320 + 8 * i) * 3456}')
                a(f's_mov_b32 exec_lo, 0x0f0f0f0f\ns_mov_b32 exec_hi, 0x0f0f0f0f')
                a(f'buffer_load_dwordx4 v[{r}:{r+3}], v{vT[4]}, {WG_}, s{sT1} offen {gflags}')
                a(f's_mov_b32 exec_lo, 0xf0f0f0f0\ns_mov_b32 exec_hi, 0xf0f0f0f0')
                a(f'buffer_load_dwordx4 v[{r}:{r+3}], v{vT[4]}, {WU_}, s{sT1} offen {gflags}')
        a('s_mov_b64 exec, -1')
    if gstart: fetch(10)
    else: provision(10, g_loads)
    if dgate == 9: lds_gate(L_CNT + 4, 9)
    elif dgate: lds_gate(L_CNT, dgate)
    a(f'''
    s_mov_b64 exec, -1
    s_cmp_gt_u32 s{sW}, 4
    s_cbranch_scc1 L_g_nogather
    s_mul_i32 s{sT0}, s{sFS}, {32 * 1280}
    s_lshl_b32 s{sT2}, s{sW}, 8
    s_add_u32 s{sT0}, s{sT0}, s{sT2}
    buffer_load_dword v{vXH}, v{vXA}, {X_}, s{sT2} offen
    ''')
    if not now:
        for i in range(8):
            if i: a(f's_add_u32 s{sT0}, s{sT0}, {4 * 1280}')
            a(f'buffer_load_dwordx4 v[{wD+4*i}:{wD+4*i+3}], v{vWA}, {WD_}, s{sT0} offen {dflags}')
    a(f'''
    s_lshl_b32 s{sT1}, s{sW}, 9
    s_add_u32 s{sT0}, s{sT1}, {P2:#x}
    v_lshlrev_b32 v{vXA}, 1, v{vXA}
    v_add_u32 v{vXA}, s{sT1}, v{vXA}
    s_lshl_b32 s{sT3}, s{sW}, 3
    v_mov_b32 v{vT[0]}, s{sT3}
    s_waitcnt vmcnt(0)
    v_lshlrev_b32 v{vT[2]}, 16, v{vXH}
    v_and_b32 v{vT[3]}, s{sC2}, v{vXH}
    ''')
    if dgate != 9: lds_gate(L_CNT + 4, 9)
    stamp('gw')
    def ld2(b):
        for i in range(4): a(f'buffer_load_dwordx4 v[{b+4*i}:{b+4*i+3}], v{vPA}, {WS_}, s{sT0} offen offset:{128*i} sc1')
    poll(ld2, 16, g, 4)
    stamp('h2')
    for i in range(8): a(f'v_permlane32_swap_b32 v{g+i}, v{g+8+i}')
    for i in range(8): a(f'v_add_f32 v{g+i}, v{g+i}, v{g+8+i}')
    for i in range(4): a(f'v_permlane16_swap_b32 v{g+i}, v{g+4+i}')
    for i in range(4): a(f'v_add_f32 v{g+i}, v{g+i}, v{g+4+i}')
    for i in range(2): a(f'v_add_f32_dpp v{g+i}, v{g+i}, v{g+i} row_ror:8 row_mask:0xf bank_mask:0x3')
    for i in range(2): a(f'v_add_f32_dpp v{g+i}, v{g+2+i}, v{g+2+i} row_ror:8 row_mask:0xf bank_mask:0xc')
    h0, h1 = g, g + 1
    a(f'''
    v_cvt_pk_bf16_f32 v{g+2}, v{h0}, v{h1}
    v_lshlrev_b32 v{h0}, 16, v{g+2}
    v_and_b32 v{h1}, s{sC2}, v{g+2}
    v_add_f32 v{h0}, v{h0}, v{vT[2]}
    v_add_f32 v{h1}, v{h1}, v{vT[3]}
    v_cvt_pk_bf16_f32 v{g+2}, v{h0}, v{h1}
    v_lshlrev_b32 v{h0}, 16, v{g+2}
    v_and_b32 v{h1}, s{sC2}, v{g+2}
    v_add_f32 v{g+4}, v{h0}, v{h1}
    v_mul_f32 v{g+5}, v{h0}, v{h0}
    ds_write_b64 v{vXA}, v[{h0}:{h1}] offset:{L_HH}
    v_fmac_f32 v{g+5}, v{h1}, v{h1}
    ''')
    allreduce2(g + 4, g + 5, 'v_add_f32', g + 6, g + 7)
    a(f'''
    ds_write_b64 v{vT[0]}, v[{g+4}:{g+5}] offset:{L_ST}
    s_branch L_g_bar
    L_g_nogather:
    s_waitcnt vmcnt(0)
    L_g_bar:
    s_waitcnt lgkmcnt(0)
    s_barrier
    ds_read_b128 v[{g+4}:{g+7}], v{vZ} offset:{L_ST}
    ds_read_b128 v[{g+8}:{g+11}], v{vZ} offset:{L_ST + 16}
    ds_read_b64 v[{g+12}:{g+13}], v{vZ} offset:{L_ST + 32}
    ds_read_b32 v{g}, v{vHA} offset:{L_HH}
    ds_read_b32 v{g+1}, v{vHA} offset:{L_HH + 128}
    ds_read_b32 v{g+2}, v{vHA} offset:{L_HH + 256}
    s_waitcnt lgkmcnt(3)
    v_add_f32 v{g+4}, v{g+4}, v{g+6}
    v_add_f32 v{g+5}, v{g+5}, v{g+7}
    v_add_f32 v{g+8}, v{g+8}, v{g+10}
    v_add_f32 v{g+9}, v{g+9}, v{g+11}
    v_add_f32 v{g+4}, v{g+4}, v{g+12}
    v_add_f32 v{g+5}, v{g+5}, v{g+13}
    v_add_f32 v{g+4}, v{g+4}, v{g+8}
    v_add_f32 v{g+5}, v{g+5}, v{g+9}
    v_mul_f32 v{g+4}, {INV640:#x}, v{g+4}
    v_mul_f32 v{g+5}, {INV640:#x}, v{g+5}
    v_fma_f32 v{g+5}, -v{g+4}, v{g+4}, v{g+5}
    v_max_f32 v{g+5}, 0, v{g+5}
    ''')
    ln_consts(g + 4, g + 5, g + 6, g + 7, g + 8)
    a('s_waitcnt lgkmcnt(0)')
    ln_apply([g, g + 1, g + 2], g + 6, g + 7, g + 8, [g + 9, g + 10, g + 11])
    stamp('ln2')
    onehot_chain([(g + i // 4, f'quad_perm:[{i%4},{i%4},{i%4},{i%4}]', wt + 4 * i) for i in range(10)])
    write_d_rr(L_GP)
    stamp('g1')
    a(f's_cmp_gt_u32 s{sW}, 4\ns_cbranch_scc1 L_f')
    r = g
    lds_reduce16(L_GP, r)
    a(f'''
    s_mul_i32 s{sT0}, s{sFS}, 2560
    s_lshl_b32 s{sT1}, s{sW}, 9
    s_add_u32 s{sT0}, s{sT0}, s{sT1}
    s_add_u32 s{sT0}, s{sT0}, {P3:#x}
    v_lshlrev_b32 v{vT[0]}, 5, v{vC}
    v_lshl_add_u32 v{vT[0]}, v{vG}, 4, v{vT[0]}
    ''')
    lds_reduce16b(r)
    rbf(r, r)
    a(f'''
    v_mul_f32 v{r+1}, s{sC1}, v{r}
    v_exp_f32 v{r+1}, -v{r+1}
    v_add_f32 v{r+1}, 1.0, v{r+1}
    v_rcp_f32 v{r+2}, v{r+1}
    v_mul_f32 v{r+3}, v{r}, v{r+2}
    ''')
    rbf(r + 3, r + 3)
    a(f'''
    v_mul_f32_dpp v{r+3}, v{r}, v{r+3} row_ror:8 {DPPF}
    v_cvt_pk_bf16_f32 v{r+3}, v{r+3}, v{r+3}
    ''')
    onehot_chain([(r + 3, f'row_newbcast:{i}', wD + 4 * i) for i in range(8)])
    tagw([vD + i for i in range(4)])
    a(f'''
    s_mov_b32 exec_hi, 0
    buffer_store_dwordx4 v[{vD}:{vD+3}], v{vT[0]}, {WS_}, s{sT0} offen sc1
    s_mov_b64 exec, -1
    ''')
    stamp('g')
    a('s_branch L_fin')
    a(f'''
    L_f:
    s_cmp_lg_u32 s{sW}, 7
    s_cbranch_scc1 L_fin
    s_cmp_ge_u32 s{sFS}, 40
    s_cbranch_scc1 L_fin
    v_lshrrev_b32 v{vT[0]}, 2, v{vLANE}
    v_and_b32 v{vT[1]}, 3, v{vLANE}
    v_mul_u32_u24 v{vT[0]}, 2560, v{vT[0]}
    v_lshl_add_u32 v{vT[0]}, v{vT[1]}, 4, v{vT[0]}
    s_lshl_b32 s{sT3}, s{sFS}, 6
    s_add_u32 s{sT0}, s{sT3}, {P3:#x}
    s_add_u32 s{sT1}, s{sT0}, {16 * 2560}
    s_add_u32 s{sT2}, s{sT0}, {32 * 2560}
    s_add_u32 s{sOFF}, s{sT0}, {48 * 2560}
    v_lshl_add_u32 v{vT[1]}, v{vT[1]}, 2, v{vG}
    v_lshlrev_b32 v{vT[1]}, 2, v{vT[1]}
    v_add_u32 v{vT[1]}, s{sT3}, v{vT[1]}
    ds_read_b32 v{vT[2]}, v{vT[1]} offset:{L_HH}
    v_lshrrev_b32 v{vT[1]}, 1, v{vT[1]}
    ''')
    for b in (pA, pB):
        for e in range(4): a(f'v_mov_b32 v{b+12+e}, v{vTAG}')
    a(f'''
    s_cmp_eq_u32 s{sFS}, 0
    s_cselect_b32 s{sT3}, {EPOCH}, {OOB:#x}
    v_mov_b32 v{vT[4]}, s{sTAG}
    s_mov_b64 exec, 1
    buffer_store_dword v{vT[4]}, v{vZ}, {WS_}, s{sT3} offen sc1
    s_mov_b64 exec, -1
    ''')
    def ld3(b):
        for i in range(3): a(f'buffer_load_dwordx4 v[{b+4*i}:{b+4*i+3}], v{vT[0]}, {WS_}, s{(sT0, sT1, sT2)[i]} offen sc1')
        a(f's_mov_b64 exec, 0xffffff\nbuffer_load_dwordx4 v[{b+12}:{b+15}], v{vT[0]}, {WS_}, s{sOFF} offen sc1\ns_mov_b64 exec, -1')
    poll(ld3, 16, g, 4)
    stamp('h3')
    for e in range(4): a(f'v_add_f32 v{g+e}, v{g+e}, v{g+4+e}')
    for e in range(4): a(f'v_add_f32 v{g+8+e}, v{g+8+e}, v{g+12+e}')
    for e in range(4): a(f'v_add_f32 v{g+e}, v{g+e}, v{g+8+e}')
    a(f'''
    v_permlane32_swap_b32 v{g}, v{g+2}
    v_permlane32_swap_b32 v{g+1}, v{g+3}
    v_add_f32 v{g}, v{g}, v{g+2}
    v_add_f32 v{g+1}, v{g+1}, v{g+3}
    v_permlane16_swap_b32 v{g}, v{g+1}
    v_add_f32 v{g}, v{g}, v{g+1}
    v_add_f32_dpp v{g}, v{g}, v{g} row_ror:8 {DPPF}
    v_add_f32_dpp v{g}, v{g}, v{g} row_ror:4 {DPPF}
    ''')
    rbf(g, g)
    a(f'''
    s_waitcnt lgkmcnt(0)
    v_add_f32 v{g}, v{g}, v{vT[2]}
    v_cvt_pk_bf16_f32 v{g}, v{g}, v{g}
    s_mov_b32 exec_lo, 0x000f000f
    s_mov_b32 exec_hi, 0x000f000f
    buffer_store_short v{g}, v{vT[1]}, {OUT_}, 0 offen
    s_mov_b64 exec, -1
    L_fin:
    ''')
    if stamps:
        stamp('end')
        a(f'''
        s_cmp_lg_u32 s{sW}, {stampwave}
        s_cbranch_scc1 L_end
        s_add_u32 s24, s38, 0x10000000
        s_addc_u32 s25, s39, 0
        s_lshl_b32 s{sT0}, s2, 6
        v_lshlrev_b32 v{vT[0]}, 2, v{vLANE}
        v_add_u32 v{vT[0]}, s{sT0}, v{vT[0]}
        s_mov_b64 exec, 0x7fff
        global_store_dword v{vT[0]}, v{vSTAMP}, s[24:25]
        ''')
    a('L_end:\ns_endpgm')
    return build_file([f'; @launch grid=(256,1,1) block=(512,1,1) lds={lds}'], [(NAME + '_kernel', a.text(), V.high, 102)])

if __name__ == '__main__':
    import json
    out = sys.argv[1]
    kw = json.loads(sys.argv[2]) if len(sys.argv) > 2 else {}
    open(out, 'w').write(gen(**kw))
```

```python
import sys, struct
from asmlib import *

def f2u(x): return struct.unpack('<I', struct.pack('<f', x))[0]
LOG2E = f2u(1.4426950408889634)
SCALE = f2u(128 ** -0.5)
INV640 = f2u(1.0 / 640)
EPS = f2u(1e-5)
NEGINF = 0xff800000

EPOCH = 0x0
CTR = 0x1000
CTRS = 0x1100
QS = 0x40000
P1 = 0x80000
P2 = 0xC0000
P3 = 0xD0000
WS_END = P3 + 54 * 2560
OOB = 0x40000000
L_Q = 0; L_CNT = 256; L_M = 320; L_L = 352; L_ST = 384; L_OP = 4096; L_ZP = 8192; L_GP = 12288; L_HH = 16384; L_WT = 20480

DPPF = 'row_mask:0xf bank_mask:0xf'

def gen(NEo=17, NOo=15, NEy=11, NOy=9, HROT=74, S=32, LA=16, stamps=False, kvflags='nt', wqflags='nt', wflags='nt', lds=104448,
        spin=200000, stampwave=0, notail=False, now=False, n0=4, psleep=0, mapping='all', gstop=0, g1=6, pipe=False, gflags=None, wgate=4, wstop=0, dflags=None, dgate=9, gstart=True, wstart=True, vflags=None):
    a = Asm()
    V = Alloc(1, 256)
    U = 4
    if gflags is None: gflags = wflags
    if vflags is None: vflags = kvflags
    if dflags is None: dflags = wflags
    OY = 16 * (NEo + NOo)
    OP = OY + 16 * (NEy + NOy)
    NCH = (1024 - OP) // 2
    assert OP <= 1024 and HROT % 2 == 0
    NTMAX = (max(NEo, NEy) * U + 15) // 16
    sW, sH, sIDX, sPAR, sS = 3, 4, 5, 6, 7
    K_, V_, WQ_, WS_, X_, WO_, WG_, WU_, WD_, OUT_ = [f's[{b}:{b+3}]' for b in (8, 12, 40, 44, 48, 52, 56, 60, 64, 68)]
    sOFF, sOFF0, sEX0, sT0, sT1, sT2, sT3 = 76, 77, 78, 80, 81, 82, 83
    sSLOT, sROLE, sGAM, sCS, sFS, sSPIN, sTAG, sTAG8 = 84, 85, 87, 88, 89, 91, 92, 93
    sC1, sC2 = 94, 95
    sROT, sCTR, sNXT, sLIM, sAOFF, sMSK8 = 72, 73, 74, 75, 86, 90
    sM1, sM0 = 's[16:17]', 's[18:19]'
    sVa, sVb = 's[20:21]', 's[22:23]'
    sLO8 = 's[26:27]'
    slist = stamps if isinstance(stamps, list) else []
    def stamp(name):
        if name in slist:
            a(f's_memrealtime s[96:97]\ns_waitcnt lgkmcnt(0)\nv_writelane_b32 v{vSTAMP}, s96, {1 + slist.index(name)}')
    q = []
    def vm(tag, text):
        a(text); q.append(tag)
    def wait(tag):
        idx = max(i for i, t in enumerate(q) if t == tag)
        n = len(q) - 1 - idx
        assert n <= 63, n
        a(f's_waitcnt vmcnt({n})')

    vSTAMP = V.get() if stamps else None
    vLANE = V.get(); vG = V.get(); vC = V.get(); vKV = V.get(); vKV2 = V.get()
    vT = [V.get() for _ in range(8)]
    vDA = V.get(); vXH = V.get(); vTAG = V.get(); vTK = V.get(); vM = V.get(); vL = V.get(); vZ = V.get()
    vMASK = V.get(4, 4)
    vA = [V.get(4, 4), V.get(4, 4)]
    vD = V.get(4, 4)
    vQ = V.get(4, 4)
    vSC = [V.get() for _ in range(NTMAX)]
    vACC = V.get(16, 4)
    gat = V.get(16, 4)
    ring = V.get(4 * S, 4)
    wqs = ring + 4 * (S - 20)
    assert n0 <= S - 20 and S == 32
    pA, pB = ring + 96, ring + 112

    def allreduce(r, op, t):
        for k in (8, 4, 2, 1):
            a(f'{op}_dpp v{r}, v{r}, v{r} row_ror:{k} {DPPF}')
        for sw in ('v_permlane16_swap_b32', 'v_permlane32_swap_b32'):
            a(f'v_mov_b32 v{t}, v{r}\n{sw} v{r}, v{t}\n{op} v{r}, v{r}, v{t}')
    def allreduce2(r0, r1, op, t0, t1):
        for k in (8, 4, 2, 1):
            a(f'{op}_dpp v{r0}, v{r0}, v{r0} row_ror:{k} {DPPF}\n{op}_dpp v{r1}, v{r1}, v{r1} row_ror:{k} {DPPF}')
        for sw in ('v_permlane16_swap_b32', 'v_permlane32_swap_b32'):
            a(f'v_mov_b32 v{t0}, v{r0}\nv_mov_b32 v{t1}, v{r1}\n{sw} v{r0}, v{t0}\n{sw} v{r1}, v{t1}\n{op} v{r0}, v{r0}, v{t0}\n{op} v{r1}, v{r1}, v{t1}')
    def rbf(d, s):
        a(f'v_cvt_pk_bf16_f32 v{d}, v{s}, v{s}\nv_lshlrev_b32 v{d}, 16, v{d}')
    def ln_consts(vmean, vvar, vm_bf, vs_bf, vr):
        rbf(vs_bf, vvar)
        rbf(vm_bf, vmean)
        a(f'v_add_f32 v{vs_bf}, {EPS:#x}, v{vs_bf}')
        rbf(vs_bf, vs_bf)
        a(f'v_sqrt_f32 v{vs_bf}, v{vs_bf}')
        rbf(vs_bf, vs_bf)
        a(f'v_rcp_f32 v{vr}, v{vs_bf}')
    def ln_apply(xs, vm_bf, vs_bf, vr, ts):
        for x in xs: a(f'v_sub_f32 v{x}, v{x}, v{vm_bf}')
        for x in xs: a(f'v_cvt_pk_bf16_f32 v{x}, v{x}, v{x}')
        for x in xs: a(f'v_lshlrev_b32 v{x}, 16, v{x}')
        for x, t in zip(xs, ts): a(f'v_mul_f32 v{t}, v{x}, v{vr}')
        for x, t in zip(xs, ts): a(f'v_fma_f32 v{x}, -v{t}, v{vs_bf}, v{x}')
        for x, t in zip(xs, ts): a(f'v_fma_f32 v{x}, v{x}, v{vr}, v{t}')
        for x in xs: a(f'v_cvt_pk_bf16_f32 v{x}, v{x}, v{x}')
    def ands(pk, sel, k):
        A = vA[k & 1]
        for jj in range(4): a(f'v_and_b32_dpp v{A + jj}, v{pk}, v{vMASK + jj} {sel} {DPPF}')
    def mfma(data, k, first=False):
        A = vA[k & 1]
        c = '0' if first else f'v[{vD}:{vD+3}]'
        a(f'v_mfma_f32_16x16x32_bf16 v[{vD}:{vD+3}], v[{A}:{A+3}], v[{data}:{data+3}], {c}')
    def onehot_chain(items, pre=None):
        ands(items[0][0], items[0][1], 0)
        for k, (pk, sel, data) in enumerate(items):
            if k + 1 < len(items): ands(items[k+1][0], items[k+1][1], k + 1)
            if pre: pre(k)
            mfma(data, k, first=(k == 0))
    def tagw(regs, rnd=False):
        if rnd:
            for r in regs: a(f'v_add_u32 v{r}, 0x80, v{r}')
        for r in regs: a(f'v_and_or_b32 v{r}, v{r}, s{sMSK8}, v{vTAG}')
    def check(src, dst, n):
        t = vT[7]
        for i in range(n): a(f'v_xor_b32 v{dst+i}, s{sTAG8}, v{src+i}')
        rs = [dst + i for i in range(n)]
        a(f'v_or3_b32 v{t}, v{rs[0]}, v{rs[1]}, v{rs[2]}'); rs = rs[3:]
        while rs:
            if len(rs) >= 2: a(f'v_or3_b32 v{t}, v{t}, v{rs[0]}, v{rs[1]}'); rs = rs[2:]
            else: a(f'v_or_b32 v{t}, v{t}, v{rs[0]}'); rs = []
        a(f'v_and_b32 v{t}, 0xff, v{t}\nv_cmp_ne_u32 vcc, 0, v{t}')
    npoll = [0]
    def poll(loads, n, dst, nl):
        L = f'L_poll{npoll[0]}'; npoll[0] += 1
        a(f's_mov_b32 s{sSPIN}, {spin}')
        if pipe:
            loads(pA)
            a(f'{L}:')
            loads(pB)
            a(f's_waitcnt vmcnt({nl})')
            check(pA, dst, n)
            a(f's_cbranch_vccz {L}_done')
            loads(pA)
            a(f's_waitcnt vmcnt({nl})')
            check(pB, dst, n)
            a(f'''
            s_cbranch_vccz {L}_done
            s_sub_u32 s{sSPIN}, s{sSPIN}, 1
            s_cbranch_scc0 {L}
            {L}_done:
            ''')
        else:
            a(f'{L}:')
            loads(pA)
            a('s_waitcnt vmcnt(0)')
            check(pA, dst, n)
            a(f's_cbranch_vccz {L}_done')
            if psleep: a(f's_sleep {psleep}')
            a(f's_sub_u32 s{sSPIN}, s{sSPIN}, 1\ns_cbranch_scc0 {L}\n{L}_done:')
    def lds_reduce16(base, r):
        for i in range(4): a(f'ds_read_b128 v[{r + 4*i}:{r + 4*i + 3}], v{vRA} offset:{base + 256 * i}')
    def lds_reduce16b(r):
        a('s_waitcnt lgkmcnt(2)')
        for e in range(4): a(f'v_add_f32 v{r+e}, v{r+e}, v{r+4+e}')
        a('s_waitcnt lgkmcnt(0)')
        for e in range(4): a(f'v_add_f32 v{r+8+e}, v{r+8+e}, v{r+12+e}')
        for e in range(4): a(f'v_add_f32 v{r+e}, v{r+e}, v{r+8+e}')
        a(f'''
        v_permlane32_swap_b32 v{r}, v{r+2}
        v_permlane32_swap_b32 v{r+1}, v{r+3}
        v_add_f32 v{r}, v{r}, v{r+2}
        v_add_f32 v{r+1}, v{r+1}, v{r+3}
        v_permlane16_swap_b32 v{r}, v{r+1}
        v_add_f32 v{r}, v{r}, v{r+1}
        ''')
    def write_d_rr(base):
        a(f'''
        s_mov_b32 exec_lo, 0x00ff00ff
        s_mov_b32 exec_hi, 0xff00ff00
        ds_write_b128 v{vDA2}, v[{vD}:{vD+3}] offset:{base}
        s_mov_b64 exec, -1
        s_waitcnt lgkmcnt(0)
        s_barrier
        ''')
    def lds_add(off, rtn=None):
        a(f'v_mov_b32 v{vT[6]}, 1\ns_mov_b64 exec, 1')
        if rtn: a(f'ds_add_rtn_u32 v{vT[6]}, v{vZ}, v{vT[6]} offset:{off}')
        else: a(f'ds_add_u32 v{vZ}, v{vT[6]} offset:{off}')
        a('s_mov_b64 exec, -1')
    ngate = [0]
    def lds_gate(off, val):
        L = f'L_gate{ngate[0]}'; ngate[0] += 1
        a(f'''
        {L}:
        ds_read_b32 v{vT[6]}, v{vZ} offset:{off}
        s_waitcnt lgkmcnt(0)
        v_cmp_gt_u32 vcc, {val}, v{vT[6]}
        s_cbranch_vccz {L}_done
        s_sleep 2
        s_branch {L}
        {L}_done:
        ''')

    a(f'''
    s_cmp_ge_u32 s2, 256
    s_cbranch_scc1 L_end
    s_load_dwordx16 s[16:31], s[0:1], 0
    s_load_dwordx8 s[32:39], s[0:1], 64
    ''')
    if stamps: a(f's_memrealtime s[98:99]\nv_mov_b32 v{vSTAMP}, 0')
    a(f'''
    v_lshrrev_b32 v{vT[0]}, 6, v0
    v_and_b32 v{vLANE}, 63, v0
    v_readfirstlane_b32 s{sW}, v{vT[0]}
    v_lshrrev_b32 v{vG}, 4, v{vLANE}
    v_and_b32 v{vC}, 15, v{vLANE}
    v_lshlrev_b32 v{vKV}, 4, v{vLANE}
    v_mov_b32 v{vZ}, 0
    s_and_b32 s{sPAR}, s2, 1
    ''')
    if mapping == 'all':
        a(f's_lshr_b32 s{sH}, s2, 3\ns_and_b32 s{sS}, s2, 7')
    elif mapping == 'pair':
        a(f'''
        s_and_b32 s{sH}, s2, 6
        s_lshl_b32 s{sH}, s{sH}, 2
        s_lshr_b32 s{sT0}, s2, 5
        s_add_u32 s{sH}, s{sH}, s{sT0}
        s_lshr_b32 s{sS}, s2, 2
        s_and_b32 s{sS}, s{sS}, 6
        s_or_b32 s{sS}, s{sS}, s{sPAR}
        ''')
    else:
        a(f'''
        s_and_b32 s{sH}, s2, 2
        s_lshl_b32 s{sH}, s{sH}, 3
        s_lshr_b32 s{sT0}, s2, 4
        s_add_u32 s{sH}, s{sH}, s{sT0}
        s_lshr_b32 s{sS}, s2, 1
        s_and_b32 s{sS}, s{sS}, 6
        s_or_b32 s{sS}, s{sS}, s{sPAR}
        ''')
    a(f'''
    s_lshl_b32 s{sT1}, s{sH}, 8
    s_mul_i32 s{sT2}, s{sS}, {80 * 8192}
    s_add_u32 s{sT1}, s{sT1}, s{sT2}
    s_mov_b32 s42, {80 * 8192}
    s_mov_b32 s43, 0x20000
    s_mov_b32 s50, 1280
    s_mov_b32 s51, 0x20000
    s_mov_b32 s46, {WS_END}
    s_mov_b32 s47, 0x20000
    v_lshlrev_b32 v{vT[1]}, 13, v{vG}
    v_lshl_add_u32 v{vT[1]}, v{vC}, 4, v{vT[1]}
    v_lshlrev_b32 v{vT[2]}, 2, v{vLANE}
    v_lshl_add_u32 v{vT[3]}, v{vC}, 2, v{vG}
    v_lshlrev_b32 v{vT[3]}, 1, v{vT[3]}
    s_mul_i32 s{sT3}, s{sS}, 160
    s_lshr_b32 s{sIDX}, s{sS}, 1
    s_lshl_b32 s{sIDX}, s{sIDX}, 2
    s_and_b32 s{sT2}, s{sW}, 3
    s_add_u32 s{sIDX}, s{sIDX}, s{sT2}
    s_mul_i32 s{sROT}, s{sH}, {HROT}
    s_cmp_lt_u32 s{sW}, 4
    s_cselect_b32 s{sT2}, 0, {OY}
    s_add_u32 s{sIDX}, s{sIDX}, s{sT2}
    s_add_u32 s{sIDX}, s{sIDX}, s{sROT}
    s_lshl_b32 s{sOFF0}, s{sPAR}, 4
    s_add_u32 s{sOFF0}, s{sOFF0}, s{sIDX}
    s_lshl_b32 s{sOFF0}, s{sOFF0}, 12
    s_and_b32 s{sOFF0}, s{sOFF0}, 0x3fffff
    s_lshl_b32 s{sT0}, s{sH}, 22
    s_mul_i32 s{sCTR}, s{sH}, {CTRS}
    s_add_u32 s{sCTR}, s{sCTR}, {CTR}
    s_mov_b32 s10, 0x400000
    s_mov_b32 s11, 0x20000
    s_waitcnt lgkmcnt(0)
    s_mov_b32 s48, s16
    s_mov_b32 s49, s17
    s_add_u32 s40, s22, s{sT1}
    s_addc_u32 s41, s23, 0
    s_add_u32 s8, s18, s{sT0}
    s_addc_u32 s9, s19, 0
    s_mov_b32 s44, s38
    s_mov_b32 s45, s39
    s_load_dword s{sTAG}, s[38:39], {EPOCH}
    ''')
    if stamps: a(f'v_writelane_b32 v{vSTAMP}, s98, 0')
    vX = gat; vXS = gat + 5
    a(f'''
    s_cmp_lg_u32 s{sW}, 0
    s_cbranch_scc1 L_noq1
    s_cmp_eq_u32 s{sS}, 0
    s_cselect_b32 s{sT1}, s{sCTR}, {OOB:#x}
    s_mov_b64 exec, 1
    buffer_store_dword v{vZ}, v{vZ}, {WS_}, s{sT1} offen sc1
    s_mov_b64 exec, -1
    ''')
    for i in range(20):
        if i: a(f's_mov_b32 s{sT1}, {i * 32768}')
        vm(('wq', i), f'buffer_load_dwordx4 v[{wqs + 4*i}:{wqs + 4*i + 3}], v{vT[1]}, {WQ_}, {"0" if i == 0 else "s%d" % sT1} offen {wqflags}')
        if i == 3:
            for k in range(5): vm('x', f'buffer_load_dword v{vX + k}, v{vT[2]}, {X_}, 0 offen offset:{256 * k}')
            vm('x', f'buffer_load_ushort v{vXS}, v{vT[3]}, {X_}, s{sT3} offen')
            vm('x', f'buffer_load_ushort v{vXS + 1}, v{vT[3]}, {X_}, s{sT3} offen offset:128')
    a('L_noq1:\ns_barrier')

    def issue_static(m, n, x, NX, track=True):
        k, i = divmod(n, U)
        so = sOFF
        if 8 <= k < 8 + NX: so = sEX0 + k - 8
        elif i == 0:
            if k == 0: a(f's_mov_b32 s{sOFF}, s{sOFF0}')
            else: a(f's_add_u32 s{sOFF}, s{sOFF}, {32 * 4096}\ns_and_b32 s{sOFF}, s{sOFF}, 0x3fffff')
        r = ring + (x % S) * 4
        txt = f'buffer_load_dwordx4 v[{r}:{r+3}], v{vKV}, {K_ if m == "K" else V_}, s{so} offen offset:{i * 1024} {kvflags if m == "K" else vflags}'
        if track: vm(('r', x), txt)
        else: a(txt)
    assert min(NOo, NOy) * U >= S
    def lanemask(nvalid):
        nvalid = max(0, min(16, nvalid))
        m = (1 << nvalid) - 1
        return m | (m << 16)
    def common_setup():
        a(f'''
        s_add_u32 s12, s20, s{sT0}
        s_addc_u32 s13, s21, 0
        s_mov_b32 s14, 0x400000
        s_mov_b32 s15, 0x20000
        s_lshl_b32 s{sSLOT}, s{sH}, 3
        s_add_u32 s{sSLOT}, s{sSLOT}, s{sS}
        s_and_b32 s{sGAM}, s2, 7
        s_lshr_b32 s{sT1}, s2, 3
        s_lshl_b32 s{sT2}, s{sGAM}, 2
        s_add_u32 s{sT1}, s{sT1}, s{sT2}
        s_and_b32 s{sT1}, s{sT1}, 31
        s_lshr_b32 s{sFS}, s{sT1}, 1
        s_lshl_b32 s{sFS}, s{sFS}, 3
        s_add_u32 s{sFS}, s{sFS}, s{sGAM}
        s_cmp_lt_u32 s{sFS}, 27
        s_cselect_b32 s{sROLE}, 2, 0
        s_mov_b32 s{sLIM}, {NCH}
        s_cselect_b32 s{sLIM}, {max(0, NCH - gstop)}, s{sLIM}
        s_lshl_b32 s{sFS}, s{sFS}, 1
        s_and_b32 s{sT2}, s{sT1}, 1
        s_add_u32 s{sFS}, s{sFS}, s{sT2}
        s_sub_u32 s{sCS}, s{sT1}, 8
        s_cmp_lt_u32 s{sCS}, 10
        s_cselect_b32 s{sROLE}, 1, s{sROLE}
        s_cselect_b32 s{sLIM}, {max(0, NCH - wstop)}, s{sLIM}
        ''')
        for b, p, n in ((52, 24, 4096 * 1280), (56, 28, 640 * 3456), (60, 30, 640 * 3456), (64, 32, 1728 * 1280), (68, 34, 1280)):
            a(f's_mov_b32 s{b}, s{p}\ns_mov_b32 s{b+1}, s{p+1}\ns_mov_b32 s{b+2}, {n}\ns_mov_b32 s{b+3}, 0x20000')
        a(f'''
        s_mov_b32 s16, 0xcccccccc
        s_mov_b32 s17, 0xcccccccc
        s_mov_b32 s18, 0xaaaaaaaa
        s_mov_b32 s19, 0xaaaaaaaa
        s_mov_b32 s26, 0x00ff00ff
        s_mov_b32 s27, 0x00ff00ff
        s_mov_b32 s{sC1}, {LOG2E:#x}
        s_mov_b32 s{sC2}, 0xffff0000
        s_mov_b32 s{sMSK8}, 0xffffff00
        v_add_u32 v{vKV2}, 4096, v{vKV}
        v_and_b32 v{vT[5]}, 1, v{vC}
        v_lshlrev_b32 v{vT[5]}, 4, v{vT[5]}
        v_mov_b32 v{vT[6]}, 0xffff
        v_lshlrev_b32 v{vT[5]}, v{vT[5]}, v{vT[6]}
        v_bfe_u32 v{vT[6]}, v{vC}, 1, 2
        ''')
        for jj in range(4):
            a(f'v_cmp_eq_u32 vcc, {jj}, v{vT[6]}\nv_cndmask_b32 v{vMASK + jj}, 0, v{vT[5]}, vcc')
        a(f'''
        v_lshlrev_b32 v{vDA}, 5, v{vC}
        v_lshl_add_u32 v{vDA}, v{vG}, 4, v{vDA}
        s_waitcnt lgkmcnt(0)
        s_add_u32 s{sTAG}, s{sTAG}, 1
        s_and_b32 s{sTAG8}, s{sTAG}, 0xff
        v_mov_b32 v{vTAG}, s{sTAG8}
        ''')
    a(f's_cmp_eq_u32 s{sW}, 0\ns_cbranch_scc1 L_q')
    for x in range(4): issue_static('K', x, x, 0, track=False)
    a('L_q:')
    common_setup()
    a(f's_cmp_eq_u32 s{sW}, 0\ns_cbranch_scc1 L_q2')
    if (gstart or wstart) and not now:
        a(f'''
        s_cmp_lt_u32 s{sW}, 4
        s_cbranch_scc1 L_dma_done
        v_bfe_u32 v{vT[0]}, v{vLANE}, 3, 1               ; rr
        s_and_b32 s{sT3}, s{sW}, 3
        s_cmp_eq_u32 s{sROLE}, 2
        s_cbranch_scc1 L_dma_g
        s_cmp_eq_u32 s{sROLE}, 1
        s_cbranch_scc0 L_dma_done
        ''')
        if wstart:
            a(f'''
            v_lshrrev_b32 v{vT[4]}, 1, v{vG}
            v_lshlrev_b32 v{vT[4]}, 5, v{vT[4]}
            v_lshl_add_u32 v{vT[4]}, v{vT[0]}, 4, v{vT[4]}
            v_and_b32 v{vT[2]}, 1, v{vG}
            v_lshl_add_u32 v{vT[4]}, v{vT[2]}, 1, v{vT[4]}
            v_mul_u32_u24 v{vT[4]}, 1280, v{vT[4]}
            v_and_b32 v{vT[1]}, 7, v{vLANE}
            v_lshl_add_u32 v{vT[4]}, v{vT[1]}, 4, v{vT[4]}
            s_lshl_b32 s{sT0}, s{sGAM}, 9
            s_lshl_b32 s{sT1}, s{sT3}, 7
            s_add_u32 s{sT0}, s{sT0}, s{sT1}
            s_mul_i32 s{sT0}, s{sT0}, 1280
            s_lshl_b32 s{sT1}, s{sCS}, 7
            s_add_u32 s{sT0}, s{sT0}, s{sT1}
            s_lshl_b32 s{sT3}, s{sT3}, 14
            s_add_u32 s{sT3}, s{sT3}, {L_WT}
            ''')
            for half in range(2):
                for n in range(4):
                    for k in range(2):
                        a(f's_add_u32 m0, s{sT3}, {(8 * half + 4 * k + n) * 1024}\ns_add_u32 s{sT1}, s{sT0}, {(half * 64 + 4 * n + k) * 1280}')
                        a(f'buffer_load_dwordx4 v{vT[4]}, {WO_}, s{sT1} offen {wflags} lds')
        a('s_branch L_dma_done\nL_dma_g:')
        if gstart:
            a(f'''
            v_lshl_add_u32 v{vT[4]}, v{vG}, 1, v{vT[0]}
            v_mul_u32_u24 v{vT[4]}, 3456, v{vT[4]}
            v_and_b32 v{vT[5]}, 3, v{vLANE}
            v_lshl_add_u32 v{vT[4]}, v{vT[5]}, 4, v{vT[4]}
            s_mul_i32 s{sT0}, s{sT3}, {160 * 3456}
            s_lshl_b32 s{sT1}, s{sFS}, 6
            s_add_u32 s{sT0}, s{sT0}, s{sT1}
            s_mul_i32 s{sT3}, s{sT3}, {20 * 1024}
            s_add_u32 s{sT3}, s{sT3}, {L_WT}
            ''')
            for i in range(20):
                a(f's_add_u32 m0, s{sT3}, {i * 1024}\ns_add_u32 s{sT1}, s{sT0}, {8 * i * 3456}')
                a(f's_mov_b32 exec_lo, 0x0f0f0f0f\ns_mov_b32 exec_hi, 0x0f0f0f0f')
                a(f'buffer_load_dwordx4 v{vT[4]}, {WG_}, s{sT1} offen {gflags} lds')
                a(f's_mov_b32 exec_lo, 0xf0f0f0f0\ns_mov_b32 exec_hi, 0xf0f0f0f0')
                a(f'buffer_load_dwordx4 v{vT[4]}, {WU_}, s{sT1} offen {gflags} lds')
            a('s_mov_b64 exec, -1')
        a('L_dma_done:')
    for x in range(4, S): issue_static('K', x, x, 0, track=False)
    a('s_branch L_qdone\nL_q2:')
    a(f'ds_write_b32 v{vZ}, v{vZ} offset:{L_CNT}\nds_write_b32 v{vZ}, v{vZ} offset:{L_CNT+4}\nds_write_b32 v{vZ}, v{vZ} offset:{L_CNT+8}')
    wait('x')
    xs = vACC
    for i in range(5):
        a(f'v_lshlrev_b32 v{xs + 2*i}, 16, v{vX + i}\nv_and_b32 v{xs + 2*i + 1}, s{sC2}, v{vX + i}')
    sm = vT[0]
    a(f'v_add_f32 v{sm}, v{xs}, v{xs+1}')
    for i in range(2, 10): a(f'v_add_f32 v{sm}, v{sm}, v{xs + i}')
    allreduce(sm, 'v_add_f32', vT[2])
    a(f'v_mul_f32 v{sm}, {INV640:#x}, v{sm}')
    vv = vT[3]
    for i in range(10): a(f'v_sub_f32 v{xs + i}, v{xs + i}, v{sm}')
    a(f'v_mul_f32 v{vv}, v{xs}, v{xs}')
    for i in range(1, 10): a(f'v_fmac_f32 v{vv}, v{xs + i}, v{xs + i}')
    allreduce(vv, 'v_add_f32', vT[2])
    a(f'v_mul_f32 v{vv}, {INV640:#x}, v{vv}')
    ln_consts(sm, vv, vT[4], vT[5], vT[6])
    for i in range(2): a(f'v_lshlrev_b32 v{vXS + i}, 16, v{vXS + i}')
    ln_apply([vXS, vXS + 1], vT[4], vT[5], vT[6], [vT[1], vT[2]])
    stamp('ln')
    onehot_chain([(vXS + i // 16, f'row_newbcast:{i % 16}', wqs + 4 * i) for i in range(20)],
                 pre=lambda k: wait(('wq', k + 1)) if k % 2 == 0 else None)
    g = gat
    a(f's_lshl_b32 s{sT0}, s{sSLOT}, 9\ns_add_u32 s{sT0}, s{sT0}, {QS:#x}')
    tagw([vD + i for i in range(4)], rnd=True)
    a(f'''
    s_mov_b32 exec_hi, 0
    buffer_store_dwordx4 v[{vD}:{vD+3}], v{vDA}, {WS_}, s{sT0} offen sc1
    s_mov_b64 exec, -1
    ''')
    stamp('qpub')
    for x in range(n0): issue_static('K', x, x, 0, track=False)
    a(f'''
    s_lshl_b32 s{sT0}, s{sH}, 12
    s_add_u32 s{sT0}, s{sT0}, {QS:#x}
    s_mov_b32 s{sSPIN}, {spin}
    L_qpoll:
    ''')
    for i in range(4):
        a(f'buffer_load_dwordx4 v[{pA+4*i}:{pA+4*i+3}], v{vKV}, {WS_}, s{sT0} offen offset:{i * 1024} sc1')
    a('s_waitcnt vmcnt(0)')
    check(pA, g, 16)
    a(f'''
    s_cbranch_vccz L_qpoll_done
    s_sub_u32 s{sSPIN}, s{sSPIN}, 1
    s_cbranch_scc0 L_qpoll
    L_qpoll_done:
    ''')
    stamp('qgot')
    for e in range(4): a(f'v_add_f32 v{g+e}, v{g+e}, v{g+4+e}\nv_add_f32 v{g+8+e}, v{g+8+e}, v{g+12+e}')
    for e in range(4): a(f'v_add_f32 v{g+e}, v{g+e}, v{g+8+e}')
    a(f'''
    v_and_b32 v{vT[0]}, 31, v{vLANE}
    v_lshrrev_b32 v{vT[1]}, 5, v{vLANE}
    v_permlane32_swap_b32 v{g}, v{g+2}
    v_permlane32_swap_b32 v{g+1}, v{g+3}
    v_lshl_add_u32 v{vT[0]}, v{vT[0]}, 1, v{vT[1]}
    v_add_f32 v{g}, v{g}, v{g+2}
    v_add_f32 v{g+1}, v{g+1}, v{g+3}
    v_lshlrev_b32 v{vT[0]}, 2, v{vT[0]}
    v_cvt_pk_bf16_f32 v{g}, v{g}, v{g+1}
    ds_write_b32 v{vT[0]}, v{g} offset:{L_Q}
    s_waitcnt lgkmcnt(0)
    s_barrier
    ''')
    for x in range(n0, S): issue_static('K', x, x, 0, track=False)
    a('s_branch L_qread\nL_qdone:\ns_barrier\nL_qread:')
    a(f'''
    v_lshlrev_b32 v{vT[0]}, 4, v{vC}
    ds_read_b128 v[{vQ}:{vQ+3}], v{vT[0]} offset:{L_Q}
    s_lshl_b32 s{sT0}, s{sW}, 9
    v_add_u32 v{vDA}, s{sT0}, v{vDA}
    s_waitcnt lgkmcnt(0)
    ''')
    stamp('q')

    def reduce_tile(s, n, valid):
        A = [vACC + i if i < n else None for i in range(16)]
        B = []
        for jj in range(8):
            x, y = A[jj], A[jj + 8]
            if x is None: B.append(None); continue
            if y is None: a(f'v_add_f32_dpp v{x}, v{x}, v{x} row_ror:8 {DPPF}')
            else: a(f'v_add_f32_dpp v{x}, v{x}, v{x} row_ror:8 row_mask:0xf bank_mask:0x3')
            B.append(x)
        for jj in range(8):
            x, y = A[jj], A[jj + 8]
            if x is not None and y is not None:
                a(f'v_add_f32_dpp v{x}, v{y}, v{y} row_ror:8 row_mask:0xf bank_mask:0xc')
        C = []
        for jj in range(4):
            x = B[jj]
            d = vACC + 8 + jj
            a(f'v_add_f32_dpp v{d}, v{x}, v{x} row_shl:4 row_mask:0xf bank_mask:0x5')
            C.append(d)
        for jj in range(4):
            x, y = B[jj], B[jj + 4]
            z = y if y is not None else x
            a(f'v_add_f32_dpp v{C[jj]}, v{z}, v{z} row_shr:4 row_mask:0xf bank_mask:0xa')
        for jj in range(4): a(f'v_add_f32_dpp v{C[jj]}, v{C[jj]}, v{C[jj]} quad_perm:[2,3,0,1] {DPPF}')
        a(f'v_cndmask_b32 v{C[0]}, v{C[0]}, v{C[2]}, {sM1}\nv_cndmask_b32 v{C[1]}, v{C[1]}, v{C[3]}, {sM1}')
        for jj in range(2): a(f'v_add_f32_dpp v{C[jj]}, v{C[jj]}, v{C[jj]} quad_perm:[1,0,3,2] {DPPF}')
        a(f'v_cndmask_b32 v{s}, v{C[0]}, v{C[1]}, {sM0}')
        rbf(s, s)
        a(f'v_mul_f32 v{s}, {SCALE:#x}, v{s}')
        rbf(s, s)
        if valid:
            a(f'v_mov_b32 v{C[0]}, {NEGINF:#x}\nv_cndmask_b32 v{s}, v{C[0]}, v{s}, {valid}')
    def dots(r0, r1, a0):
        for jj in range(4):
            a(f'v_dot2_f32_bf16 v{a0}, v{r0 + jj}, v{vQ + jj}, {"0" if jj == 0 else "v%d" % a0}')
            a(f'v_dot2_f32_bf16 v{a0+1}, v{r1 + jj}, v{vQ + jj}, {"0" if jj == 0 else "v%d" % (a0+1)}')
    def claim():
        a(f'v_mov_b32 v{vTK}, 1\ns_mov_b64 exec, 1')
        vm('A', f'buffer_atomic_add v{vTK}, v{vZ}, {WS_}, s{sAOFF} offen sc0 sc1')
        a('s_mov_b64 exec, -1')
    def ticket():
        a(f'''
        v_readfirstlane_b32 s{sT0}, v{vTK}
        s_cmp_eq_u32 s{sAOFF}, s{sCTR}
        s_cselect_b32 s{sT0}, s{sT0}, {NCH}
        s_cmp_lt_u32 s{sT0}, s{sLIM}
        s_cselect_b32 s{sAOFF}, s{sCTR}, {OOB:#x}
        s_lshl_b32 s{sNXT}, s{sT0}, 1
        s_add_u32 s{sNXT}, s{sNXT}, s{sROT}
        s_add_u32 s{sNXT}, s{sNXT}, {OP}
        s_lshl_b32 s{sNXT}, s{sNXT}, 12
        s_and_b32 s{sNXT}, s{sNXT}, 0x3fffff
        s_cmp_lt_u32 s{sT0}, {NCH}
        s_cselect_b32 s{sNXT}, s{sNXT}, {OOB:#x}
        ''')
    def write_ml():
        a(f'''
        s_lshl_b32 s{sT0}, s{sW}, 2
        v_mov_b32 v{vT[3]}, s{sT0}
        ds_write_b32 v{vT[3]}, v{vM} offset:{L_M}
        ds_write_b32 v{vT[3]}, v{vL} offset:{L_L}
        ''')

    def stream(NE, NO, dyn, tg):
        NL = NE * U
        NT = (NL + 15) // 16
        N = 2 * NL
        assert NE - NO <= 2
        for e in range(NE - NO):
            a(f'''
            s_add_u32 s{sEX0 + e}, s{sIDX}, {NO * 32 + e * 16}
            s_lshl_b32 s{sEX0 + e}, s{sEX0 + e}, 12
            s_and_b32 s{sEX0 + e}, s{sEX0 + e}, 0x3fffff
            s_cmp_eq_u32 s{sPAR}, 0
            s_cselect_b32 s{sEX0 + e}, s{sEX0 + e}, {OOB:#x}
            ''')
        sVAL = {}
        free = [sVa, sVb]
        for t in range(NT):
            me = sum(1 << c for c in range(16) if 16 * t + c < NL)
            mo = sum(1 << c for c in range(16) if 16 * t + c < NL and not (32 <= 16 * t + c < 32 + 4 * (NE - NO)))
            if me == 0xffff and mo == 0xffff: continue
            sp = free.pop(0); lo = int(sp[2:].split(':')[0])
            sVAL[t] = sp
            a(f's_mov_b32 s{lo}, {me * 0x10001:#x}\ns_mov_b32 s{lo+1}, {mo * 0x10001:#x}\ns_cmp_eq_u32 s{sPAR}, 0\ns_cselect_b32 s{lo}, s{lo}, s{lo+1}\ns_mov_b32 s{lo+1}, s{lo}')
        q.clear()
        for x in range(S): q.append(('r', x))
        dK = [ring + ((N + i) % S) * 4 for i in range(8)]
        dV = [ring + ((N + 8 + i) % S) * 4 for i in range(8)]
        def dload(m, i):
            r = (dK if m == 'K' else dV)[i]
            vm(('d' + m, i), f'buffer_load_dwordx4 v[{r}:{r+3}], v{vKV if i < 4 else vKV2}, {K_ if m == "K" else V_}, s{sNXT} offen offset:{(i % 4) * 1024} {kvflags if m == "K" else vflags}')
        issued = [S]
        NTOT = N + (16 if dyn else 0)
        if dyn: a(f's_mov_b32 s{sAOFF}, s{sCTR}')
        def refill(upto):
            while issued[0] < min(NTOT, upto):
                x = issued[0]
                if x < N:
                    issue_static('K' if x < NL else 'V', x % NL, x, NE - NO)
                    if dyn and x == N - LA - 4: claim()
                else:
                    if x == N:
                        wait('A')
                        ticket()
                        a(f's_cbranch_scc1 L_t0ok')
                        lds_add(L_CNT)
                        a('L_t0ok:')
                    i = x - N
                    dload('K' if i < 8 else 'V', i % 8)
                    if i == 7: claim()
                issued[0] += 1
        for x in range(0, NL, 2):
            wait(('r', x + 1))
            dots(ring + (x % S) * 4, ring + ((x + 1) % S) * 4, vACC + x % 16)
            la = S if (not dyn or x + 2 + S <= NL) else max(LA, NL - (x + 2))
            refill(x + 2 + la)
            if (x + 2) % 16 == 0 or x + 2 == NL:
                t = x // 16
                reduce_tile(vSC[t], x + 2 - 16 * t, sVAL.get(t))
        a(f'v_max_f32 v{vM}, v{vSC[0]}, v{vSC[1]}')
        for t in range(2, NT): a(f'v_max_f32 v{vM}, v{vM}, v{vSC[t]}')
        allreduce(vM, 'v_max_f32', vT[1])
        for t in range(NT): a(f'v_sub_f32 v{vSC[t]}, v{vSC[t]}, v{vM}')
        for t in range(NT): a(f'v_mul_f32 v{vSC[t]}, s{sC1}, v{vSC[t]}')
        for t in range(NT): a(f'v_exp_f32 v{vSC[t]}, v{vSC[t]}')
        for t in range(NT): a(f'v_cvt_pk_bf16_f32 v{vSC[t]}, v{vSC[t]}, v{vSC[t]}')
        a(f'v_lshlrev_b32 v{vL}, 16, v{vSC[0]}')
        for t in range(1, NT): a(f'v_lshlrev_b32 v{vT[3]}, 16, v{vSC[t]}\nv_add_f32 v{vL}, v{vL}, v{vT[3]}')
        allreduce(vL, 'v_add_f32', vT[1])
        write_ml()
        stamp('k')
        ands(vSC[0], 'row_newbcast:0', 0)
        for n in range(NL):
            x = NL + n
            if n + 1 < NL: ands(vSC[(n+1) // 16], f'row_newbcast:{(n+1) % 16}', n + 1)
            wait(('r', x))
            mfma(ring + (x % S) * 4, n, first=(n == 0))
            if n % 2 == 1: refill(x + 1 + (LA if dyn else S))
        if not dyn: return
        assert issued[0] == NTOT
        stamp('s')
        a(f's_cmp_eq_u32 s{sNXT}, {OOB:#x}\ns_cbranch_scc0 L_dyn\ns_waitcnt vmcnt(0)\ns_branch L_dyn_done\nL_dyn:')
        def body(more):
            q.clear()
            for i in range(8): q.append(('dV', i))
            old = list(q)
            for i in range(0, 8, 2):
                dots(dK[i], dK[i+1], vACC + i)
                if more: dload('K', i); dload('K', i + 1)
            if more: claim()
            s = vSC[0]
            reduce_tile(s, 8, sLO8)
            mn = vT[0]
            a(f'v_max_f32 v{mn}, v{s}, v{vM}')
            allreduce(mn, 'v_max_f32', vT[1])
            a(f'''
            v_sub_f32 v{s}, v{s}, v{mn}
            v_sub_f32 v{vT[2]}, v{vM}, v{mn}
            v_mul_f32 v{s}, s{sC1}, v{s}
            v_mul_f32 v{vT[2]}, s{sC1}, v{vT[2]}
            v_exp_f32 v{s}, v{s}
            v_exp_f32 v{vT[2]}, v{vT[2]}
            v_mov_b32 v{vM}, v{mn}
            v_cvt_pk_bf16_f32 v{s}, v{s}, v{s}
            ''')
            for e in range(4): a(f'v_mul_f32 v{vD+e}, v{vD+e}, v{vT[2]}')
            a(f'v_lshlrev_b32 v{vT[3]}, 16, v{s}')
            allreduce(vT[3], 'v_add_f32', vT[1])
            a(f'v_fma_f32 v{vL}, v{vL}, v{vT[2]}, v{vT[3]}')
            if not more: write_ml()
            ands(s, 'row_newbcast:0', 0)
            for i in range(8):
                if i + 1 < 8: ands(s, f'row_newbcast:{i+1}', i + 1)
                n = len(q) - 1 - i
                a(f's_waitcnt vmcnt({n})')
                mfma(dV[i], i)
                if more and i % 2 == 1: dload('V', i - 1); dload('V', i)
        a('s_waitcnt vmcnt(8)')
        ticket()
        a('s_cbranch_scc0 L_dyn_last')
        body(True)
        a('s_branch L_dyn\nL_dyn_last:')
        lds_add(L_CNT)
        body(False)
        a('L_dyn_done:')
    a(f's_cmp_gt_u32 s{sW}, 3\ns_cbranch_scc1 L_young')
    stream(NEo, NOo, False, 'o')
    a('s_branch L_sdone\nL_young:')
    if NCH > 0: stream(NEy, NOy, True, 'y')
    else:
        stream(NEy, NOy, False, 'y'); lds_add(L_CNT)
    a('L_sdone:')
    a(f'''
    v_lshrrev_b32 v{vT[0]}, 5, v{vLANE}          ; half
    v_and_b32 v{vT[1]}, 31, v{vLANE}
    v_lshlrev_b32 v{vT[2]}, 4, v{vT[0]}
    v_lshlrev_b32 v{vT[3]}, 11, v{vT[0]}
    v_lshl_add_u32 v{vT[3]}, v{vT[1]}, 4, v{vT[3]}
    v_mov_b32 v{vT[6]}, 1
    s_mov_b32 exec_hi, 0
    ds_write_b128 v{vDA}, v[{vD}:{vD+3}] offset:{L_OP}
    s_mov_b64 exec, 1
    ds_add_rtn_u32 v{vT[6]}, v{vZ}, v{vT[6]} offset:{L_CNT + 4}
    s_mov_b64 exec, -1
    v_lshlrev_b32 v{vT[4]}, 4, v{vT[1]}
    v_lshl_add_u32 v{vT[4]}, v{vT[0]}, 3, v{vT[4]}
    s_lshl_b32 s{sT1}, s{sSLOT}, 10
    s_add_u32 s{sT1}, s{sT1}, {P1:#x}
    s_waitcnt lgkmcnt(0)
    v_readfirstlane_b32 s{sT0}, v{vT[6]}
    ''')
    stamp('v')
    t = vACC
    mm, ll = vA[0], vA[1]
    M, L_ = vD, vD + 1
    a(f'''
    s_cmp_lg_u32 s{sT0}, 7
    s_cbranch_scc1 L_pub_done
    s_setprio 3
    ds_read_b128 v[{mm}:{mm+3}], v{vT[2]} offset:{L_M}
    ''')
    for i in range(4): a(f'ds_read_b128 v[{g + 4*i}:{g + 4*i + 3}], v{vT[3]} offset:{L_OP + 512 * i}')
    a(f'''
    ds_read_b128 v[{ll}:{ll+3}], v{vT[2]} offset:{L_L}
    v_mov_b32 v{M+2}, v{vTAG}
    v_mov_b32 v{M+3}, v{vTAG}
    s_waitcnt lgkmcnt(5)
    v_max3_f32 v{M}, v{mm}, v{mm+1}, v{mm+2}
    v_max_f32 v{M}, v{M}, v{mm+3}
    v_mov_b32 v{vT[5]}, v{M}
    v_permlane32_swap_b32 v{M}, v{vT[5]}
    v_max_f32 v{M}, v{M}, v{vT[5]}
    ''')
    for i in range(4): a(f'v_sub_f32 v{mm+i}, v{mm+i}, v{M}')
    for i in range(4): a(f'v_mul_f32 v{mm+i}, s{sC1}, v{mm+i}')
    for i in range(4): a(f'v_exp_f32 v{mm+i}, v{mm+i}')
    a('s_waitcnt lgkmcnt(0)')
    for e in range(4): a(f'v_mul_f32 v{t+e}, v{mm}, v{g + e}')
    a(f'v_mul_f32 v{L_}, v{mm}, v{ll}')
    for i in range(1, 4):
        for e in range(4): a(f'v_fmac_f32 v{t+e}, v{mm+i}, v{g + 4*i + e}')
        a(f'v_fmac_f32 v{L_}, v{mm+i}, v{ll+i}')
    a(f'''
    v_mov_b32 v{vT[5]}, v{L_}
    v_permlane32_swap_b32 v{t}, v{t+2}
    v_permlane32_swap_b32 v{t+1}, v{t+3}
    v_permlane32_swap_b32 v{L_}, v{vT[5]}
    v_add_f32 v{t}, v{t}, v{t+2}
    v_add_f32 v{t+1}, v{t+1}, v{t+3}
    v_add_f32 v{L_}, v{L_}, v{vT[5]}
    ''')
    tagw([t, t + 1, M, L_])
    a(f'''
    buffer_store_dwordx2 v[{t}:{t+1}], v{vT[4]}, {WS_}, s{sT1} offen sc1
    s_mov_b64 exec, 1
    buffer_store_dwordx4 v[{M}:{M+3}], v{vT[4]}, {WS_}, s{sT1} offen offset:512 sc1
    v_mov_b32 v{vT[6]}, 1
    ds_add_u32 v{vZ}, v{vT[6]} offset:{L_CNT + 4}
    s_mov_b64 exec, -1
    s_setprio 0
    ''')
    if 'pub' in slist:
        a(f'''
        s_memrealtime s[96:97]
        s_add_u32 s24, s38, 0x10000000
        s_addc_u32 s25, s39, 0
        s_lshl_b32 s{sT2}, s2, 6
        s_add_u32 s{sT2}, s{sT2}, {4 * 15}
        v_mov_b32 v{vT[5]}, s{sT2}
        s_waitcnt lgkmcnt(0)
        v_mov_b32 v{vT[6]}, s96
        s_mov_b64 exec, 1
        global_store_dword v{vT[5]}, v{vT[6]}, s[24:25]
        s_mov_b64 exec, -1
        ''')
    a('L_pub_done:')
    if notail: a('s_branch L_fin')
    a(f's_cmp_eq_u32 s{sROLE}, 0\ns_cbranch_scc1 L_fin')
    vDA2 = vDA; vRA = vM
    wt = ring
    a(f'''
    v_bfe_u32 v{vT[0]}, v{vLANE}, 3, 1               ; rr
    v_and_b32 v{vT[1]}, 7, v{vLANE}                  ; cc
    v_and_b32 v{vT[2]}, 1, v{vG}                     ; b4
    v_lshrrev_b32 v{vT[3]}, 1, v{vG}                 ; b5
    s_lshl_b32 s{sT3}, s{sW}, 9
    v_lshlrev_b32 v{vDA2}, 8, v{vT[0]}
    v_lshl_add_u32 v{vDA2}, v{vT[1]}, 5, v{vDA2}
    v_lshl_add_u32 v{vDA2}, v{vT[2]}, 4, v{vDA2}
    v_add_u32 v{vDA2}, s{sT3}, v{vDA2}
    v_lshlrev_b32 v{vRA}, 10, v{vG}
    v_lshl_add_u32 v{vRA}, v{vC}, 4, v{vRA}
    s_cmp_eq_u32 s{sROLE}, 2
    s_cbranch_scc1 L_g
    ''')
    nprov = [0]
    def provision(n, loads):
        L = f'L_prov{nprov[0]}'; nprov[0] += 1
        a(f'''
        s_and_b32 s{sT3}, s{sW}, 3
        s_mul_i32 s{sT3}, s{sT3}, {n * 1024}
        v_add_u32 v{vL}, s{sT3}, v{vKV}
        s_cmp_gt_u32 s{sW}, 3
        s_cbranch_scc1 {L}_y
        ''')
        loads()
        a('s_waitcnt vmcnt(0)')
        for i in range(n): a(f'ds_write_b128 v{vL}, v[{wt + 4*(n+i)}:{wt + 4*(n+i) + 3}] offset:{L_WT + 1024 * i}')
        lds_add(L_CNT + 8)
        a(f's_branch {L}_d\n{L}_y:')
        lds_gate(L_CNT + 8, 4)
        for i in range(n): a(f'ds_read_b128 v[{wt + 4*i}:{wt + 4*i + 3}], v{vL} offset:{L_WT + 1024 * i}')
        a(f'{L}_d:\ns_waitcnt lgkmcnt(0)')
    def w_loads():
        a(f'''
        v_lshlrev_b32 v{vT[4]}, 5, v{vT[3]}
        v_lshl_add_u32 v{vT[4]}, v{vT[0]}, 4, v{vT[4]}
        v_lshl_add_u32 v{vT[4]}, v{vT[2]}, 1, v{vT[4]}
        v_mul_u32_u24 v{vT[4]}, 1280, v{vT[4]}
        v_lshl_add_u32 v{vT[4]}, v{vT[1]}, 4, v{vT[4]}
        s_lshl_b32 s{sT0}, s{sGAM}, 9
        s_lshl_b32 s{sT1}, s{sW}, 6
        s_add_u32 s{sT0}, s{sT0}, s{sT1}
        s_mul_i32 s{sT0}, s{sT0}, 1280
        s_lshl_b32 s{sT1}, s{sCS}, 7
        s_add_u32 s{sT0}, s{sT0}, s{sT1}
        ''')
        if wgate: lds_gate(L_CNT, wgate)
        stamp('gate')
        if now: return
        for half in (1, 0):
            for n in range(4):
                a(f's_add_u32 s{sT1}, s{sT0}, {(half * 256 + 4 * n) * 1280}')
                for k in range(2):
                    r = wt + 4 * (8 * half + 4 * k + n)
                    a(f'buffer_load_dwordx4 v[{r}:{r+3}], v{vT[4]}, {WO_}, s{sT1} offen offset:{k * 1280} {wflags}')
    def fetch(n):
        a(f's_mul_i32 s{sT3}, s{sW}, {n * 1024}\nv_add_u32 v{vL}, s{sT3}, v{vKV}')
        lds_gate(L_CNT, 4)
        for i in range(n): a(f'ds_read_b128 v[{wt + 4*i}:{wt + 4*i + 3}], v{vL} offset:{L_WT + 1024 * i}')
        a('s_waitcnt lgkmcnt(0)')
    if wstart: fetch(8)
    else: provision(8, w_loads)
    stamp('gw')
    a(f'''
    v_bfe_u32 v{vT[4]}, v{vLANE}, 2, 1
    v_lshl_add_u32 v{vT[4]}, v{vG}, 1, v{vT[4]}      ; s
    v_lshlrev_b32 v{vT[4]}, 10, v{vT[4]}
    v_and_b32 v{vT[5]}, 3, v{vLANE}
    v_lshl_add_u32 v{vT[5]}, v{vT[0]}, 2, v{vT[5]}   ; chunk
    v_lshl_add_u32 v{vT[5]}, v{vT[5]}, 4, v{vT[4]}
    s_lshl_b32 s{sT0}, s{sGAM}, 2
    s_lshr_b32 s{sT1}, s{sW}, 1
    s_add_u32 s{sT0}, s{sT0}, s{sT1}
    s_lshl_b32 s{sT0}, s{sT0}, 13
    s_add_u32 s{sT0}, s{sT0}, {P1:#x}
    s_and_b32 s{sT1}, s{sW}, 1
    s_lshl_b32 s{sT1}, s{sT1}, 8
    s_add_u32 s{sT1}, s{sT1}, s{sT0}
    s_mul_i32 s{sT2}, s{sGAM}, 2560
    s_lshl_b32 s{sT3}, s{sCS}, 8
    s_add_u32 s{sT2}, s{sT2}, s{sT3}
    s_add_u32 s{sT2}, s{sT2}, {P2:#x}
    v_lshl_add_u32 v{vT[0]}, v{vC}, 2, v{vG}
    v_lshlrev_b32 v{vT[0]}, 2, v{vT[0]}
    ''')
    lds_gate(L_CNT + 4, 9)
    def ld1(b):
        a(f'buffer_load_dwordx4 v[{b+8}:{b+11}], v{vT[4]}, {WS_}, s{sT0} offen offset:512 sc1')
        a(f'buffer_load_dwordx4 v[{b}:{b+3}], v{vT[5]}, {WS_}, s{sT1} offen sc1')
        a(f'buffer_load_dwordx4 v[{b+4}:{b+7}], v{vT[5]}, {WS_}, s{sT1} offen offset:128 sc1')
    poll(ld1, 12, g, 3)
    stamp('h1')
    mS, lS = g + 8, g + 9
    M = vT[2]; tt = vT[3]
    a(f'''
    v_max_f32_dpp v{M}, v{mS}, v{mS} row_half_mirror {DPPF}
    v_mov_b32 v{tt}, v{M}
    v_permlane16_swap_b32 v{M}, v{tt}
    v_max_f32 v{M}, v{M}, v{tt}
    v_mov_b32 v{tt}, v{M}
    v_permlane32_swap_b32 v{M}, v{tt}
    v_max_f32 v{M}, v{M}, v{tt}
    v_sub_f32 v{mS}, v{mS}, v{M}
    v_mul_f32 v{mS}, s{sC1}, v{mS}
    v_exp_f32 v{mS}, v{mS}
    ''')
    a(f'v_mul_f32 v{lS}, v{lS}, v{mS}')
    for i in range(8): a(f'v_mul_f32 v{g+i}, v{g+i}, v{mS}')
    a(f'v_add_f32_dpp v{lS}, v{lS}, v{lS} row_half_mirror {DPPF}')
    for e in range(4): a(f'v_permlane32_swap_b32 v{g+e}, v{g+4+e}')
    a(f'v_mov_b32 v{tt}, v{lS}')
    for e in range(4): a(f'v_add_f32 v{g+e}, v{g+e}, v{g+4+e}')
    a(f'''
    v_permlane16_swap_b32 v{lS}, v{tt}
    v_permlane16_swap_b32 v{g}, v{g+2}
    v_permlane16_swap_b32 v{g+1}, v{g+3}
    v_add_f32 v{lS}, v{lS}, v{tt}
    v_add_f32 v{g}, v{g}, v{g+2}
    v_add_f32 v{g+1}, v{g+1}, v{g+3}
    v_mov_b32 v{tt}, v{lS}
    v_add_f32_dpp v{g+2}, v{g}, v{g} row_shl:4 row_mask:0xf bank_mask:0x5
    v_permlane32_swap_b32 v{lS}, v{tt}
    v_add_f32_dpp v{g+3}, v{g+1}, v{g+1} row_shl:4 row_mask:0xf bank_mask:0x5
    v_add_f32 v{lS}, v{lS}, v{tt}
    v_add_f32_dpp v{g+2}, v{g}, v{g} row_shr:4 row_mask:0xf bank_mask:0xa
    v_rcp_f32 v{tt}, v{lS}
    v_add_f32_dpp v{g+3}, v{g+1}, v{g+1} row_shr:4 row_mask:0xf bank_mask:0xa
    v_mul_f32 v{g+2}, v{g+2}, v{tt}
    v_mul_f32 v{g+3}, v{g+3}, v{tt}
    v_cvt_pk_bf16_f32 v{g+2}, v{g+2}, v{g+2}
    v_cvt_pk_bf16_f32 v{g+3}, v{g+3}, v{g+3}
    ''')
    onehot_chain([(g + 2 + i // 4, f'quad_perm:[{i%4},{i%4},{i%4},{i%4}]', wt + 4 * i) for i in range(8)])
    write_d_rr(L_ZP)
    a(f's_cmp_lg_u32 s{sW}, 0\ns_cbranch_scc1 L_fin')
    lds_reduce16(L_ZP, g)
    lds_reduce16b(g)
    tagw([g])
    a(f'buffer_store_dword v{g}, v{vT[0]}, {WS_}, s{sT2} offen sc1')
    stamp('w')
    a('s_branch L_fin')
    wD = ring + 40
    vHA = vQ; vXA = vQ + 1; vPA = vQ + 2; vWA = vQ + 3
    a(f'''
    L_g:
    v_lshl_add_u32 v{vT[4]}, v{vG}, 1, v{vT[0]}
    v_mul_u32_u24 v{vT[4]}, 3456, v{vT[4]}
    v_and_b32 v{vT[5]}, 3, v{vLANE}
    v_lshl_add_u32 v{vT[4]}, v{vT[5]}, 4, v{vT[4]}
    s_mul_i32 s{sT0}, s{sW}, {80 * 3456}
    s_lshl_b32 s{sT1}, s{sFS}, 6
    s_add_u32 s{sT0}, s{sT0}, s{sT1}
    v_lshl_add_u32 v{vHA}, v{vG}, 1, v{vT[0]}
    v_lshl_add_u32 v{vHA}, v{vT[5]}, 3, v{vHA}
    s_mul_i32 s{sT3}, s{sW}, 80
    v_add_u32 v{vHA}, s{sT3}, v{vHA}
    v_lshlrev_b32 v{vHA}, 2, v{vHA}
    v_mul_u32_u24 v{vWA}, 1280, v{vG}
    v_lshl_add_u32 v{vWA}, v{vC}, 4, v{vWA}
    v_lshlrev_b32 v{vXA}, 5, v{vG}
    v_lshl_add_u32 v{vXA}, v{vT[1]}, 2, v{vXA}
    v_lshl_add_u32 v{vXA}, v{vT[0]}, 1, v{vXA}
    v_lshlrev_b32 v{vXA}, 1, v{vXA}
    v_lshrrev_b32 v{vPA}, 3, v{vLANE}
    v_mul_u32_u24 v{vPA}, 2560, v{vPA}
    v_lshl_add_u32 v{vPA}, v{vT[1]}, 4, v{vPA}
    ''')
    def g_loads():
        if now: return
        for half in (1, 0):
            for i in range(10):
                r = wt + 4 * (10 * half + i)
                a(f's_add_u32 s{sT1}, s{sT0}, {(half * 320 + 8 * i) * 3456}')
                a(f's_mov_b32 exec_lo, 0x0f0f0f0f\ns_mov_b32 exec_hi, 0x0f0f0f0f')
                a(f'buffer_load_dwordx4 v[{r}:{r+3}], v{vT[4]}, {WG_}, s{sT1} offen {gflags}')
                a(f's_mov_b32 exec_lo, 0xf0f0f0f0\ns_mov_b32 exec_hi, 0xf0f0f0f0')
                a(f'buffer_load_dwordx4 v[{r}:{r+3}], v{vT[4]}, {WU_}, s{sT1} offen {gflags}')
        a('s_mov_b64 exec, -1')
    if gstart: fetch(10)
    else: provision(10, g_loads)
    if dgate == 9: lds_gate(L_CNT + 4, 9)
    elif dgate: lds_gate(L_CNT, dgate)
    a(f'''
    s_mov_b64 exec, -1
    s_cmp_gt_u32 s{sW}, 4
    s_cbranch_scc1 L_g_nogather
    s_mul_i32 s{sT0}, s{sFS}, {32 * 1280}
    s_lshl_b32 s{sT2}, s{sW}, 8
    s_add_u32 s{sT0}, s{sT0}, s{sT2}
    buffer_load_dword v{vXH}, v{vXA}, {X_}, s{sT2} offen
    ''')
    if not now:
        for i in range(8):
            if i: a(f's_add_u32 s{sT0}, s{sT0}, {4 * 1280}')
            a(f'buffer_load_dwordx4 v[{wD+4*i}:{wD+4*i+3}], v{vWA}, {WD_}, s{sT0} offen {dflags}')
    a(f'''
    s_lshl_b32 s{sT1}, s{sW}, 9
    s_add_u32 s{sT0}, s{sT1}, {P2:#x}
    v_lshlrev_b32 v{vXA}, 1, v{vXA}
    v_add_u32 v{vXA}, s{sT1}, v{vXA}
    s_lshl_b32 s{sT3}, s{sW}, 3
    v_mov_b32 v{vT[0]}, s{sT3}
    s_waitcnt vmcnt(0)
    v_lshlrev_b32 v{vT[2]}, 16, v{vXH}
    v_and_b32 v{vT[3]}, s{sC2}, v{vXH}
    ''')
    if dgate != 9: lds_gate(L_CNT + 4, 9)
    stamp('gw')
    def ld2(b):
        for i in range(4): a(f'buffer_load_dwordx4 v[{b+4*i}:{b+4*i+3}], v{vPA}, {WS_}, s{sT0} offen offset:{128*i} sc1')
    poll(ld2, 16, g, 4)
    stamp('h2')
    for i in range(8): a(f'v_permlane32_swap_b32 v{g+i}, v{g+8+i}')
    for i in range(8): a(f'v_add_f32 v{g+i}, v{g+i}, v{g+8+i}')
    for i in range(4): a(f'v_permlane16_swap_b32 v{g+i}, v{g+4+i}')
    for i in range(4): a(f'v_add_f32 v{g+i}, v{g+i}, v{g+4+i}')
    for i in range(2): a(f'v_add_f32_dpp v{g+i}, v{g+i}, v{g+i} row_ror:8 row_mask:0xf bank_mask:0x3')
    for i in range(2): a(f'v_add_f32_dpp v{g+i}, v{g+2+i}, v{g+2+i} row_ror:8 row_mask:0xf bank_mask:0xc')
    h0, h1 = g, g + 1
    a(f'''
    v_cvt_pk_bf16_f32 v{g+2}, v{h0}, v{h1}
    v_lshlrev_b32 v{h0}, 16, v{g+2}
    v_and_b32 v{h1}, s{sC2}, v{g+2}
    v_add_f32 v{h0}, v{h0}, v{vT[2]}
    v_add_f32 v{h1}, v{h1}, v{vT[3]}
    v_cvt_pk_bf16_f32 v{g+2}, v{h0}, v{h1}
    v_lshlrev_b32 v{h0}, 16, v{g+2}
    v_and_b32 v{h1}, s{sC2}, v{g+2}
    v_add_f32 v{g+4}, v{h0}, v{h1}
    v_mul_f32 v{g+5}, v{h0}, v{h0}
    ds_write_b64 v{vXA}, v[{h0}:{h1}] offset:{L_HH}
    v_fmac_f32 v{g+5}, v{h1}, v{h1}
    ''')
    allreduce2(g + 4, g + 5, 'v_add_f32', g + 6, g + 7)
    a(f'''
    ds_write_b64 v{vT[0]}, v[{g+4}:{g+5}] offset:{L_ST}
    s_branch L_g_bar
    L_g_nogather:
    s_waitcnt vmcnt(0)
    L_g_bar:
    s_waitcnt lgkmcnt(0)
    s_barrier
    ds_read_b128 v[{g+4}:{g+7}], v{vZ} offset:{L_ST}
    ds_read_b128 v[{g+8}:{g+11}], v{vZ} offset:{L_ST + 16}
    ds_read_b64 v[{g+12}:{g+13}], v{vZ} offset:{L_ST + 32}
    ds_read_b32 v{g}, v{vHA} offset:{L_HH}
    ds_read_b32 v{g+1}, v{vHA} offset:{L_HH + 128}
    ds_read_b32 v{g+2}, v{vHA} offset:{L_HH + 256}
    s_waitcnt lgkmcnt(3)
    v_add_f32 v{g+4}, v{g+4}, v{g+6}
    v_add_f32 v{g+5}, v{g+5}, v{g+7}
    v_add_f32 v{g+8}, v{g+8}, v{g+10}
    v_add_f32 v{g+9}, v{g+9}, v{g+11}
    v_add_f32 v{g+4}, v{g+4}, v{g+12}
    v_add_f32 v{g+5}, v{g+5}, v{g+13}
    v_add_f32 v{g+4}, v{g+4}, v{g+8}
    v_add_f32 v{g+5}, v{g+5}, v{g+9}
    v_mul_f32 v{g+4}, {INV640:#x}, v{g+4}
    v_mul_f32 v{g+5}, {INV640:#x}, v{g+5}
    v_fma_f32 v{g+5}, -v{g+4}, v{g+4}, v{g+5}
    v_max_f32 v{g+5}, 0, v{g+5}
    ''')
    ln_consts(g + 4, g + 5, g + 6, g + 7, g + 8)
    a('s_waitcnt lgkmcnt(0)')
    ln_apply([g, g + 1, g + 2], g + 6, g + 7, g + 8, [g + 9, g + 10, g + 11])
    stamp('ln2')
    onehot_chain([(g + i // 4, f'quad_perm:[{i%4},{i%4},{i%4},{i%4}]', wt + 4 * i) for i in range(10)])
    write_d_rr(L_GP)
    stamp('g1')
    a(f's_cmp_gt_u32 s{sW}, 4\ns_cbranch_scc1 L_f')
    r = g
    lds_reduce16(L_GP, r)
    a(f'''
    s_mul_i32 s{sT0}, s{sFS}, 2560
    s_lshl_b32 s{sT1}, s{sW}, 9
    s_add_u32 s{sT0}, s{sT0}, s{sT1}
    s_add_u32 s{sT0}, s{sT0}, {P3:#x}
    v_lshlrev_b32 v{vT[0]}, 5, v{vC}
    v_lshl_add_u32 v{vT[0]}, v{vG}, 4, v{vT[0]}
    ''')
    lds_reduce16b(r)
    rbf(r, r)
    a(f'''
    v_mul_f32 v{r+1}, s{sC1}, v{r}
    v_exp_f32 v{r+1}, -v{r+1}
    v_add_f32 v{r+1}, 1.0, v{r+1}
    v_rcp_f32 v{r+2}, v{r+1}
    v_mul_f32 v{r+3}, v{r}, v{r+2}
    ''')
    rbf(r + 3, r + 3)
    a(f'''
    v_mul_f32_dpp v{r+3}, v{r}, v{r+3} row_ror:8 {DPPF}
    v_cvt_pk_bf16_f32 v{r+3}, v{r+3}, v{r+3}
    ''')
    onehot_chain([(r + 3, f'row_newbcast:{i}', wD + 4 * i) for i in range(8)])
    tagw([vD + i for i in range(4)])
    a(f'''
    s_mov_b32 exec_hi, 0
    buffer_store_dwordx4 v[{vD}:{vD+3}], v{vT[0]}, {WS_}, s{sT0} offen sc1
    s_mov_b64 exec, -1
    ''')
    stamp('g')
    a('s_branch L_fin')
    a(f'''
    L_f:
    s_cmp_lg_u32 s{sW}, 7
    s_cbranch_scc1 L_fin
    s_cmp_ge_u32 s{sFS}, 40
    s_cbranch_scc1 L_fin
    v_lshrrev_b32 v{vT[0]}, 2, v{vLANE}
    v_and_b32 v{vT[1]}, 3, v{vLANE}
    v_mul_u32_u24 v{vT[0]}, 2560, v{vT[0]}
    v_lshl_add_u32 v{vT[0]}, v{vT[1]}, 4, v{vT[0]}
    s_lshl_b32 s{sT3}, s{sFS}, 6
    s_add_u32 s{sT0}, s{sT3}, {P3:#x}
    s_add_u32 s{sT1}, s{sT0}, {16 * 2560}
    s_add_u32 s{sT2}, s{sT0}, {32 * 2560}
    s_add_u32 s{sOFF}, s{sT0}, {48 * 2560}
    v_lshl_add_u32 v{vT[1]}, v{vT[1]}, 2, v{vG}
    v_lshlrev_b32 v{vT[1]}, 2, v{vT[1]}
    v_add_u32 v{vT[1]}, s{sT3}, v{vT[1]}
    ds_read_b32 v{vT[2]}, v{vT[1]} offset:{L_HH}
    v_lshrrev_b32 v{vT[1]}, 1, v{vT[1]}
    ''')
    for b in (pA, pB):
        for e in range(4): a(f'v_mov_b32 v{b+12+e}, v{vTAG}')
    a(f'''
    s_cmp_eq_u32 s{sFS}, 0
    s_cselect_b32 s{sT3}, {EPOCH}, {OOB:#x}
    v_mov_b32 v{vT[4]}, s{sTAG}
    s_mov_b64 exec, 1
    buffer_store_dword v{vT[4]}, v{vZ}, {WS_}, s{sT3} offen sc1
    s_mov_b64 exec, -1
    ''')
    def ld3(b):
        for i in range(3): a(f'buffer_load_dwordx4 v[{b+4*i}:{b+4*i+3}], v{vT[0]}, {WS_}, s{(sT0, sT1, sT2)[i]} offen sc1')
        a(f's_mov_b64 exec, 0xffffff\nbuffer_load_dwordx4 v[{b+12}:{b+15}], v{vT[0]}, {WS_}, s{sOFF} offen sc1\ns_mov_b64 exec, -1')
    poll(ld3, 16, g, 4)
    stamp('h3')
    for e in range(4): a(f'v_add_f32 v{g+e}, v{g+e}, v{g+4+e}')
    for e in range(4): a(f'v_add_f32 v{g+8+e}, v{g+8+e}, v{g+12+e}')
    for e in range(4): a(f'v_add_f32 v{g+e}, v{g+e}, v{g+8+e}')
    a(f'''
    v_permlane32_swap_b32 v{g}, v{g+2}
    v_permlane32_swap_b32 v{g+1}, v{g+3}
    v_add_f32 v{g}, v{g}, v{g+2}
    v_add_f32 v{g+1}, v{g+1}, v{g+3}
    v_permlane16_swap_b32 v{g}, v{g+1}
    v_add_f32 v{g}, v{g}, v{g+1}
    v_add_f32_dpp v{g}, v{g}, v{g} row_ror:8 {DPPF}
    v_add_f32_dpp v{g}, v{g}, v{g} row_ror:4 {DPPF}
    ''')
    rbf(g, g)
    a(f'''
    s_waitcnt lgkmcnt(0)
    v_add_f32 v{g}, v{g}, v{vT[2]}
    v_cvt_pk_bf16_f32 v{g}, v{g}, v{g}
    s_mov_b32 exec_lo, 0x000f000f
    s_mov_b32 exec_hi, 0x000f000f
    buffer_store_short v{g}, v{vT[1]}, {OUT_}, 0 offen
    s_mov_b64 exec, -1
    L_fin:
    ''')
    if stamps:
        stamp('end')
        a(f'''
        s_cmp_lg_u32 s{sW}, {stampwave}
        s_cbranch_scc1 L_end
        s_add_u32 s24, s38, 0x10000000
        s_addc_u32 s25, s39, 0
        s_lshl_b32 s{sT0}, s2, 6
        v_lshlrev_b32 v{vT[0]}, 2, v{vLANE}
        v_add_u32 v{vT[0]}, s{sT0}, v{vT[0]}
        s_mov_b64 exec, 0x7fff
        global_store_dword v{vT[0]}, v{vSTAMP}, s[24:25]
        ''')
    a('L_end:\ns_endpgm')
    return build_file([f'; @launch grid=(256,1,1) block=(512,1,1) lds={lds}'], [(NAME + '_kernel', a.text(), V.high, 102)])

if __name__ == '__main__':
    import json
    out = sys.argv[1]
    kw = json.loads(sys.argv[2]) if len(sys.argv) > 2 else {}
    open(out, 'w').write(gen(**kw))
```

```python
import sys, struct
from asmlib import *

def f2u(x): return struct.unpack('<I', struct.pack('<f', x))[0]
LOG2E = f2u(1.4426950408889634)
SCALE = f2u(128 ** -0.5)
INV640 = f2u(1.0 / 640)
EPS = f2u(1e-5)
NEGINF = 0xff800000

EPOCH = 0x0
CTR = 0x1000
CTRS = 0x1100
QS = 0x40000
P1 = 0x80000
P2 = 0xC0000
P3 = 0xD0000
WS_END = P3 + 54 * 2560
OOB = 0x40000000
L_Q = 0; L_CNT = 256; L_M = 320; L_L = 352; L_ST = 384; L_OP = 4096; L_ZP = 8192; L_GP = 12288; L_HH = 16384; L_WT = 20480

DPPF = 'row_mask:0xf bank_mask:0xf'

def gen(NEo=17, NOo=15, NEy=11, NOy=9, HROT=74, S=32, LA=16, stamps=False, kvflags='nt', wqflags='nt', wflags='nt', lds=104448,
        spin=200000, stampwave=0, notail=False, now=False, n0=4, psleep=0, mapping='all', gstop=0, g1=6, pipe=False, gflags=None, wgate=4, wstop=0, dflags=None, dgate=9, gstart=True, wstart=True, vflags=None, dbgout=False):
    a = Asm()
    V = Alloc(1, 256)
    U = 4
    if gflags is None: gflags = wflags
    if vflags is None: vflags = kvflags
    if dflags is None: dflags = wflags
    OY = 16 * (NEo + NOo)
    OP = OY + 16 * (NEy + NOy)
    NCH = (1024 - OP) // 2
    assert OP <= 1024 and HROT % 2 == 0
    NTMAX = (max(NEo, NEy) * U + 15) // 16
    sW, sH, sIDX, sPAR, sS = 3, 4, 5, 6, 7
    K_, V_, WQ_, WS_, X_, WO_, WG_, WU_, WD_, OUT_ = [f's[{b}:{b+3}]' for b in (8, 12, 40, 44, 48, 52, 56, 60, 64, 68)]
    sOFF, sOFF0, sEX0, sT0, sT1, sT2, sT3 = 76, 77, 78, 80, 81, 82, 83
    sSLOT, sROLE, sGAM, sCS, sFS, sSPIN, sTAG, sTAG8 = 84, 85, 87, 88, 89, 91, 92, 93
    sC1, sC2 = 94, 95
    sROT, sCTR, sNXT, sLIM, sAOFF, sMSK8 = 72, 73, 74, 75, 86, 90
    sM1, sM0 = 's[16:17]', 's[18:19]'
    sVa, sVb = 's[20:21]', 's[22:23]'
    sLO8 = 's[26:27]'
    slist = stamps if isinstance(stamps, list) else []
    def stamp(name):
        if name in slist:
            a(f's_memrealtime s[96:97]\ns_waitcnt lgkmcnt(0)\nv_writelane_b32 v{vSTAMP}, s96, {1 + slist.index(name)}')
    q = []
    def vm(tag, text):
        a(text); q.append(tag)
    def wait(tag):
        idx = max(i for i, t in enumerate(q) if t == tag)
        n = len(q) - 1 - idx
        assert n <= 63, n
        a(f's_waitcnt vmcnt({n})')

    vSTAMP = V.get() if stamps else None
    vLANE = V.get(); vG = V.get(); vC = V.get(); vKV = V.get(); vKV2 = V.get()
    vT = [V.get() for _ in range(8)]
    vDA = V.get(); vXH = V.get(); vTAG = V.get(); vTK = V.get(); vM = V.get(); vL = V.get(); vZ = V.get()
    vMASK = V.get(4, 4)
    vA = [V.get(4, 4), V.get(4, 4)]
    vD = V.get(4, 4)
    vQ = V.get(4, 4)
    vSC = [V.get() for _ in range(NTMAX)]
    vACC = V.get(16, 4)
    gat = V.get(16, 4)
    ring = V.get(4 * S, 4)
    wqs = ring + 4 * (S - 20)
    assert n0 <= S - 20 and S == 32
    pA, pB = ring + 96, ring + 112

    def allreduce(r, op, t):
        for k in (8, 4, 2, 1):
            a(f'{op}_dpp v{r}, v{r}, v{r} row_ror:{k} {DPPF}')
        for sw in ('v_permlane16_swap_b32', 'v_permlane32_swap_b32'):
            a(f'v_mov_b32 v{t}, v{r}\n{sw} v{r}, v{t}\n{op} v{r}, v{r}, v{t}')
    def allreduce2(r0, r1, op, t0, t1):
        for k in (8, 4, 2, 1):
            a(f'{op}_dpp v{r0}, v{r0}, v{r0} row_ror:{k} {DPPF}\n{op}_dpp v{r1}, v{r1}, v{r1} row_ror:{k} {DPPF}')
        for sw in ('v_permlane16_swap_b32', 'v_permlane32_swap_b32'):
            a(f'v_mov_b32 v{t0}, v{r0}\nv_mov_b32 v{t1}, v{r1}\n{sw} v{r0}, v{t0}\n{sw} v{r1}, v{t1}\n{op} v{r0}, v{r0}, v{t0}\n{op} v{r1}, v{r1}, v{t1}')
    def rbf(d, s):
        a(f'v_cvt_pk_bf16_f32 v{d}, v{s}, v{s}\nv_lshlrev_b32 v{d}, 16, v{d}')
    def ln_consts(vmean, vvar, vm_bf, vs_bf, vr):
        rbf(vs_bf, vvar)
        rbf(vm_bf, vmean)
        a(f'v_add_f32 v{vs_bf}, {EPS:#x}, v{vs_bf}')
        rbf(vs_bf, vs_bf)
        a(f'v_sqrt_f32 v{vs_bf}, v{vs_bf}')
        rbf(vs_bf, vs_bf)
        a(f'v_rcp_f32 v{vr}, v{vs_bf}')
    def ln_apply(xs, vm_bf, vs_bf, vr, ts):
        for x in xs: a(f'v_sub_f32 v{x}, v{x}, v{vm_bf}')
        for x in xs: a(f'v_cvt_pk_bf16_f32 v{x}, v{x}, v{x}')
        for x in xs: a(f'v_lshlrev_b32 v{x}, 16, v{x}')
        for x, t in zip(xs, ts): a(f'v_mul_f32 v{t}, v{x}, v{vr}')
        for x, t in zip(xs, ts): a(f'v_fma_f32 v{x}, -v{t}, v{vs_bf}, v{x}')
        for x, t in zip(xs, ts): a(f'v_fma_f32 v{x}, v{x}, v{vr}, v{t}')
        for x in xs: a(f'v_cvt_pk_bf16_f32 v{x}, v{x}, v{x}')
    def ands(pk, sel, k):
        A = vA[k & 1]
        for jj in range(4): a(f'v_and_b32_dpp v{A + jj}, v{pk}, v{vMASK + jj} {sel} {DPPF}')
    def mfma(data, k, first=False):
        A = vA[k & 1]
        c = '0' if first else f'v[{vD}:{vD+3}]'
        a(f'v_mfma_f32_16x16x32_bf16 v[{vD}:{vD+3}], v[{A}:{A+3}], v[{data}:{data+3}], {c}')
    def onehot_chain(items, pre=None):
        ands(items[0][0], items[0][1], 0)
        for k, (pk, sel, data) in enumerate(items):
            if k + 1 < len(items): ands(items[k+1][0], items[k+1][1], k + 1)
            if pre: pre(k)
            mfma(data, k, first=(k == 0))
    def tagw(regs, rnd=False):
        if rnd:
            for r in regs: a(f'v_add_u32 v{r}, 0x80, v{r}')
        for r in regs: a(f'v_and_or_b32 v{r}, v{r}, s{sMSK8}, v{vTAG}')
    def check(src, dst, n):
        t = vT[7]
        for i in range(n): a(f'v_xor_b32 v{dst+i}, s{sTAG8}, v{src+i}')
        rs = [dst + i for i in range(n)]
        a(f'v_or3_b32 v{t}, v{rs[0]}, v{rs[1]}, v{rs[2]}'); rs = rs[3:]
        while rs:
            if len(rs) >= 2: a(f'v_or3_b32 v{t}, v{t}, v{rs[0]}, v{rs[1]}'); rs = rs[2:]
            else: a(f'v_or_b32 v{t}, v{t}, v{rs[0]}'); rs = []
        a(f'v_and_b32 v{t}, 0xff, v{t}\nv_cmp_ne_u32 vcc, 0, v{t}')
    npoll = [0]
    def poll(loads, n, dst, nl):
        L = f'L_poll{npoll[0]}'; npoll[0] += 1
        a(f's_mov_b32 s{sSPIN}, {spin}')
        if pipe:
            loads(pA)
            a(f'{L}:')
            loads(pB)
            a(f's_waitcnt vmcnt({nl})')
            check(pA, dst, n)
            a(f's_cbranch_vccz {L}_done')
            loads(pA)
            a(f's_waitcnt vmcnt({nl})')
            check(pB, dst, n)
            a(f'''
            s_cbranch_vccz {L}_done
            s_sub_u32 s{sSPIN}, s{sSPIN}, 1
            s_cbranch_scc0 {L}
            {L}_done:
            ''')
        else:
            a(f'{L}:')
            loads(pA)
            a('s_waitcnt vmcnt(0)')
            check(pA, dst, n)
            a(f's_cbranch_vccz {L}_done')
            if psleep: a(f's_sleep {psleep}')
            a(f's_sub_u32 s{sSPIN}, s{sSPIN}, 1\ns_cbranch_scc0 {L}\n{L}_done:')
    def lds_reduce16(base, r):
        for i in range(4): a(f'ds_read_b128 v[{r + 4*i}:{r + 4*i + 3}], v{vRA} offset:{base + 256 * i}')
    def lds_reduce16b(r):
        a('s_waitcnt lgkmcnt(2)')
        for e in range(4): a(f'v_add_f32 v{r+e}, v{r+e}, v{r+4+e}')
        a('s_waitcnt lgkmcnt(0)')
        for e in range(4): a(f'v_add_f32 v{r+8+e}, v{r+8+e}, v{r+12+e}')
        for e in range(4): a(f'v_add_f32 v{r+e}, v{r+e}, v{r+8+e}')
        a(f'''
        v_permlane32_swap_b32 v{r}, v{r+2}
        v_permlane32_swap_b32 v{r+1}, v{r+3}
        v_add_f32 v{r}, v{r}, v{r+2}
        v_add_f32 v{r+1}, v{r+1}, v{r+3}
        v_permlane16_swap_b32 v{r}, v{r+1}
        v_add_f32 v{r}, v{r}, v{r+1}
        ''')
    def write_d_rr(base):
        a(f'''
        s_mov_b32 exec_lo, 0x00ff00ff
        s_mov_b32 exec_hi, 0xff00ff00
        ds_write_b128 v{vDA2}, v[{vD}:{vD+3}] offset:{base}
        s_mov_b64 exec, -1
        s_waitcnt lgkmcnt(0)
        s_barrier
        ''')
    def lds_add(off, rtn=None):
        a(f'v_mov_b32 v{vT[6]}, 1\ns_mov_b64 exec, 1')
        if rtn: a(f'ds_add_rtn_u32 v{vT[6]}, v{vZ}, v{vT[6]} offset:{off}')
        else: a(f'ds_add_u32 v{vZ}, v{vT[6]} offset:{off}')
        a('s_mov_b64 exec, -1')
    ngate = [0]
    def lds_gate(off, val):
        L = f'L_gate{ngate[0]}'; ngate[0] += 1
        a(f'''
        {L}:
        ds_read_b32 v{vT[6]}, v{vZ} offset:{off}
        s_waitcnt lgkmcnt(0)
        v_cmp_gt_u32 vcc, {val}, v{vT[6]}
        s_cbranch_vccz {L}_done
        s_sleep 2
        s_branch {L}
        {L}_done:
        ''')

    a(f'''
    s_cmp_ge_u32 s2, 256
    s_cbranch_scc1 L_end
    s_load_dwordx16 s[16:31], s[0:1], 0
    s_load_dwordx8 s[32:39], s[0:1], 64
    ''')
    if stamps: a(f's_memrealtime s[98:99]\nv_mov_b32 v{vSTAMP}, 0')
    a(f'''
    v_lshrrev_b32 v{vT[0]}, 6, v0
    v_and_b32 v{vLANE}, 63, v0
    v_readfirstlane_b32 s{sW}, v{vT[0]}
    v_lshrrev_b32 v{vG}, 4, v{vLANE}
    v_and_b32 v{vC}, 15, v{vLANE}
    v_lshlrev_b32 v{vKV}, 4, v{vLANE}
    v_mov_b32 v{vZ}, 0
    s_and_b32 s{sPAR}, s2, 1
    ''')
    if mapping == 'all':
        a(f's_lshr_b32 s{sH}, s2, 3\ns_and_b32 s{sS}, s2, 7')
    elif mapping == 'pair':
        a(f'''
        s_and_b32 s{sH}, s2, 6
        s_lshl_b32 s{sH}, s{sH}, 2
        s_lshr_b32 s{sT0}, s2, 5
        s_add_u32 s{sH}, s{sH}, s{sT0}
        s_lshr_b32 s{sS}, s2, 2
        s_and_b32 s{sS}, s{sS}, 6
        s_or_b32 s{sS}, s{sS}, s{sPAR}
        ''')
    else:
        a(f'''
        s_and_b32 s{sH}, s2, 2
        s_lshl_b32 s{sH}, s{sH}, 3
        s_lshr_b32 s{sT0}, s2, 4
        s_add_u32 s{sH}, s{sH}, s{sT0}
        s_lshr_b32 s{sS}, s2, 1
        s_and_b32 s{sS}, s{sS}, 6
        s_or_b32 s{sS}, s{sS}, s{sPAR}
        ''')
    a(f'''
    s_lshl_b32 s{sT1}, s{sH}, 8
    s_mul_i32 s{sT2}, s{sS}, {80 * 8192}
    s_add_u32 s{sT1}, s{sT1}, s{sT2}
    s_mov_b32 s42, {80 * 8192}
    s_mov_b32 s43, 0x20000
    s_mov_b32 s50, 1280
    s_mov_b32 s51, 0x20000
    s_mov_b32 s46, {WS_END}
    s_mov_b32 s47, 0x20000
    v_lshlrev_b32 v{vT[1]}, 13, v{vG}
    v_lshl_add_u32 v{vT[1]}, v{vC}, 4, v{vT[1]}
    v_lshlrev_b32 v{vT[2]}, 2, v{vLANE}
    v_lshl_add_u32 v{vT[3]}, v{vC}, 2, v{vG}
    v_lshlrev_b32 v{vT[3]}, 1, v{vT[3]}
    s_mul_i32 s{sT3}, s{sS}, 160
    s_lshr_b32 s{sIDX}, s{sS}, 1
    s_lshl_b32 s{sIDX}, s{sIDX}, 2
    s_and_b32 s{sT2}, s{sW}, 3
    s_add_u32 s{sIDX}, s{sIDX}, s{sT2}
    s_mul_i32 s{sROT}, s{sH}, {HROT}
    s_cmp_lt_u32 s{sW}, 4
    s_cselect_b32 s{sT2}, 0, {OY}
    s_add_u32 s{sIDX}, s{sIDX}, s{sT2}
    s_add_u32 s{sIDX}, s{sIDX}, s{sROT}
    s_lshl_b32 s{sOFF0}, s{sPAR}, 4
    s_add_u32 s{sOFF0}, s{sOFF0}, s{sIDX}
    s_lshl_b32 s{sOFF0}, s{sOFF0}, 12
    s_and_b32 s{sOFF0}, s{sOFF0}, 0x3fffff
    s_lshl_b32 s{sT0}, s{sH}, 22
    s_mul_i32 s{sCTR}, s{sH}, {CTRS}
    s_add_u32 s{sCTR}, s{sCTR}, {CTR}
    s_mov_b32 s10, 0x400000
    s_mov_b32 s11, 0x20000
    s_waitcnt lgkmcnt(0)
    s_mov_b32 s48, s16
    s_mov_b32 s49, s17
    s_add_u32 s40, s22, s{sT1}
    s_addc_u32 s41, s23, 0
    s_add_u32 s8, s18, s{sT0}
    s_addc_u32 s9, s19, 0
    s_mov_b32 s44, s38
    s_mov_b32 s45, s39
    s_load_dword s{sTAG}, s[38:39], {EPOCH}
    ''')
    if stamps: a(f'v_writelane_b32 v{vSTAMP}, s98, 0')
    vX = gat; vXS = gat + 5
    a(f'''
    s_cmp_lg_u32 s{sW}, 0
    s_cbranch_scc1 L_noq1
    s_cmp_eq_u32 s{sS}, 0
    s_cselect_b32 s{sT1}, s{sCTR}, {OOB:#x}
    s_mov_b64 exec, 1
    buffer_store_dword v{vZ}, v{vZ}, {WS_}, s{sT1} offen sc1
    s_mov_b64 exec, -1
    ''')
    for i in range(20):
        if i: a(f's_mov_b32 s{sT1}, {i * 32768}')
        vm(('wq', i), f'buffer_load_dwordx4 v[{wqs + 4*i}:{wqs + 4*i + 3}], v{vT[1]}, {WQ_}, {"0" if i == 0 else "s%d" % sT1} offen {wqflags}')
        if i == 3:
            for k in range(5): vm('x', f'buffer_load_dword v{vX + k}, v{vT[2]}, {X_}, 0 offen offset:{256 * k}')
            vm('x', f'buffer_load_ushort v{vXS}, v{vT[3]}, {X_}, s{sT3} offen')
            vm('x', f'buffer_load_ushort v{vXS + 1}, v{vT[3]}, {X_}, s{sT3} offen offset:128')
    a('L_noq1:\ns_barrier')

    def issue_static(m, n, x, NX, track=True):
        k, i = divmod(n, U)
        so = sOFF
        if 8 <= k < 8 + NX: so = sEX0 + k - 8
        elif i == 0:
            if k == 0: a(f's_mov_b32 s{sOFF}, s{sOFF0}')
            else: a(f's_add_u32 s{sOFF}, s{sOFF}, {32 * 4096}\ns_and_b32 s{sOFF}, s{sOFF}, 0x3fffff')
        r = ring + (x % S) * 4
        txt = f'buffer_load_dwordx4 v[{r}:{r+3}], v{vKV}, {K_ if m == "K" else V_}, s{so} offen offset:{i * 1024} {kvflags if m == "K" else vflags}'
        if track: vm(('r', x), txt)
        else: a(txt)
    assert min(NOo, NOy) * U >= S
    def lanemask(nvalid):
        nvalid = max(0, min(16, nvalid))
        m = (1 << nvalid) - 1
        return m | (m << 16)
    def common_setup():
        a(f'''
        s_add_u32 s12, s20, s{sT0}
        s_addc_u32 s13, s21, 0
        s_mov_b32 s14, 0x400000
        s_mov_b32 s15, 0x20000
        s_lshl_b32 s{sSLOT}, s{sH}, 3
        s_add_u32 s{sSLOT}, s{sSLOT}, s{sS}
        s_and_b32 s{sGAM}, s2, 7
        s_lshr_b32 s{sT1}, s2, 3
        s_lshl_b32 s{sT2}, s{sGAM}, 2
        s_add_u32 s{sT1}, s{sT1}, s{sT2}
        s_and_b32 s{sT1}, s{sT1}, 31
        s_lshr_b32 s{sFS}, s{sT1}, 1
        s_lshl_b32 s{sFS}, s{sFS}, 3
        s_add_u32 s{sFS}, s{sFS}, s{sGAM}
        s_cmp_lt_u32 s{sFS}, 27
        s_cselect_b32 s{sROLE}, 2, 0
        s_mov_b32 s{sLIM}, {NCH}
        s_cselect_b32 s{sLIM}, {max(0, NCH - gstop)}, s{sLIM}
        s_lshl_b32 s{sFS}, s{sFS}, 1
        s_and_b32 s{sT2}, s{sT1}, 1
        s_add_u32 s{sFS}, s{sFS}, s{sT2}
        s_sub_u32 s{sCS}, s{sT1}, 8
        s_cmp_lt_u32 s{sCS}, 10
        s_cselect_b32 s{sROLE}, 1, s{sROLE}
        s_cselect_b32 s{sLIM}, {max(0, NCH - wstop)}, s{sLIM}
        ''')
        for b, p, n in ((52, 24, 4096 * 1280), (56, 28, 640 * 3456), (60, 30, 640 * 3456), (64, 32, 1728 * 1280), (68, 34, 1280)):
            a(f's_mov_b32 s{b}, s{p}\ns_mov_b32 s{b+1}, s{p+1}\ns_mov_b32 s{b+2}, {n}\ns_mov_b32 s{b+3}, 0x20000')
        a(f'''
        s_mov_b32 s16, 0xcccccccc
        s_mov_b32 s17, 0xcccccccc
        s_mov_b32 s18, 0xaaaaaaaa
        s_mov_b32 s19, 0xaaaaaaaa
        s_mov_b32 s26, 0x00ff00ff
        s_mov_b32 s27, 0x00ff00ff
        s_mov_b32 s{sC1}, {LOG2E:#x}
        s_mov_b32 s{sC2}, 0xffff0000
        s_mov_b32 s{sMSK8}, 0xffffff00
        v_add_u32 v{vKV2}, 4096, v{vKV}
        v_and_b32 v{vT[5]}, 1, v{vC}
        v_lshlrev_b32 v{vT[5]}, 4, v{vT[5]}
        v_mov_b32 v{vT[6]}, 0xffff
        v_lshlrev_b32 v{vT[5]}, v{vT[5]}, v{vT[6]}
        v_bfe_u32 v{vT[6]}, v{vC}, 1, 2
        ''')
        for jj in range(4):
            a(f'v_cmp_eq_u32 vcc, {jj}, v{vT[6]}\nv_cndmask_b32 v{vMASK + jj}, 0, v{vT[5]}, vcc')
        a(f'''
        v_lshlrev_b32 v{vDA}, 5, v{vC}
        v_lshl_add_u32 v{vDA}, v{vG}, 4, v{vDA}
        s_waitcnt lgkmcnt(0)
        s_add_u32 s{sTAG}, s{sTAG}, 1
        s_and_b32 s{sTAG8}, s{sTAG}, 0xff
        v_mov_b32 v{vTAG}, s{sTAG8}
        ''')
    a(f's_cmp_eq_u32 s{sW}, 0\ns_cbranch_scc1 L_q')
    for x in range(4): issue_static('K', x, x, 0, track=False)
    a('L_q:')
    common_setup()
    a(f's_cmp_eq_u32 s{sW}, 0\ns_cbranch_scc1 L_q2')
    if (gstart or wstart) and not now:
        a(f'''
        s_cmp_lt_u32 s{sW}, 4
        s_cbranch_scc1 L_dma_done
        v_bfe_u32 v{vT[0]}, v{vLANE}, 3, 1               ; rr
        s_and_b32 s{sT3}, s{sW}, 3
        s_cmp_eq_u32 s{sROLE}, 2
        s_cbranch_scc1 L_dma_g
        s_cmp_eq_u32 s{sROLE}, 1
        s_cbranch_scc0 L_dma_done
        ''')
        if wstart:
            a(f'''
            v_lshrrev_b32 v{vT[4]}, 1, v{vG}
            v_lshlrev_b32 v{vT[4]}, 5, v{vT[4]}
            v_lshl_add_u32 v{vT[4]}, v{vT[0]}, 4, v{vT[4]}
            v_and_b32 v{vT[2]}, 1, v{vG}
            v_lshl_add_u32 v{vT[4]}, v{vT[2]}, 1, v{vT[4]}
            v_mul_u32_u24 v{vT[4]}, 1280, v{vT[4]}
            v_and_b32 v{vT[1]}, 7, v{vLANE}
            v_lshl_add_u32 v{vT[4]}, v{vT[1]}, 4, v{vT[4]}
            s_lshl_b32 s{sT0}, s{sGAM}, 9
            s_lshl_b32 s{sT1}, s{sT3}, 7
            s_add_u32 s{sT0}, s{sT0}, s{sT1}
            s_mul_i32 s{sT0}, s{sT0}, 1280
            s_lshl_b32 s{sT1}, s{sCS}, 7
            s_add_u32 s{sT0}, s{sT0}, s{sT1}
            s_lshl_b32 s{sT3}, s{sT3}, 14
            s_add_u32 s{sT3}, s{sT3}, {L_WT}
            ''')
            for half in range(2):
                for n in range(4):
                    for k in range(2):
                        a(f's_add_u32 m0, s{sT3}, {(8 * half + 4 * k + n) * 1024}\ns_add_u32 s{sT1}, s{sT0}, {(half * 64 + 4 * n + k) * 1280}')
                        a(f'buffer_load_dwordx4 v{vT[4]}, {WO_}, s{sT1} offen {wflags} lds')
        a('s_branch L_dma_done\nL_dma_g:')
        if gstart:
            a(f'''
            v_lshl_add_u32 v{vT[4]}, v{vG}, 1, v{vT[0]}
            v_mul_u32_u24 v{vT[4]}, 3456, v{vT[4]}
            v_and_b32 v{vT[5]}, 3, v{vLANE}
            v_lshl_add_u32 v{vT[4]}, v{vT[5]}, 4, v{vT[4]}
            s_mul_i32 s{sT0}, s{sT3}, {160 * 3456}
            s_lshl_b32 s{sT1}, s{sFS}, 6
            s_add_u32 s{sT0}, s{sT0}, s{sT1}
            s_mul_i32 s{sT3}, s{sT3}, {20 * 1024}
            s_add_u32 s{sT3}, s{sT3}, {L_WT}
            ''')
            for i in range(20):
                a(f's_add_u32 m0, s{sT3}, {i * 1024}\ns_add_u32 s{sT1}, s{sT0}, {8 * i * 3456}')
                a(f's_mov_b32 exec_lo, 0x0f0f0f0f\ns_mov_b32 exec_hi, 0x0f0f0f0f')
                a(f'buffer_load_dwordx4 v{vT[4]}, {WG_}, s{sT1} offen {gflags} lds')
                a(f's_mov_b32 exec_lo, 0xf0f0f0f0\ns_mov_b32 exec_hi, 0xf0f0f0f0')
                a(f'buffer_load_dwordx4 v{vT[4]}, {WU_}, s{sT1} offen {gflags} lds')
            a('s_mov_b64 exec, -1')
        a('L_dma_done:')
    for x in range(4, S): issue_static('K', x, x, 0, track=False)
    a('s_branch L_qdone\nL_q2:')
    a(f'ds_write_b32 v{vZ}, v{vZ} offset:{L_CNT}\nds_write_b32 v{vZ}, v{vZ} offset:{L_CNT+4}\nds_write_b32 v{vZ}, v{vZ} offset:{L_CNT+8}')
    wait('x')
    xs = vACC
    for i in range(5):
        a(f'v_lshlrev_b32 v{xs + 2*i}, 16, v{vX + i}\nv_and_b32 v{xs + 2*i + 1}, s{sC2}, v{vX + i}')
    sm = vT[0]
    a(f'v_add_f32 v{sm}, v{xs}, v{xs+1}')
    for i in range(2, 10): a(f'v_add_f32 v{sm}, v{sm}, v{xs + i}')
    allreduce(sm, 'v_add_f32', vT[2])
    a(f'v_mul_f32 v{sm}, {INV640:#x}, v{sm}')
    vv = vT[3]
    for i in range(10): a(f'v_sub_f32 v{xs + i}, v{xs + i}, v{sm}')
    a(f'v_mul_f32 v{vv}, v{xs}, v{xs}')
    for i in range(1, 10): a(f'v_fmac_f32 v{vv}, v{xs + i}, v{xs + i}')
    allreduce(vv, 'v_add_f32', vT[2])
    a(f'v_mul_f32 v{vv}, {INV640:#x}, v{vv}')
    ln_consts(sm, vv, vT[4], vT[5], vT[6])
    for i in range(2): a(f'v_lshlrev_b32 v{vXS + i}, 16, v{vXS + i}')
    ln_apply([vXS, vXS + 1], vT[4], vT[5], vT[6], [vT[1], vT[2]])
    stamp('ln')
    onehot_chain([(vXS + i // 16, f'row_newbcast:{i % 16}', wqs + 4 * i) for i in range(20)],
                 pre=lambda k: wait(('wq', k + 1)) if k % 2 == 0 else None)
    g = gat
    a(f's_lshl_b32 s{sT0}, s{sSLOT}, 9\ns_add_u32 s{sT0}, s{sT0}, {QS:#x}')
    tagw([vD + i for i in range(4)], rnd=True)
    a(f'''
    s_mov_b32 exec_hi, 0
    buffer_store_dwordx4 v[{vD}:{vD+3}], v{vDA}, {WS_}, s{sT0} offen sc1
    s_mov_b64 exec, -1
    ''')
    stamp('qpub')
    for x in range(n0): issue_static('K', x, x, 0, track=False)
    a(f'''
    s_lshl_b32 s{sT0}, s{sH}, 12
    s_add_u32 s{sT0}, s{sT0}, {QS:#x}
    s_mov_b32 s{sSPIN}, {spin}
    L_qpoll:
    ''')
    for i in range(4):
        a(f'buffer_load_dwordx4 v[{pA+4*i}:{pA+4*i+3}], v{vKV}, {WS_}, s{sT0} offen offset:{i * 1024} sc1')
    a('s_waitcnt vmcnt(0)')
    check(pA, g, 16)
    a(f'''
    s_cbranch_vccz L_qpoll_done
    s_sub_u32 s{sSPIN}, s{sSPIN}, 1
    s_cbranch_scc0 L_qpoll
    L_qpoll_done:
    ''')
    stamp('qgot')
    for e in range(4): a(f'v_add_f32 v{g+e}, v{g+e}, v{g+4+e}\nv_add_f32 v{g+8+e}, v{g+8+e}, v{g+12+e}')
    for e in range(4): a(f'v_add_f32 v{g+e}, v{g+e}, v{g+8+e}')
    a(f'''
    v_and_b32 v{vT[0]}, 31, v{vLANE}
    v_lshrrev_b32 v{vT[1]}, 5, v{vLANE}
    v_permlane32_swap_b32 v{g}, v{g+2}
    v_permlane32_swap_b32 v{g+1}, v{g+3}
    v_lshl_add_u32 v{vT[0]}, v{vT[0]}, 1, v{vT[1]}
    v_add_f32 v{g}, v{g}, v{g+2}
    v_add_f32 v{g+1}, v{g+1}, v{g+3}
    v_lshlrev_b32 v{vT[0]}, 2, v{vT[0]}
    v_cvt_pk_bf16_f32 v{g}, v{g}, v{g+1}
    ds_write_b32 v{vT[0]}, v{g} offset:{L_Q}
    s_waitcnt lgkmcnt(0)
    s_barrier
    ''')
    for x in range(n0, S): issue_static('K', x, x, 0, track=False)
    a('s_branch L_qread\nL_qdone:\ns_barrier\nL_qread:')
    a(f'''
    v_lshlrev_b32 v{vT[0]}, 4, v{vC}
    ds_read_b128 v[{vQ}:{vQ+3}], v{vT[0]} offset:{L_Q}
    s_lshl_b32 s{sT0}, s{sW}, 9
    v_add_u32 v{vDA}, s{sT0}, v{vDA}
    s_waitcnt lgkmcnt(0)
    ''')
    stamp('q')

    def reduce_tile(s, n, valid):
        A = [vACC + i if i < n else None for i in range(16)]
        B = []
        for jj in range(8):
            x, y = A[jj], A[jj + 8]
            if x is None: B.append(None); continue
            if y is None: a(f'v_add_f32_dpp v{x}, v{x}, v{x} row_ror:8 {DPPF}')
            else: a(f'v_add_f32_dpp v{x}, v{x}, v{x} row_ror:8 row_mask:0xf bank_mask:0x3')
            B.append(x)
        for jj in range(8):
            x, y = A[jj], A[jj + 8]
            if x is not None and y is not None:
                a(f'v_add_f32_dpp v{x}, v{y}, v{y} row_ror:8 row_mask:0xf bank_mask:0xc')
        C = []
        for jj in range(4):
            x = B[jj]
            d = vACC + 8 + jj
            a(f'v_add_f32_dpp v{d}, v{x}, v{x} row_shl:4 row_mask:0xf bank_mask:0x5')
            C.append(d)
        for jj in range(4):
            x, y = B[jj], B[jj + 4]
            z = y if y is not None else x
            a(f'v_add_f32_dpp v{C[jj]}, v{z}, v{z} row_shr:4 row_mask:0xf bank_mask:0xa')
        for jj in range(4): a(f'v_add_f32_dpp v{C[jj]}, v{C[jj]}, v{C[jj]} quad_perm:[2,3,0,1] {DPPF}')
        a(f'v_cndmask_b32 v{C[0]}, v{C[0]}, v{C[2]}, {sM1}\nv_cndmask_b32 v{C[1]}, v{C[1]}, v{C[3]}, {sM1}')
        for jj in range(2): a(f'v_add_f32_dpp v{C[jj]}, v{C[jj]}, v{C[jj]} quad_perm:[1,0,3,2] {DPPF}')
        a(f'v_cndmask_b32 v{s}, v{C[0]}, v{C[1]}, {sM0}')
        rbf(s, s)
        a(f'v_mul_f32 v{s}, {SCALE:#x}, v{s}')
        rbf(s, s)
        if valid:
            a(f'v_mov_b32 v{C[0]}, {NEGINF:#x}\nv_cndmask_b32 v{s}, v{C[0]}, v{s}, {valid}')
    def dots(r0, r1, a0):
        for jj in range(4):
            a(f'v_dot2_f32_bf16 v{a0}, v{r0 + jj}, v{vQ + jj}, {"0" if jj == 0 else "v%d" % a0}')
            a(f'v_dot2_f32_bf16 v{a0+1}, v{r1 + jj}, v{vQ + jj}, {"0" if jj == 0 else "v%d" % (a0+1)}')
    def claim():
        a(f'v_mov_b32 v{vTK}, 1\ns_mov_b64 exec, 1')
        vm('A', f'buffer_atomic_add v{vTK}, v{vZ}, {WS_}, s{sAOFF} offen sc0 sc1')
        a('s_mov_b64 exec, -1')
    def ticket():
        a(f'''
        v_readfirstlane_b32 s{sT0}, v{vTK}
        s_cmp_eq_u32 s{sAOFF}, s{sCTR}
        s_cselect_b32 s{sT0}, s{sT0}, {NCH}
        s_cmp_lt_u32 s{sT0}, s{sLIM}
        s_cselect_b32 s{sAOFF}, s{sCTR}, {OOB:#x}
        s_lshl_b32 s{sNXT}, s{sT0}, 1
        s_add_u32 s{sNXT}, s{sNXT}, s{sROT}
        s_add_u32 s{sNXT}, s{sNXT}, {OP}
        s_lshl_b32 s{sNXT}, s{sNXT}, 12
        s_and_b32 s{sNXT}, s{sNXT}, 0x3fffff
        s_cmp_lt_u32 s{sT0}, {NCH}
        s_cselect_b32 s{sNXT}, s{sNXT}, {OOB:#x}
        ''')
    def write_ml():
        a(f'''
        s_lshl_b32 s{sT0}, s{sW}, 2
        v_mov_b32 v{vT[3]}, s{sT0}
        ds_write_b32 v{vT[3]}, v{vM} offset:{L_M}
        ds_write_b32 v{vT[3]}, v{vL} offset:{L_L}
        ''')

    def stream(NE, NO, dyn, tg):
        NL = NE * U
        NT = (NL + 15) // 16
        N = 2 * NL
        assert NE - NO <= 2
        for e in range(NE - NO):
            a(f'''
            s_add_u32 s{sEX0 + e}, s{sIDX}, {NO * 32 + e * 16}
            s_lshl_b32 s{sEX0 + e}, s{sEX0 + e}, 12
            s_and_b32 s{sEX0 + e}, s{sEX0 + e}, 0x3fffff
            s_cmp_eq_u32 s{sPAR}, 0
            s_cselect_b32 s{sEX0 + e}, s{sEX0 + e}, {OOB:#x}
            ''')
        sVAL = {}
        free = [sVa, sVb]
        for t in range(NT):
            me = sum(1 << c for c in range(16) if 16 * t + c < NL)
            mo = sum(1 << c for c in range(16) if 16 * t + c < NL and not (32 <= 16 * t + c < 32 + 4 * (NE - NO)))
            if me == 0xffff and mo == 0xffff: continue
            sp = free.pop(0); lo = int(sp[2:].split(':')[0])
            sVAL[t] = sp
            a(f's_mov_b32 s{lo}, {me * 0x10001:#x}\ns_mov_b32 s{lo+1}, {mo * 0x10001:#x}\ns_cmp_eq_u32 s{sPAR}, 0\ns_cselect_b32 s{lo}, s{lo}, s{lo+1}\ns_mov_b32 s{lo+1}, s{lo}')
        q.clear()
        for x in range(S): q.append(('r', x))
        dK = [ring + ((N + i) % S) * 4 for i in range(8)]
        dV = [ring + ((N + 8 + i) % S) * 4 for i in range(8)]
        def dload(m, i):
            r = (dK if m == 'K' else dV)[i]
            vm(('d' + m, i), f'buffer_load_dwordx4 v[{r}:{r+3}], v{vKV if i < 4 else vKV2}, {K_ if m == "K" else V_}, s{sNXT} offen offset:{(i % 4) * 1024} {kvflags if m == "K" else vflags}')
        issued = [S]
        NTOT = N + (16 if dyn else 0)
        if dyn: a(f's_mov_b32 s{sAOFF}, s{sCTR}')
        def refill(upto):
            while issued[0] < min(NTOT, upto):
                x = issued[0]
                if x < N:
                    issue_static('K' if x < NL else 'V', x % NL, x, NE - NO)
                    if dyn and x == N - LA - 4: claim()
                else:
                    if x == N:
                        wait('A')
                        ticket()
                        a(f's_cbranch_scc1 L_t0ok')
                        lds_add(L_CNT)
                        a('L_t0ok:')
                    i = x - N
                    dload('K' if i < 8 else 'V', i % 8)
                    if i == 7: claim()
                issued[0] += 1
        for x in range(0, NL, 2):
            wait(('r', x + 1))
            dots(ring + (x % S) * 4, ring + ((x + 1) % S) * 4, vACC + x % 16)
            la = S if (not dyn or x + 2 + S <= NL) else max(LA, NL - (x + 2))
            refill(x + 2 + la)
            if (x + 2) % 16 == 0 or x + 2 == NL:
                t = x // 16
                reduce_tile(vSC[t], x + 2 - 16 * t, sVAL.get(t))
        a(f'v_max_f32 v{vM}, v{vSC[0]}, v{vSC[1]}')
        for t in range(2, NT): a(f'v_max_f32 v{vM}, v{vM}, v{vSC[t]}')
        allreduce(vM, 'v_max_f32', vT[1])
        for t in range(NT): a(f'v_sub_f32 v{vSC[t]}, v{vSC[t]}, v{vM}')
        for t in range(NT): a(f'v_mul_f32 v{vSC[t]}, s{sC1}, v{vSC[t]}')
        for t in range(NT): a(f'v_exp_f32 v{vSC[t]}, v{vSC[t]}')
        for t in range(NT): a(f'v_cvt_pk_bf16_f32 v{vSC[t]}, v{vSC[t]}, v{vSC[t]}')
        a(f'v_lshlrev_b32 v{vL}, 16, v{vSC[0]}')
        for t in range(1, NT): a(f'v_lshlrev_b32 v{vT[3]}, 16, v{vSC[t]}\nv_add_f32 v{vL}, v{vL}, v{vT[3]}')
        allreduce(vL, 'v_add_f32', vT[1])
        write_ml()
        stamp('k')
        ands(vSC[0], 'row_newbcast:0', 0)
        for n in range(NL):
            x = NL + n
            if n + 1 < NL: ands(vSC[(n+1) // 16], f'row_newbcast:{(n+1) % 16}', n + 1)
            wait(('r', x))
            mfma(ring + (x % S) * 4, n, first=(n == 0))
            if n % 2 == 1: refill(x + 1 + (LA if dyn else S))
        if not dyn: return
        assert issued[0] == NTOT
        stamp('s')
        a(f's_cmp_eq_u32 s{sNXT}, {OOB:#x}\ns_cbranch_scc0 L_dyn\ns_waitcnt vmcnt(0)\ns_branch L_dyn_done\nL_dyn:')
        def body(more):
            q.clear()
            for i in range(8): q.append(('dV', i))
            old = list(q)
            for i in range(0, 8, 2):
                dots(dK[i], dK[i+1], vACC + i)
                if more: dload('K', i); dload('K', i + 1)
            if more: claim()
            s = vSC[0]
            reduce_tile(s, 8, sLO8)
            mn = vT[0]
            a(f'v_max_f32 v{mn}, v{s}, v{vM}')
            allreduce(mn, 'v_max_f32', vT[1])
            a(f'''
            v_sub_f32 v{s}, v{s}, v{mn}
            v_sub_f32 v{vT[2]}, v{vM}, v{mn}
            v_mul_f32 v{s}, s{sC1}, v{s}
            v_mul_f32 v{vT[2]}, s{sC1}, v{vT[2]}
            v_exp_f32 v{s}, v{s}
            v_exp_f32 v{vT[2]}, v{vT[2]}
            v_mov_b32 v{vM}, v{mn}
            v_cvt_pk_bf16_f32 v{s}, v{s}, v{s}
            ''')
            for e in range(4): a(f'v_mul_f32 v{vD+e}, v{vD+e}, v{vT[2]}')
            a(f'v_lshlrev_b32 v{vT[3]}, 16, v{s}')
            allreduce(vT[3], 'v_add_f32', vT[1])
            a(f'v_fma_f32 v{vL}, v{vL}, v{vT[2]}, v{vT[3]}')
            if not more: write_ml()
            ands(s, 'row_newbcast:0', 0)
            for i in range(8):
                if i + 1 < 8: ands(s, f'row_newbcast:{i+1}', i + 1)
                n = len(q) - 1 - i
                a(f's_waitcnt vmcnt({n})')
                mfma(dV[i], i)
                if more and i % 2 == 1: dload('V', i - 1); dload('V', i)
        a('s_waitcnt vmcnt(8)')
        ticket()
        a('s_cbranch_scc0 L_dyn_last')
        body(True)
        a('s_branch L_dyn\nL_dyn_last:')
        lds_add(L_CNT)
        body(False)
        a('L_dyn_done:')
    a(f's_cmp_gt_u32 s{sW}, 3\ns_cbranch_scc1 L_young')
    stream(NEo, NOo, False, 'o')
    a('s_branch L_sdone\nL_young:')
    if NCH > 0: stream(NEy, NOy, True, 'y')
    else:
        stream(NEy, NOy, False, 'y'); lds_add(L_CNT)
    a('L_sdone:')
    a(f'''
    v_lshrrev_b32 v{vT[0]}, 5, v{vLANE}          ; half
    v_and_b32 v{vT[1]}, 31, v{vLANE}
    v_lshlrev_b32 v{vT[2]}, 4, v{vT[0]}
    v_lshlrev_b32 v{vT[3]}, 11, v{vT[0]}
    v_lshl_add_u32 v{vT[3]}, v{vT[1]}, 4, v{vT[3]}
    v_mov_b32 v{vT[6]}, 1
    s_mov_b32 exec_hi, 0
    ds_write_b128 v{vDA}, v[{vD}:{vD+3}] offset:{L_OP}
    s_mov_b64 exec, 1
    ds_add_rtn_u32 v{vT[6]}, v{vZ}, v{vT[6]} offset:{L_CNT + 4}
    s_mov_b64 exec, -1
    v_lshlrev_b32 v{vT[4]}, 4, v{vT[1]}
    v_lshl_add_u32 v{vT[4]}, v{vT[0]}, 3, v{vT[4]}
    s_lshl_b32 s{sT1}, s{sSLOT}, 10
    s_add_u32 s{sT1}, s{sT1}, {P1:#x}
    s_waitcnt lgkmcnt(0)
    v_readfirstlane_b32 s{sT0}, v{vT[6]}
    ''')
    stamp('v')
    t = vACC
    mm, ll = vA[0], vA[1]
    M, L_ = vD, vD + 1
    a(f'''
    s_cmp_lg_u32 s{sT0}, 7
    s_cbranch_scc1 L_pub_done
    s_setprio 3
    ds_read_b128 v[{mm}:{mm+3}], v{vT[2]} offset:{L_M}
    ''')
    for i in range(4): a(f'ds_read_b128 v[{g + 4*i}:{g + 4*i + 3}], v{vT[3]} offset:{L_OP + 512 * i}')
    a(f'''
    ds_read_b128 v[{ll}:{ll+3}], v{vT[2]} offset:{L_L}
    v_mov_b32 v{M+2}, v{vTAG}
    v_mov_b32 v{M+3}, v{vTAG}
    s_waitcnt lgkmcnt(5)
    v_max3_f32 v{M}, v{mm}, v{mm+1}, v{mm+2}
    v_max_f32 v{M}, v{M}, v{mm+3}
    v_mov_b32 v{vT[5]}, v{M}
    v_permlane32_swap_b32 v{M}, v{vT[5]}
    v_max_f32 v{M}, v{M}, v{vT[5]}
    ''')
    for i in range(4): a(f'v_sub_f32 v{mm+i}, v{mm+i}, v{M}')
    for i in range(4): a(f'v_mul_f32 v{mm+i}, s{sC1}, v{mm+i}')
    for i in range(4): a(f'v_exp_f32 v{mm+i}, v{mm+i}')
    a('s_waitcnt lgkmcnt(0)')
    for e in range(4): a(f'v_mul_f32 v{t+e}, v{mm}, v{g + e}')
    a(f'v_mul_f32 v{L_}, v{mm}, v{ll}')
    for i in range(1, 4):
        for e in range(4): a(f'v_fmac_f32 v{t+e}, v{mm+i}, v{g + 4*i + e}')
        a(f'v_fmac_f32 v{L_}, v{mm+i}, v{ll+i}')
    a(f'''
    v_mov_b32 v{vT[5]}, v{L_}
    v_permlane32_swap_b32 v{t}, v{t+2}
    v_permlane32_swap_b32 v{t+1}, v{t+3}
    v_permlane32_swap_b32 v{L_}, v{vT[5]}
    v_add_f32 v{t}, v{t}, v{t+2}
    v_add_f32 v{t+1}, v{t+1}, v{t+3}
    v_add_f32 v{L_}, v{L_}, v{vT[5]}
    ''')
    tagw([t, t + 1, M, L_])
    a(f'''
    buffer_store_dwordx2 v[{t}:{t+1}], v{vT[4]}, {WS_}, s{sT1} offen sc1
    s_mov_b64 exec, 1
    buffer_store_dwordx4 v[{M}:{M+3}], v{vT[4]}, {WS_}, s{sT1} offen offset:512 sc1
    v_mov_b32 v{vT[6]}, 1
    ds_add_u32 v{vZ}, v{vT[6]} offset:{L_CNT + 4}
    s_mov_b64 exec, -1
    s_setprio 0
    ''')
    if 'pub' in slist:
        a(f'''
        s_memrealtime s[96:97]
        s_add_u32 s24, s38, 0x10000000
        s_addc_u32 s25, s39, 0
        s_lshl_b32 s{sT2}, s2, 6
        s_add_u32 s{sT2}, s{sT2}, {4 * 15}
        v_mov_b32 v{vT[5]}, s{sT2}
        s_waitcnt lgkmcnt(0)
        v_mov_b32 v{vT[6]}, s96
        s_mov_b64 exec, 1
        global_store_dword v{vT[5]}, v{vT[6]}, s[24:25]
        s_mov_b64 exec, -1
        ''')
    a('L_pub_done:')
    if notail: a('s_branch L_fin')
    a(f's_cmp_eq_u32 s{sROLE}, 0\ns_cbranch_scc1 L_fin')
    vDA2 = vDA; vRA = vM
    wt = ring
    a(f'''
    v_bfe_u32 v{vT[0]}, v{vLANE}, 3, 1               ; rr
    v_and_b32 v{vT[1]}, 7, v{vLANE}                  ; cc
    v_and_b32 v{vT[2]}, 1, v{vG}                     ; b4
    v_lshrrev_b32 v{vT[3]}, 1, v{vG}                 ; b5
    s_lshl_b32 s{sT3}, s{sW}, 9
    v_lshlrev_b32 v{vDA2}, 8, v{vT[0]}
    v_lshl_add_u32 v{vDA2}, v{vT[1]}, 5, v{vDA2}
    v_lshl_add_u32 v{vDA2}, v{vT[2]}, 4, v{vDA2}
    v_add_u32 v{vDA2}, s{sT3}, v{vDA2}
    v_lshlrev_b32 v{vRA}, 10, v{vG}
    v_lshl_add_u32 v{vRA}, v{vC}, 4, v{vRA}
    s_cmp_eq_u32 s{sROLE}, 2
    s_cbranch_scc1 L_g
    ''')
    nprov = [0]
    def provision(n, loads):
        L = f'L_prov{nprov[0]}'; nprov[0] += 1
        a(f'''
        s_and_b32 s{sT3}, s{sW}, 3
        s_mul_i32 s{sT3}, s{sT3}, {n * 1024}
        v_add_u32 v{vL}, s{sT3}, v{vKV}
        s_cmp_gt_u32 s{sW}, 3
        s_cbranch_scc1 {L}_y
        ''')
        loads()
        a('s_waitcnt vmcnt(0)')
        for i in range(n): a(f'ds_write_b128 v{vL}, v[{wt + 4*(n+i)}:{wt + 4*(n+i) + 3}] offset:{L_WT + 1024 * i}')
        lds_add(L_CNT + 8)
        a(f's_branch {L}_d\n{L}_y:')
        lds_gate(L_CNT + 8, 4)
        for i in range(n): a(f'ds_read_b128 v[{wt + 4*i}:{wt + 4*i + 3}], v{vL} offset:{L_WT + 1024 * i}')
        a(f'{L}_d:\ns_waitcnt lgkmcnt(0)')
    def w_loads():
        a(f'''
        v_lshlrev_b32 v{vT[4]}, 5, v{vT[3]}
        v_lshl_add_u32 v{vT[4]}, v{vT[0]}, 4, v{vT[4]}
        v_lshl_add_u32 v{vT[4]}, v{vT[2]}, 1, v{vT[4]}
        v_mul_u32_u24 v{vT[4]}, 1280, v{vT[4]}
        v_lshl_add_u32 v{vT[4]}, v{vT[1]}, 4, v{vT[4]}
        s_lshl_b32 s{sT0}, s{sGAM}, 9
        s_lshl_b32 s{sT1}, s{sW}, 6
        s_add_u32 s{sT0}, s{sT0}, s{sT1}
        s_mul_i32 s{sT0}, s{sT0}, 1280
        s_lshl_b32 s{sT1}, s{sCS}, 7
        s_add_u32 s{sT0}, s{sT0}, s{sT1}
        ''')
        if wgate: lds_gate(L_CNT, wgate)
        stamp('gate')
        if now: return
        for half in (1, 0):
            for n in range(4):
                a(f's_add_u32 s{sT1}, s{sT0}, {(half * 256 + 4 * n) * 1280}')
                for k in range(2):
                    r = wt + 4 * (8 * half + 4 * k + n)
                    a(f'buffer_load_dwordx4 v[{r}:{r+3}], v{vT[4]}, {WO_}, s{sT1} offen offset:{k * 1280} {wflags}')
    def fetch(n):
        a(f's_mul_i32 s{sT3}, s{sW}, {n * 1024}\nv_add_u32 v{vL}, s{sT3}, v{vKV}')
        lds_gate(L_CNT, 4)
        for i in range(n): a(f'ds_read_b128 v[{wt + 4*i}:{wt + 4*i + 3}], v{vL} offset:{L_WT + 1024 * i}')
        a('s_waitcnt lgkmcnt(0)')
    if wstart: fetch(8)
    else: provision(8, w_loads)
    stamp('gw')
    a(f'''
    v_bfe_u32 v{vT[4]}, v{vLANE}, 2, 1
    v_lshl_add_u32 v{vT[4]}, v{vG}, 1, v{vT[4]}      ; s
    v_lshlrev_b32 v{vT[4]}, 10, v{vT[4]}
    v_and_b32 v{vT[5]}, 3, v{vLANE}
    v_lshl_add_u32 v{vT[5]}, v{vT[0]}, 2, v{vT[5]}   ; chunk
    v_lshl_add_u32 v{vT[5]}, v{vT[5]}, 4, v{vT[4]}
    s_lshl_b32 s{sT0}, s{sGAM}, 2
    s_lshr_b32 s{sT1}, s{sW}, 1
    s_add_u32 s{sT0}, s{sT0}, s{sT1}
    s_lshl_b32 s{sT0}, s{sT0}, 13
    s_add_u32 s{sT0}, s{sT0}, {P1:#x}
    s_and_b32 s{sT1}, s{sW}, 1
    s_lshl_b32 s{sT1}, s{sT1}, 8
    s_add_u32 s{sT1}, s{sT1}, s{sT0}
    s_mul_i32 s{sT2}, s{sGAM}, 2560
    s_lshl_b32 s{sT3}, s{sCS}, 8
    s_add_u32 s{sT2}, s{sT2}, s{sT3}
    s_add_u32 s{sT2}, s{sT2}, {P2:#x}
    v_lshl_add_u32 v{vT[0]}, v{vC}, 2, v{vG}
    v_lshlrev_b32 v{vT[0]}, 2, v{vT[0]}
    ''')
    lds_gate(L_CNT + 4, 9)
    def ld1(b):
        a(f'buffer_load_dwordx4 v[{b+8}:{b+11}], v{vT[4]}, {WS_}, s{sT0} offen offset:512 sc1')
        a(f'buffer_load_dwordx4 v[{b}:{b+3}], v{vT[5]}, {WS_}, s{sT1} offen sc1')
        a(f'buffer_load_dwordx4 v[{b+4}:{b+7}], v{vT[5]}, {WS_}, s{sT1} offen offset:128 sc1')
    poll(ld1, 12, g, 3)
    stamp('h1')
    mS, lS = g + 8, g + 9
    M = vT[2]; tt = vT[3]
    a(f'''
    v_max_f32_dpp v{M}, v{mS}, v{mS} row_half_mirror {DPPF}
    v_mov_b32 v{tt}, v{M}
    v_permlane16_swap_b32 v{M}, v{tt}
    v_max_f32 v{M}, v{M}, v{tt}
    v_mov_b32 v{tt}, v{M}
    v_permlane32_swap_b32 v{M}, v{tt}
    v_max_f32 v{M}, v{M}, v{tt}
    v_sub_f32 v{mS}, v{mS}, v{M}
    v_mul_f32 v{mS}, s{sC1}, v{mS}
    v_exp_f32 v{mS}, v{mS}
    ''')
    a(f'v_mul_f32 v{lS}, v{lS}, v{mS}')
    for i in range(8): a(f'v_mul_f32 v{g+i}, v{g+i}, v{mS}')
    a(f'v_add_f32_dpp v{lS}, v{lS}, v{lS} row_half_mirror {DPPF}')
    for e in range(4): a(f'v_permlane32_swap_b32 v{g+e}, v{g+4+e}')
    a(f'v_mov_b32 v{tt}, v{lS}')
    for e in range(4): a(f'v_add_f32 v{g+e}, v{g+e}, v{g+4+e}')
    a(f'''
    v_permlane16_swap_b32 v{lS}, v{tt}
    v_permlane16_swap_b32 v{g}, v{g+2}
    v_permlane16_swap_b32 v{g+1}, v{g+3}
    v_add_f32 v{lS}, v{lS}, v{tt}
    v_add_f32 v{g}, v{g}, v{g+2}
    v_add_f32 v{g+1}, v{g+1}, v{g+3}
    v_mov_b32 v{tt}, v{lS}
    v_add_f32_dpp v{g+2}, v{g}, v{g} row_shl:4 row_mask:0xf bank_mask:0x5
    v_permlane32_swap_b32 v{lS}, v{tt}
    v_add_f32_dpp v{g+3}, v{g+1}, v{g+1} row_shl:4 row_mask:0xf bank_mask:0x5
    v_add_f32 v{lS}, v{lS}, v{tt}
    v_add_f32_dpp v{g+2}, v{g}, v{g} row_shr:4 row_mask:0xf bank_mask:0xa
    v_rcp_f32 v{tt}, v{lS}
    v_add_f32_dpp v{g+3}, v{g+1}, v{g+1} row_shr:4 row_mask:0xf bank_mask:0xa
    v_mul_f32 v{g+2}, v{g+2}, v{tt}
    v_mul_f32 v{g+3}, v{g+3}, v{tt}
    v_cvt_pk_bf16_f32 v{g+2}, v{g+2}, v{g+2}
    v_cvt_pk_bf16_f32 v{g+3}, v{g+3}, v{g+3}
    ''')
    onehot_chain([(g + 2 + i // 4, f'quad_perm:[{i%4},{i%4},{i%4},{i%4}]', wt + 4 * i) for i in range(8)])
    write_d_rr(L_ZP)
    a(f's_cmp_lg_u32 s{sW}, 0\ns_cbranch_scc1 L_fin')
    lds_reduce16(L_ZP, g)
    lds_reduce16b(g)
    tagw([g])
    a(f'buffer_store_dword v{g}, v{vT[0]}, {WS_}, s{sT2} offen sc1')
    stamp('w')
    a('s_branch L_fin')
    wD = ring + 40
    vHA = vQ; vXA = vQ + 1; vPA = vQ + 2; vWA = vQ + 3
    a(f'''
    L_g:
    v_lshl_add_u32 v{vT[4]}, v{vG}, 1, v{vT[0]}
    v_mul_u32_u24 v{vT[4]}, 3456, v{vT[4]}
    v_and_b32 v{vT[5]}, 3, v{vLANE}
    v_lshl_add_u32 v{vT[4]}, v{vT[5]}, 4, v{vT[4]}
    s_mul_i32 s{sT0}, s{sW}, {80 * 3456}
    s_lshl_b32 s{sT1}, s{sFS}, 6
    s_add_u32 s{sT0}, s{sT0}, s{sT1}
    v_lshl_add_u32 v{vHA}, v{vG}, 1, v{vT[0]}
    v_lshl_add_u32 v{vHA}, v{vT[5]}, 3, v{vHA}
    s_mul_i32 s{sT3}, s{sW}, 80
    v_add_u32 v{vHA}, s{sT3}, v{vHA}
    v_lshlrev_b32 v{vHA}, 2, v{vHA}
    v_mul_u32_u24 v{vWA}, 1280, v{vG}
    v_lshl_add_u32 v{vWA}, v{vC}, 4, v{vWA}
    v_lshlrev_b32 v{vXA}, 5, v{vG}
    v_lshl_add_u32 v{vXA}, v{vT[1]}, 2, v{vXA}
    v_lshl_add_u32 v{vXA}, v{vT[0]}, 1, v{vXA}
    v_lshlrev_b32 v{vXA}, 1, v{vXA}
    v_lshrrev_b32 v{vPA}, 3, v{vLANE}
    v_mul_u32_u24 v{vPA}, 2560, v{vPA}
    v_lshl_add_u32 v{vPA}, v{vT[1]}, 4, v{vPA}
    ''')
    def g_loads():
        if now: return
        for half in (1, 0):
            for i in range(10):
                r = wt + 4 * (10 * half + i)
                a(f's_add_u32 s{sT1}, s{sT0}, {(half * 320 + 8 * i) * 3456}')
                a(f's_mov_b32 exec_lo, 0x0f0f0f0f\ns_mov_b32 exec_hi, 0x0f0f0f0f')
                a(f'buffer_load_dwordx4 v[{r}:{r+3}], v{vT[4]}, {WG_}, s{sT1} offen {gflags}')
                a(f's_mov_b32 exec_lo, 0xf0f0f0f0\ns_mov_b32 exec_hi, 0xf0f0f0f0')
                a(f'buffer_load_dwordx4 v[{r}:{r+3}], v{vT[4]}, {WU_}, s{sT1} offen {gflags}')
        a('s_mov_b64 exec, -1')
    if gstart: fetch(10)
    else: provision(10, g_loads)
    if dgate == 9: lds_gate(L_CNT + 4, 9)
    elif dgate: lds_gate(L_CNT, dgate)
    a(f'''
    s_mov_b64 exec, -1
    s_cmp_gt_u32 s{sW}, 4
    s_cbranch_scc1 L_g_nogather
    s_mul_i32 s{sT0}, s{sFS}, {32 * 1280}
    s_lshl_b32 s{sT2}, s{sW}, 8
    s_add_u32 s{sT0}, s{sT0}, s{sT2}
    buffer_load_dword v{vXH}, v{vXA}, {X_}, s{sT2} offen
    ''')
    if not now:
        for i in range(8):
            if i: a(f's_add_u32 s{sT0}, s{sT0}, {4 * 1280}')
            a(f'buffer_load_dwordx4 v[{wD+4*i}:{wD+4*i+3}], v{vWA}, {WD_}, s{sT0} offen {dflags}')
    a(f'''
    s_lshl_b32 s{sT1}, s{sW}, 9
    s_add_u32 s{sT0}, s{sT1}, {P2:#x}
    v_lshlrev_b32 v{vXA}, 1, v{vXA}
    v_add_u32 v{vXA}, s{sT1}, v{vXA}
    s_lshl_b32 s{sT3}, s{sW}, 3
    v_mov_b32 v{vT[0]}, s{sT3}
    s_waitcnt vmcnt(0)
    v_lshlrev_b32 v{vT[2]}, 16, v{vXH}
    v_and_b32 v{vT[3]}, s{sC2}, v{vXH}
    ''')
    if dgate != 9: lds_gate(L_CNT + 4, 9)
    stamp('gw')
    def ld2(b):
        for i in range(4): a(f'buffer_load_dwordx4 v[{b+4*i}:{b+4*i+3}], v{vPA}, {WS_}, s{sT0} offen offset:{128*i} sc1')
    poll(ld2, 16, g, 4)
    stamp('h2')
    for i in range(8): a(f'v_permlane32_swap_b32 v{g+i}, v{g+8+i}')
    for i in range(8): a(f'v_add_f32 v{g+i}, v{g+i}, v{g+8+i}')
    for i in range(4): a(f'v_permlane16_swap_b32 v{g+i}, v{g+4+i}')
    for i in range(4): a(f'v_add_f32 v{g+i}, v{g+i}, v{g+4+i}')
    for i in range(2): a(f'v_add_f32_dpp v{g+i}, v{g+i}, v{g+i} row_ror:8 row_mask:0xf bank_mask:0x3')
    for i in range(2): a(f'v_add_f32_dpp v{g+i}, v{g+2+i}, v{g+2+i} row_ror:8 row_mask:0xf bank_mask:0xc')
    h0, h1 = g, g + 1
    a(f'''
    v_cvt_pk_bf16_f32 v{g+2}, v{h0}, v{h1}
    v_lshlrev_b32 v{h0}, 16, v{g+2}
    v_and_b32 v{h1}, s{sC2}, v{g+2}
    v_add_f32 v{h0}, v{h0}, v{vT[2]}
    v_add_f32 v{h1}, v{h1}, v{vT[3]}
    v_cvt_pk_bf16_f32 v{g+2}, v{h0}, v{h1}
    v_lshlrev_b32 v{h0}, 16, v{g+2}
    v_and_b32 v{h1}, s{sC2}, v{g+2}
    v_add_f32 v{g+4}, v{h0}, v{h1}
    v_mul_f32 v{g+5}, v{h0}, v{h0}
    ds_write_b64 v{vXA}, v[{h0}:{h1}] offset:{L_HH}
    v_fmac_f32 v{g+5}, v{h1}, v{h1}
    ''')
    allreduce2(g + 4, g + 5, 'v_add_f32', g + 6, g + 7)
    a(f'''
    ds_write_b64 v{vT[0]}, v[{g+4}:{g+5}] offset:{L_ST}
    s_branch L_g_bar
    L_g_nogather:
    s_waitcnt vmcnt(0)
    L_g_bar:
    s_waitcnt lgkmcnt(0)
    s_barrier
    ds_read_b128 v[{g+4}:{g+7}], v{vZ} offset:{L_ST}
    ds_read_b128 v[{g+8}:{g+11}], v{vZ} offset:{L_ST + 16}
    ds_read_b64 v[{g+12}:{g+13}], v{vZ} offset:{L_ST + 32}
    ds_read_b32 v{g}, v{vHA} offset:{L_HH}
    ds_read_b32 v{g+1}, v{vHA} offset:{L_HH + 128}
    ds_read_b32 v{g+2}, v{vHA} offset:{L_HH + 256}
    s_waitcnt lgkmcnt(3)
    v_add_f32 v{g+4}, v{g+4}, v{g+6}
    v_add_f32 v{g+5}, v{g+5}, v{g+7}
    v_add_f32 v{g+8}, v{g+8}, v{g+10}
    v_add_f32 v{g+9}, v{g+9}, v{g+11}
    v_add_f32 v{g+4}, v{g+4}, v{g+12}
    v_add_f32 v{g+5}, v{g+5}, v{g+13}
    v_add_f32 v{g+4}, v{g+4}, v{g+8}
    v_add_f32 v{g+5}, v{g+5}, v{g+9}
    v_mul_f32 v{g+4}, {INV640:#x}, v{g+4}
    v_mul_f32 v{g+5}, {INV640:#x}, v{g+5}
    v_fma_f32 v{g+5}, -v{g+4}, v{g+4}, v{g+5}
    v_max_f32 v{g+5}, 0, v{g+5}
    ''')
    ln_consts(g + 4, g + 5, g + 6, g + 7, g + 8)
    a('s_waitcnt lgkmcnt(0)')
    ln_apply([g, g + 1, g + 2], g + 6, g + 7, g + 8, [g + 9, g + 10, g + 11])
    stamp('ln2')
    onehot_chain([(g + i // 4, f'quad_perm:[{i%4},{i%4},{i%4},{i%4}]', wt + 4 * i) for i in range(10)])
    write_d_rr(L_GP)
    stamp('g1')
    a(f's_cmp_gt_u32 s{sW}, 4\ns_cbranch_scc1 L_f')
    r = g
    lds_reduce16(L_GP, r)
    a(f'''
    s_mul_i32 s{sT0}, s{sFS}, 2560
    s_lshl_b32 s{sT1}, s{sW}, 9
    s_add_u32 s{sT0}, s{sT0}, s{sT1}
    s_add_u32 s{sT0}, s{sT0}, {P3:#x}
    v_lshlrev_b32 v{vT[0]}, 5, v{vC}
    v_lshl_add_u32 v{vT[0]}, v{vG}, 4, v{vT[0]}
    ''')
    lds_reduce16b(r)
    rbf(r, r)
    a(f'''
    v_mul_f32 v{r+1}, s{sC1}, v{r}
    v_exp_f32 v{r+1}, -v{r+1}
    v_add_f32 v{r+1}, 1.0, v{r+1}
    v_rcp_f32 v{r+2}, v{r+1}
    v_mul_f32 v{r+3}, v{r}, v{r+2}
    ''')
    rbf(r + 3, r + 3)
    a(f'''
    v_mul_f32_dpp v{r+3}, v{r}, v{r+3} row_ror:8 {DPPF}
    v_cvt_pk_bf16_f32 v{r+3}, v{r+3}, v{r+3}
    ''')
    onehot_chain([(r + 3, f'row_newbcast:{i}', wD + 4 * i) for i in range(8)])
    tagw([vD + i for i in range(4)])
    a(f'''
    s_mov_b32 exec_hi, 0
    buffer_store_dwordx4 v[{vD}:{vD+3}], v{vT[0]}, {WS_}, s{sT0} offen sc1
    s_mov_b64 exec, -1
    ''')
    stamp('g')
    a('s_branch L_fin')
    a(f'''
    L_f:
    s_cmp_lg_u32 s{sW}, 7
    s_cbranch_scc1 L_fin
    s_cmp_ge_u32 s{sFS}, 40
    s_cbranch_scc1 L_fin
    v_lshrrev_b32 v{vT[0]}, 2, v{vLANE}
    v_and_b32 v{vT[1]}, 3, v{vLANE}
    v_mul_u32_u24 v{vT[0]}, 2560, v{vT[0]}
    v_lshl_add_u32 v{vT[0]}, v{vT[1]}, 4, v{vT[0]}
    s_lshl_b32 s{sT3}, s{sFS}, 6
    s_add_u32 s{sT0}, s{sT3}, {P3:#x}
    s_add_u32 s{sT1}, s{sT0}, {16 * 2560}
    s_add_u32 s{sT2}, s{sT0}, {32 * 2560}
    s_add_u32 s{sOFF}, s{sT0}, {48 * 2560}
    v_lshl_add_u32 v{vT[1]}, v{vT[1]}, 2, v{vG}
    v_lshlrev_b32 v{vT[1]}, 2, v{vT[1]}
    v_add_u32 v{vT[1]}, s{sT3}, v{vT[1]}
    ds_read_b32 v{vT[2]}, v{vT[1]} offset:{L_HH}
    v_lshrrev_b32 v{vT[1]}, 1, v{vT[1]}
    ''')
    for b in (pA, pB):
        for e in range(4): a(f'v_mov_b32 v{b+12+e}, v{vTAG}')
    a(f'''
    s_cmp_eq_u32 s{sFS}, 0
    s_cselect_b32 s{sT3}, {EPOCH}, {OOB:#x}
    v_mov_b32 v{vT[4]}, s{sTAG}
    s_mov_b64 exec, 1
    buffer_store_dword v{vT[4]}, v{vZ}, {WS_}, s{sT3} offen sc1
    s_mov_b64 exec, -1
    ''')
    def ld3(b):
        for i in range(3): a(f'buffer_load_dwordx4 v[{b+4*i}:{b+4*i+3}], v{vT[0]}, {WS_}, s{(sT0, sT1, sT2)[i]} offen sc1')
        a(f's_mov_b64 exec, 0xffffff\nbuffer_load_dwordx4 v[{b+12}:{b+15}], v{vT[0]}, {WS_}, s{sOFF} offen sc1\ns_mov_b64 exec, -1')
    poll(ld3, 16, g, 4)
    stamp('h3')
    for e in range(4): a(f'v_add_f32 v{g+e}, v{g+e}, v{g+4+e}')
    for e in range(4): a(f'v_add_f32 v{g+8+e}, v{g+8+e}, v{g+12+e}')
    for e in range(4): a(f'v_add_f32 v{g+e}, v{g+e}, v{g+8+e}')
    a(f'''
    v_permlane32_swap_b32 v{g}, v{g+2}
    v_permlane32_swap_b32 v{g+1}, v{g+3}
    v_add_f32 v{g}, v{g}, v{g+2}
    v_add_f32 v{g+1}, v{g+1}, v{g+3}
    v_permlane16_swap_b32 v{g}, v{g+1}
    v_add_f32 v{g}, v{g}, v{g+1}
    v_add_f32_dpp v{g}, v{g}, v{g} row_ror:8 {DPPF}
    v_add_f32_dpp v{g}, v{g}, v{g} row_ror:4 {DPPF}
    ''')
    rbf(g, g)
    a(f'''
    s_waitcnt lgkmcnt(0)
    v_add_f32 v{g}, v{g}, v{vT[2]}
    v_cvt_pk_bf16_f32 v{g}, v{g}, v{g}
    s_mov_b32 exec_lo, 0x000f000f
    s_mov_b32 exec_hi, 0x000f000f
    buffer_store_short v{g}, v{vT[1]}, {OUT_}, 0 offen
    s_mov_b64 exec, -1
    L_fin:
    ''')
    if stamps and dbgout:
        stamp('end')
        a(f'''
        v_lshlrev_b32 v{vT[0]}, 2, v{vLANE}
        v_not_b32 v{vT[1]}, v{vSTAMP}
        s_mov_b64 exec, 0x3fff
        global_atomic_umax v{vT[0]}, v{vSTAMP}, s[36:37] sc1
        s_mov_b64 exec, 1
        global_atomic_umax v{vT[0]}, v{vT[1]}, s[36:37] offset:56 sc1
        ''')
    elif stamps:
        stamp('end')
        a(f'''
        s_cmp_lg_u32 s{sW}, {stampwave}
        s_cbranch_scc1 L_end
        s_add_u32 s24, s38, 0x10000000
        s_addc_u32 s25, s39, 0
        s_lshl_b32 s{sT0}, s2, 6
        v_lshlrev_b32 v{vT[0]}, 2, v{vLANE}
        v_add_u32 v{vT[0]}, s{sT0}, v{vT[0]}
        s_mov_b64 exec, 0x7fff
        global_store_dword v{vT[0]}, v{vSTAMP}, s[24:25]
        ''')
    a('L_end:\ns_endpgm')
    return build_file([f'; @launch grid=(256,1,1) block=(512,1,1) lds={lds}'], [(NAME + '_kernel', a.text(), V.high, 102)])

if __name__ == '__main__':
    import json
    out = sys.argv[1]
    kw = json.loads(sys.argv[2]) if len(sys.argv) > 2 else {}
    open(out, 'w').write(gen(**kw))
```

```python
import sys, struct
from asmlib import *

def f2u(x): return struct.unpack('<I', struct.pack('<f', x))[0]
LOG2E = f2u(1.4426950408889634)
SCALE = f2u(128 ** -0.5)
INV640 = f2u(1.0 / 640)
EPS = f2u(1e-5)
NEGINF = 0xff800000

EPOCH = 0x0
CTR = 0x1000
CTRS = 0x1100
QS = 0x40000
P1 = 0x80000
P2 = 0xC0000
P3 = 0xD0000
WS_END = P3 + 54 * 2560
OOB = 0x40000000
L_Q = 0; L_CNT = 256; L_M = 320; L_L = 352; L_ST = 384; L_OP = 4096; L_ZP = 8192; L_GP = 12288; L_HH = 16384; L_WT = 20480

DPPF = 'row_mask:0xf bank_mask:0xf'

def gen(NEo=17, NOo=15, NEy=11, NOy=9, HROT=74, S=32, LA=16, stamps=False, kvflags='nt', wqflags='nt', wflags='nt', lds=104448,
        spin=200000, stampwave=0, notail=False, now=False, n0=4, psleep=0, mapping='all', gstop=0, g1=6, pipe=False, gflags=None, wgate=4, wstop=0, dflags=None, dgate=9, gstart=True, wstart=True, vflags=None, dbgout=False):
    a = Asm()
    V = Alloc(1, 256)
    U = 4
    if gflags is None: gflags = wflags
    if vflags is None: vflags = kvflags
    if dflags is None: dflags = wflags
    OY = 16 * (NEo + NOo)
    OP = OY + 16 * (NEy + NOy)
    NCH = (1024 - OP) // 2
    assert OP <= 1024 and HROT % 2 == 0
    NTMAX = (max(NEo, NEy) * U + 15) // 16
    sW, sH, sIDX, sPAR, sS = 3, 4, 5, 6, 7
    K_, V_, WQ_, WS_, X_, WO_, WG_, WU_, WD_, OUT_ = [f's[{b}:{b+3}]' for b in (8, 12, 40, 44, 48, 52, 56, 60, 64, 68)]
    sOFF, sOFF0, sEX0, sT0, sT1, sT2, sT3 = 76, 77, 78, 80, 81, 82, 83
    sSLOT, sROLE, sGAM, sCS, sFS, sSPIN, sTAG, sTAG8 = 84, 85, 87, 88, 89, 91, 92, 93
    sC1, sC2 = 94, 95
    sROT, sCTR, sNXT, sLIM, sAOFF, sMSK8 = 72, 73, 74, 75, 86, 90
    sM1, sM0 = 's[16:17]', 's[18:19]'
    sVa, sVb = 's[20:21]', 's[22:23]'
    sLO8 = 's[26:27]'
    slist = stamps if isinstance(stamps, list) else []
    def stamp(name):
        if name in slist:
            a(f's_memrealtime s[96:97]\ns_waitcnt lgkmcnt(0)\nv_writelane_b32 v{vSTAMP}, s96, {1 + slist.index(name)}')
    q = []
    def vm(tag, text):
        a(text); q.append(tag)
    def wait(tag):
        idx = max(i for i, t in enumerate(q) if t == tag)
        n = len(q) - 1 - idx
        assert n <= 63, n
        a(f's_waitcnt vmcnt({n})')

    vSTAMP = V.get() if stamps else None
    vLANE = V.get(); vG = V.get(); vC = V.get(); vKV = V.get(); vKV2 = V.get()
    vT = [V.get() for _ in range(8)]
    vDA = V.get(); vXH = V.get(); vTAG = V.get(); vTK = V.get(); vM = V.get(); vL = V.get(); vZ = V.get()
    vMASK = V.get(4, 4)
    vA = [V.get(4, 4), V.get(4, 4)]
    vD = V.get(4, 4)
    vQ = V.get(4, 4)
    vSC = [V.get() for _ in range(NTMAX)]
    vACC = V.get(16, 4)
    gat = V.get(16, 4)
    ring = V.get(4 * S, 4)
    wqs = ring + 4 * (S - 20)
    assert n0 <= S - 20 and S == 32
    pA, pB = ring + 96, ring + 112

    def allreduce(r, op, t):
        for k in (8, 4, 2, 1):
            a(f'{op}_dpp v{r}, v{r}, v{r} row_ror:{k} {DPPF}')
        for sw in ('v_permlane16_swap_b32', 'v_permlane32_swap_b32'):
            a(f'v_mov_b32 v{t}, v{r}\n{sw} v{r}, v{t}\n{op} v{r}, v{r}, v{t}')
    def allreduce2(r0, r1, op, t0, t1):
        for k in (8, 4, 2, 1):
            a(f'{op}_dpp v{r0}, v{r0}, v{r0} row_ror:{k} {DPPF}\n{op}_dpp v{r1}, v{r1}, v{r1} row_ror:{k} {DPPF}')
        for sw in ('v_permlane16_swap_b32', 'v_permlane32_swap_b32'):
            a(f'v_mov_b32 v{t0}, v{r0}\nv_mov_b32 v{t1}, v{r1}\n{sw} v{r0}, v{t0}\n{sw} v{r1}, v{t1}\n{op} v{r0}, v{r0}, v{t0}\n{op} v{r1}, v{r1}, v{t1}')
    def rbf(d, s):
        a(f'v_cvt_pk_bf16_f32 v{d}, v{s}, v{s}\nv_lshlrev_b32 v{d}, 16, v{d}')
    def ln_consts(vmean, vvar, vm_bf, vs_bf, vr):
        rbf(vs_bf, vvar)
        rbf(vm_bf, vmean)
        a(f'v_add_f32 v{vs_bf}, {EPS:#x}, v{vs_bf}')
        rbf(vs_bf, vs_bf)
        a(f'v_sqrt_f32 v{vs_bf}, v{vs_bf}')
        rbf(vs_bf, vs_bf)
        a(f'v_rcp_f32 v{vr}, v{vs_bf}')
    def ln_apply(xs, vm_bf, vs_bf, vr, ts):
        for x in xs: a(f'v_sub_f32 v{x}, v{x}, v{vm_bf}')
        for x in xs: a(f'v_cvt_pk_bf16_f32 v{x}, v{x}, v{x}')
        for x in xs: a(f'v_lshlrev_b32 v{x}, 16, v{x}')
        for x, t in zip(xs, ts): a(f'v_mul_f32 v{t}, v{x}, v{vr}')
        for x, t in zip(xs, ts): a(f'v_fma_f32 v{x}, -v{t}, v{vs_bf}, v{x}')
        for x, t in zip(xs, ts): a(f'v_fma_f32 v{x}, v{x}, v{vr}, v{t}')
        for x in xs: a(f'v_cvt_pk_bf16_f32 v{x}, v{x}, v{x}')
    def ands(pk, sel, k):
        A = vA[k & 1]
        for jj in range(4): a(f'v_and_b32_dpp v{A + jj}, v{pk}, v{vMASK + jj} {sel} {DPPF}')
    def mfma(data, k, first=False):
        A = vA[k & 1]
        c = '0' if first else f'v[{vD}:{vD+3}]'
        a(f'v_mfma_f32_16x16x32_bf16 v[{vD}:{vD+3}], v[{A}:{A+3}], v[{data}:{data+3}], {c}')
    def onehot_chain(items, pre=None):
        ands(items[0][0], items[0][1], 0)
        for k, (pk, sel, data) in enumerate(items):
            if k + 1 < len(items): ands(items[k+1][0], items[k+1][1], k + 1)
            if pre: pre(k)
            mfma(data, k, first=(k == 0))
    def tagw(regs, rnd=False):
        if rnd:
            for r in regs: a(f'v_add_u32 v{r}, 0x80, v{r}')
        for r in regs: a(f'v_and_or_b32 v{r}, v{r}, s{sMSK8}, v{vTAG}')
    def check(src, dst, n):
        t = vT[7]
        for i in range(n): a(f'v_xor_b32 v{dst+i}, s{sTAG8}, v{src+i}')
        rs = [dst + i for i in range(n)]
        a(f'v_or3_b32 v{t}, v{rs[0]}, v{rs[1]}, v{rs[2]}'); rs = rs[3:]
        while rs:
            if len(rs) >= 2: a(f'v_or3_b32 v{t}, v{t}, v{rs[0]}, v{rs[1]}'); rs = rs[2:]
            else: a(f'v_or_b32 v{t}, v{t}, v{rs[0]}'); rs = []
        a(f'v_and_b32 v{t}, 0xff, v{t}\nv_cmp_ne_u32 vcc, 0, v{t}')
    npoll = [0]
    def poll(loads, n, dst, nl):
        L = f'L_poll{npoll[0]}'; npoll[0] += 1
        a(f's_mov_b32 s{sSPIN}, {spin}')
        if pipe:
            loads(pA)
            a(f'{L}:')
            loads(pB)
            a(f's_waitcnt vmcnt({nl})')
            check(pA, dst, n)
            a(f's_cbranch_vccz {L}_done')
            loads(pA)
            a(f's_waitcnt vmcnt({nl})')
            check(pB, dst, n)
            a(f'''
            s_cbranch_vccz {L}_done
            s_sub_u32 s{sSPIN}, s{sSPIN}, 1
            s_cbranch_scc0 {L}
            {L}_done:
            ''')
        else:
            a(f'{L}:')
            loads(pA)
            a('s_waitcnt vmcnt(0)')
            check(pA, dst, n)
            a(f's_cbranch_vccz {L}_done')
            if psleep: a(f's_sleep {psleep}')
            a(f's_sub_u32 s{sSPIN}, s{sSPIN}, 1\ns_cbranch_scc0 {L}\n{L}_done:')
    def lds_reduce16(base, r):
        for i in range(4): a(f'ds_read_b128 v[{r + 4*i}:{r + 4*i + 3}], v{vRA} offset:{base + 256 * i}')
    def lds_reduce16b(r):
        a('s_waitcnt lgkmcnt(2)')
        for e in range(4): a(f'v_add_f32 v{r+e}, v{r+e}, v{r+4+e}')
        a('s_waitcnt lgkmcnt(0)')
        for e in range(4): a(f'v_add_f32 v{r+8+e}, v{r+8+e}, v{r+12+e}')
        for e in range(4): a(f'v_add_f32 v{r+e}, v{r+e}, v{r+8+e}')
        a(f'''
        v_permlane32_swap_b32 v{r}, v{r+2}
        v_permlane32_swap_b32 v{r+1}, v{r+3}
        v_add_f32 v{r}, v{r}, v{r+2}
        v_add_f32 v{r+1}, v{r+1}, v{r+3}
        v_permlane16_swap_b32 v{r}, v{r+1}
        v_add_f32 v{r}, v{r}, v{r+1}
        ''')
    def write_d_rr(base):
        a(f'''
        s_mov_b32 exec_lo, 0x00ff00ff
        s_mov_b32 exec_hi, 0xff00ff00
        ds_write_b128 v{vDA2}, v[{vD}:{vD+3}] offset:{base}
        s_mov_b64 exec, -1
        s_waitcnt lgkmcnt(0)
        s_barrier
        ''')
    def lds_add(off, rtn=None):
        a(f'v_mov_b32 v{vT[6]}, 1\ns_mov_b64 exec, 1')
        if rtn: a(f'ds_add_rtn_u32 v{vT[6]}, v{vZ}, v{vT[6]} offset:{off}')
        else: a(f'ds_add_u32 v{vZ}, v{vT[6]} offset:{off}')
        a('s_mov_b64 exec, -1')
    ngate = [0]
    def lds_gate(off, val):
        L = f'L_gate{ngate[0]}'; ngate[0] += 1
        a(f'''
        {L}:
        ds_read_b32 v{vT[6]}, v{vZ} offset:{off}
        s_waitcnt lgkmcnt(0)
        v_cmp_gt_u32 vcc, {val}, v{vT[6]}
        s_cbranch_vccz {L}_done
        s_sleep 2
        s_branch {L}
        {L}_done:
        ''')

    a(f'''
    s_cmp_ge_u32 s2, 256
    s_cbranch_scc1 L_end
    s_load_dwordx16 s[16:31], s[0:1], 0
    s_load_dwordx8 s[32:39], s[0:1], 64
    ''')
    if stamps: a(f's_memrealtime s[98:99]\nv_mov_b32 v{vSTAMP}, 0')
    a(f'''
    v_lshrrev_b32 v{vT[0]}, 6, v0
    v_and_b32 v{vLANE}, 63, v0
    v_readfirstlane_b32 s{sW}, v{vT[0]}
    v_lshrrev_b32 v{vG}, 4, v{vLANE}
    v_and_b32 v{vC}, 15, v{vLANE}
    v_lshlrev_b32 v{vKV}, 4, v{vLANE}
    v_mov_b32 v{vZ}, 0
    s_and_b32 s{sPAR}, s2, 1
    ''')
    if mapping == 'all':
        a(f's_lshr_b32 s{sH}, s2, 3\ns_and_b32 s{sS}, s2, 7')
    elif mapping == 'pair':
        a(f'''
        s_and_b32 s{sH}, s2, 6
        s_lshl_b32 s{sH}, s{sH}, 2
        s_lshr_b32 s{sT0}, s2, 5
        s_add_u32 s{sH}, s{sH}, s{sT0}
        s_lshr_b32 s{sS}, s2, 2
        s_and_b32 s{sS}, s{sS}, 6
        s_or_b32 s{sS}, s{sS}, s{sPAR}
        ''')
    else:
        a(f'''
        s_and_b32 s{sH}, s2, 2
        s_lshl_b32 s{sH}, s{sH}, 3
        s_lshr_b32 s{sT0}, s2, 4
        s_add_u32 s{sH}, s{sH}, s{sT0}
        s_lshr_b32 s{sS}, s2, 1
        s_and_b32 s{sS}, s{sS}, 6
        s_or_b32 s{sS}, s{sS}, s{sPAR}
        ''')
    a(f'''
    s_lshl_b32 s{sT1}, s{sH}, 8
    s_mul_i32 s{sT2}, s{sS}, {80 * 8192}
    s_add_u32 s{sT1}, s{sT1}, s{sT2}
    s_mov_b32 s42, {80 * 8192}
    s_mov_b32 s43, 0x20000
    s_mov_b32 s50, 1280
    s_mov_b32 s51, 0x20000
    s_mov_b32 s46, {WS_END}
    s_mov_b32 s47, 0x20000
    v_lshlrev_b32 v{vT[1]}, 13, v{vG}
    v_lshl_add_u32 v{vT[1]}, v{vC}, 4, v{vT[1]}
    v_lshlrev_b32 v{vT[2]}, 2, v{vLANE}
    v_lshl_add_u32 v{vT[3]}, v{vC}, 2, v{vG}
    v_lshlrev_b32 v{vT[3]}, 1, v{vT[3]}
    s_mul_i32 s{sT3}, s{sS}, 160
    s_lshr_b32 s{sIDX}, s{sS}, 1
    s_lshl_b32 s{sIDX}, s{sIDX}, 2
    s_and_b32 s{sT2}, s{sW}, 3
    s_add_u32 s{sIDX}, s{sIDX}, s{sT2}
    s_mul_i32 s{sROT}, s{sH}, {HROT}
    s_cmp_lt_u32 s{sW}, 4
    s_cselect_b32 s{sT2}, 0, {OY}
    s_add_u32 s{sIDX}, s{sIDX}, s{sT2}
    s_add_u32 s{sIDX}, s{sIDX}, s{sROT}
    s_lshl_b32 s{sOFF0}, s{sPAR}, 4
    s_add_u32 s{sOFF0}, s{sOFF0}, s{sIDX}
    s_lshl_b32 s{sOFF0}, s{sOFF0}, 12
    s_and_b32 s{sOFF0}, s{sOFF0}, 0x3fffff
    s_lshl_b32 s{sT0}, s{sH}, 22
    s_mul_i32 s{sCTR}, s{sH}, {CTRS}
    s_add_u32 s{sCTR}, s{sCTR}, {CTR}
    s_mov_b32 s10, 0x400000
    s_mov_b32 s11, 0x20000
    s_waitcnt lgkmcnt(0)
    s_mov_b32 s48, s16
    s_mov_b32 s49, s17
    s_add_u32 s40, s22, s{sT1}
    s_addc_u32 s41, s23, 0
    s_add_u32 s8, s18, s{sT0}
    s_addc_u32 s9, s19, 0
    s_mov_b32 s44, s38
    s_mov_b32 s45, s39
    s_load_dword s{sTAG}, s[38:39], {EPOCH}
    ''')
    if stamps: a(f'v_writelane_b32 v{vSTAMP}, s98, 0')
    vX = gat; vXS = gat + 5
    a(f'''
    s_cmp_lg_u32 s{sW}, 0
    s_cbranch_scc1 L_noq1
    s_cmp_eq_u32 s{sS}, 0
    s_cselect_b32 s{sT1}, s{sCTR}, {OOB:#x}
    s_mov_b64 exec, 1
    buffer_store_dword v{vZ}, v{vZ}, {WS_}, s{sT1} offen sc1
    s_mov_b64 exec, -1
    ''')
    for i in range(20):
        if i: a(f's_mov_b32 s{sT1}, {i * 32768}')
        vm(('wq', i), f'buffer_load_dwordx4 v[{wqs + 4*i}:{wqs + 4*i + 3}], v{vT[1]}, {WQ_}, {"0" if i == 0 else "s%d" % sT1} offen {wqflags}')
        if i == 3:
            for k in range(5): vm('x', f'buffer_load_dword v{vX + k}, v{vT[2]}, {X_}, 0 offen offset:{256 * k}')
            vm('x', f'buffer_load_ushort v{vXS}, v{vT[3]}, {X_}, s{sT3} offen')
            vm('x', f'buffer_load_ushort v{vXS + 1}, v{vT[3]}, {X_}, s{sT3} offen offset:128')
    a('L_noq1:\ns_barrier')

    def issue_static(m, n, x, NX, track=True):
        k, i = divmod(n, U)
        so = sOFF
        if 8 <= k < 8 + NX: so = sEX0 + k - 8
        elif i == 0:
            if k == 0: a(f's_mov_b32 s{sOFF}, s{sOFF0}')
            else: a(f's_add_u32 s{sOFF}, s{sOFF}, {32 * 4096}\ns_and_b32 s{sOFF}, s{sOFF}, 0x3fffff')
        r = ring + (x % S) * 4
        txt = f'buffer_load_dwordx4 v[{r}:{r+3}], v{vKV}, {K_ if m == "K" else V_}, s{so} offen offset:{i * 1024} {kvflags if m == "K" else vflags}'
        if track: vm(('r', x), txt)
        else: a(txt)
    assert min(NOo, NOy) * U >= S
    def lanemask(nvalid):
        nvalid = max(0, min(16, nvalid))
        m = (1 << nvalid) - 1
        return m | (m << 16)
    def common_setup():
        a(f'''
        s_add_u32 s12, s20, s{sT0}
        s_addc_u32 s13, s21, 0
        s_mov_b32 s14, 0x400000
        s_mov_b32 s15, 0x20000
        s_lshl_b32 s{sSLOT}, s{sH}, 3
        s_add_u32 s{sSLOT}, s{sSLOT}, s{sS}
        s_and_b32 s{sGAM}, s2, 7
        s_lshr_b32 s{sT1}, s2, 3
        s_lshl_b32 s{sT2}, s{sGAM}, 2
        s_add_u32 s{sT1}, s{sT1}, s{sT2}
        s_and_b32 s{sT1}, s{sT1}, 31
        s_lshr_b32 s{sFS}, s{sT1}, 1
        s_lshl_b32 s{sFS}, s{sFS}, 3
        s_add_u32 s{sFS}, s{sFS}, s{sGAM}
        s_cmp_lt_u32 s{sFS}, 27
        s_cselect_b32 s{sROLE}, 2, 0
        s_mov_b32 s{sLIM}, {NCH}
        s_cselect_b32 s{sLIM}, {max(0, NCH - gstop)}, s{sLIM}
        s_lshl_b32 s{sFS}, s{sFS}, 1
        s_and_b32 s{sT2}, s{sT1}, 1
        s_add_u32 s{sFS}, s{sFS}, s{sT2}
        s_sub_u32 s{sCS}, s{sT1}, 8
        s_cmp_lt_u32 s{sCS}, 10
        s_cselect_b32 s{sROLE}, 1, s{sROLE}
        s_cselect_b32 s{sLIM}, {max(0, NCH - wstop)}, s{sLIM}
        ''')
        for b, p, n in ((52, 24, 4096 * 1280), (56, 28, 640 * 3456), (60, 30, 640 * 3456), (64, 32, 1728 * 1280), (68, 34, 1280)):
            a(f's_mov_b32 s{b}, s{p}\ns_mov_b32 s{b+1}, s{p+1}\ns_mov_b32 s{b+2}, {n}\ns_mov_b32 s{b+3}, 0x20000')
        a(f'''
        s_mov_b32 s16, 0xcccccccc
        s_mov_b32 s17, 0xcccccccc
        s_mov_b32 s18, 0xaaaaaaaa
        s_mov_b32 s19, 0xaaaaaaaa
        s_mov_b32 s26, 0x00ff00ff
        s_mov_b32 s27, 0x00ff00ff
        s_mov_b32 s{sC1}, {LOG2E:#x}
        s_mov_b32 s{sC2}, 0xffff0000
        s_mov_b32 s{sMSK8}, 0xffffff00
        v_add_u32 v{vKV2}, 4096, v{vKV}
        v_and_b32 v{vT[5]}, 1, v{vC}
        v_lshlrev_b32 v{vT[5]}, 4, v{vT[5]}
        v_mov_b32 v{vT[6]}, 0xffff
        v_lshlrev_b32 v{vT[5]}, v{vT[5]}, v{vT[6]}
        v_bfe_u32 v{vT[6]}, v{vC}, 1, 2
        ''')
        for jj in range(4):
            a(f'v_cmp_eq_u32 vcc, {jj}, v{vT[6]}\nv_cndmask_b32 v{vMASK + jj}, 0, v{vT[5]}, vcc')
        a(f'''
        v_lshlrev_b32 v{vDA}, 5, v{vC}
        v_lshl_add_u32 v{vDA}, v{vG}, 4, v{vDA}
        s_waitcnt lgkmcnt(0)
        s_add_u32 s{sTAG}, s{sTAG}, 1
        s_and_b32 s{sTAG8}, s{sTAG}, 0xff
        v_mov_b32 v{vTAG}, s{sTAG8}
        ''')
    a(f's_cmp_eq_u32 s{sW}, 0\ns_cbranch_scc1 L_q')
    for x in range(4): issue_static('K', x, x, 0, track=False)
    a('L_q:')
    common_setup()
    a(f's_cmp_eq_u32 s{sW}, 0\ns_cbranch_scc1 L_q2')
    if (gstart or wstart) and not now:
        a(f'''
        s_cmp_lt_u32 s{sW}, 4
        s_cbranch_scc1 L_dma_done
        v_bfe_u32 v{vT[0]}, v{vLANE}, 3, 1               ; rr
        s_and_b32 s{sT3}, s{sW}, 3
        s_cmp_eq_u32 s{sROLE}, 2
        s_cbranch_scc1 L_dma_g
        s_cmp_eq_u32 s{sROLE}, 1
        s_cbranch_scc0 L_dma_done
        ''')
        if wstart:
            a(f'''
            v_lshrrev_b32 v{vT[4]}, 1, v{vG}
            v_lshlrev_b32 v{vT[4]}, 5, v{vT[4]}
            v_lshl_add_u32 v{vT[4]}, v{vT[0]}, 4, v{vT[4]}
            v_and_b32 v{vT[2]}, 1, v{vG}
            v_lshl_add_u32 v{vT[4]}, v{vT[2]}, 1, v{vT[4]}
            v_mul_u32_u24 v{vT[4]}, 1280, v{vT[4]}
            v_and_b32 v{vT[1]}, 7, v{vLANE}
            v_lshl_add_u32 v{vT[4]}, v{vT[1]}, 4, v{vT[4]}
            s_lshl_b32 s{sT0}, s{sGAM}, 9
            s_lshl_b32 s{sT1}, s{sT3}, 7
            s_add_u32 s{sT0}, s{sT0}, s{sT1}
            s_mul_i32 s{sT0}, s{sT0}, 1280
            s_lshl_b32 s{sT1}, s{sCS}, 7
            s_add_u32 s{sT0}, s{sT0}, s{sT1}
            s_lshl_b32 s{sT3}, s{sT3}, 14
            s_add_u32 s{sT3}, s{sT3}, {L_WT}
            ''')
            for half in range(2):
                for n in range(4):
                    for k in range(2):
                        a(f's_add_u32 m0, s{sT3}, {(8 * half + 4 * k + n) * 1024}\ns_add_u32 s{sT1}, s{sT0}, {(half * 64 + 4 * n + k) * 1280}')
                        a(f'buffer_load_dwordx4 v{vT[4]}, {WO_}, s{sT1} offen {wflags} lds')
        a('s_branch L_dma_done\nL_dma_g:')
        if gstart:
            a(f'''
            v_lshl_add_u32 v{vT[4]}, v{vG}, 1, v{vT[0]}
            v_mul_u32_u24 v{vT[4]}, 3456, v{vT[4]}
            v_and_b32 v{vT[5]}, 3, v{vLANE}
            v_lshl_add_u32 v{vT[4]}, v{vT[5]}, 4, v{vT[4]}
            s_mul_i32 s{sT0}, s{sT3}, {160 * 3456}
            s_lshl_b32 s{sT1}, s{sFS}, 6
            s_add_u32 s{sT0}, s{sT0}, s{sT1}
            s_mul_i32 s{sT3}, s{sT3}, {20 * 1024}
            s_add_u32 s{sT3}, s{sT3}, {L_WT}
            ''')
            for i in range(20):
                a(f's_add_u32 m0, s{sT3}, {i * 1024}\ns_add_u32 s{sT1}, s{sT0}, {8 * i * 3456}')
                a(f's_mov_b32 exec_lo, 0x0f0f0f0f\ns_mov_b32 exec_hi, 0x0f0f0f0f')
                a(f'buffer_load_dwordx4 v{vT[4]}, {WG_}, s{sT1} offen {gflags} lds')
                a(f's_mov_b32 exec_lo, 0xf0f0f0f0\ns_mov_b32 exec_hi, 0xf0f0f0f0')
                a(f'buffer_load_dwordx4 v{vT[4]}, {WU_}, s{sT1} offen {gflags} lds')
            a('s_mov_b64 exec, -1')
        a('L_dma_done:')
    for x in range(4, S): issue_static('K', x, x, 0, track=False)
    a('s_branch L_qdone\nL_q2:')
    a(f'ds_write_b32 v{vZ}, v{vZ} offset:{L_CNT}\nds_write_b32 v{vZ}, v{vZ} offset:{L_CNT+4}\nds_write_b32 v{vZ}, v{vZ} offset:{L_CNT+8}')
    wait('x')
    xs = vACC
    for i in range(5):
        a(f'v_lshlrev_b32 v{xs + 2*i}, 16, v{vX + i}\nv_and_b32 v{xs + 2*i + 1}, s{sC2}, v{vX + i}')
    sm = vT[0]
    a(f'v_add_f32 v{sm}, v{xs}, v{xs+1}')
    for i in range(2, 10): a(f'v_add_f32 v{sm}, v{sm}, v{xs + i}')
    allreduce(sm, 'v_add_f32', vT[2])
    a(f'v_mul_f32 v{sm}, {INV640:#x}, v{sm}')
    vv = vT[3]
    for i in range(10): a(f'v_sub_f32 v{xs + i}, v{xs + i}, v{sm}')
    a(f'v_mul_f32 v{vv}, v{xs}, v{xs}')
    for i in range(1, 10): a(f'v_fmac_f32 v{vv}, v{xs + i}, v{xs + i}')
    allreduce(vv, 'v_add_f32', vT[2])
    a(f'v_mul_f32 v{vv}, {INV640:#x}, v{vv}')
    ln_consts(sm, vv, vT[4], vT[5], vT[6])
    for i in range(2): a(f'v_lshlrev_b32 v{vXS + i}, 16, v{vXS + i}')
    ln_apply([vXS, vXS + 1], vT[4], vT[5], vT[6], [vT[1], vT[2]])
    stamp('ln')
    onehot_chain([(vXS + i // 16, f'row_newbcast:{i % 16}', wqs + 4 * i) for i in range(20)],
                 pre=lambda k: wait(('wq', k + 1)) if k % 2 == 0 else None)
    g = gat
    a(f's_lshl_b32 s{sT0}, s{sSLOT}, 9\ns_add_u32 s{sT0}, s{sT0}, {QS:#x}')
    tagw([vD + i for i in range(4)], rnd=True)
    a(f'''
    s_mov_b32 exec_hi, 0
    buffer_store_dwordx4 v[{vD}:{vD+3}], v{vDA}, {WS_}, s{sT0} offen sc1
    s_mov_b64 exec, -1
    ''')
    stamp('qpub')
    for x in range(n0): issue_static('K', x, x, 0, track=False)
    a(f'''
    s_lshl_b32 s{sT0}, s{sH}, 12
    s_add_u32 s{sT0}, s{sT0}, {QS:#x}
    s_mov_b32 s{sSPIN}, {spin}
    L_qpoll:
    ''')
    for i in range(4):
        a(f'buffer_load_dwordx4 v[{pA+4*i}:{pA+4*i+3}], v{vKV}, {WS_}, s{sT0} offen offset:{i * 1024} sc1')
    a('s_waitcnt vmcnt(0)')
    check(pA, g, 16)
    a(f'''
    s_cbranch_vccz L_qpoll_done
    s_sub_u32 s{sSPIN}, s{sSPIN}, 1
    s_cbranch_scc0 L_qpoll
    L_qpoll_done:
    ''')
    stamp('qgot')
    for e in range(4): a(f'v_add_f32 v{g+e}, v{g+e}, v{g+4+e}\nv_add_f32 v{g+8+e}, v{g+8+e}, v{g+12+e}')
    for e in range(4): a(f'v_add_f32 v{g+e}, v{g+e}, v{g+8+e}')
    a(f'''
    v_and_b32 v{vT[0]}, 31, v{vLANE}
    v_lshrrev_b32 v{vT[1]}, 5, v{vLANE}
    v_permlane32_swap_b32 v{g}, v{g+2}
    v_permlane32_swap_b32 v{g+1}, v{g+3}
    v_lshl_add_u32 v{vT[0]}, v{vT[0]}, 1, v{vT[1]}
    v_add_f32 v{g}, v{g}, v{g+2}
    v_add_f32 v{g+1}, v{g+1}, v{g+3}
    v_lshlrev_b32 v{vT[0]}, 2, v{vT[0]}
    v_cvt_pk_bf16_f32 v{g}, v{g}, v{g+1}
    ds_write_b32 v{vT[0]}, v{g} offset:{L_Q}
    s_waitcnt lgkmcnt(0)
    s_barrier
    ''')
    for x in range(n0, S): issue_static('K', x, x, 0, track=False)
    a('s_branch L_qread\nL_qdone:\ns_barrier\nL_qread:')
    a(f'''
    v_lshlrev_b32 v{vT[0]}, 4, v{vC}
    ds_read_b128 v[{vQ}:{vQ+3}], v{vT[0]} offset:{L_Q}
    s_lshl_b32 s{sT0}, s{sW}, 9
    v_add_u32 v{vDA}, s{sT0}, v{vDA}
    s_waitcnt lgkmcnt(0)
    ''')
    stamp('q')

    def reduce_tile(s, n, valid):
        A = [vACC + i if i < n else None for i in range(16)]
        B = []
        for jj in range(8):
            x, y = A[jj], A[jj + 8]
            if x is None: B.append(None); continue
            if y is None: a(f'v_add_f32_dpp v{x}, v{x}, v{x} row_ror:8 {DPPF}')
            else: a(f'v_add_f32_dpp v{x}, v{x}, v{x} row_ror:8 row_mask:0xf bank_mask:0x3')
            B.append(x)
        for jj in range(8):
            x, y = A[jj], A[jj + 8]
            if x is not None and y is not None:
                a(f'v_add_f32_dpp v{x}, v{y}, v{y} row_ror:8 row_mask:0xf bank_mask:0xc')
        C = []
        for jj in range(4):
            x = B[jj]
            d = vACC + 8 + jj
            a(f'v_add_f32_dpp v{d}, v{x}, v{x} row_shl:4 row_mask:0xf bank_mask:0x5')
            C.append(d)
        for jj in range(4):
            x, y = B[jj], B[jj + 4]
            z = y if y is not None else x
            a(f'v_add_f32_dpp v{C[jj]}, v{z}, v{z} row_shr:4 row_mask:0xf bank_mask:0xa')
        for jj in range(4): a(f'v_add_f32_dpp v{C[jj]}, v{C[jj]}, v{C[jj]} quad_perm:[2,3,0,1] {DPPF}')
        a(f'v_cndmask_b32 v{C[0]}, v{C[0]}, v{C[2]}, {sM1}\nv_cndmask_b32 v{C[1]}, v{C[1]}, v{C[3]}, {sM1}')
        for jj in range(2): a(f'v_add_f32_dpp v{C[jj]}, v{C[jj]}, v{C[jj]} quad_perm:[1,0,3,2] {DPPF}')
        a(f'v_cndmask_b32 v{s}, v{C[0]}, v{C[1]}, {sM0}')
        rbf(s, s)
        a(f'v_mul_f32 v{s}, {SCALE:#x}, v{s}')
        rbf(s, s)
        if valid:
            a(f'v_mov_b32 v{C[0]}, {NEGINF:#x}\nv_cndmask_b32 v{s}, v{C[0]}, v{s}, {valid}')
    def dots(r0, r1, a0):
        for jj in range(4):
            a(f'v_dot2_f32_bf16 v{a0}, v{r0 + jj}, v{vQ + jj}, {"0" if jj == 0 else "v%d" % a0}')
            a(f'v_dot2_f32_bf16 v{a0+1}, v{r1 + jj}, v{vQ + jj}, {"0" if jj == 0 else "v%d" % (a0+1)}')
    def claim():
        a(f'v_mov_b32 v{vTK}, 1\ns_mov_b64 exec, 1')
        vm('A', f'buffer_atomic_add v{vTK}, v{vZ}, {WS_}, s{sAOFF} offen sc0 sc1')
        a('s_mov_b64 exec, -1')
    def ticket():
        a(f'''
        v_readfirstlane_b32 s{sT0}, v{vTK}
        s_cmp_eq_u32 s{sAOFF}, s{sCTR}
        s_cselect_b32 s{sT0}, s{sT0}, {NCH}
        s_cmp_lt_u32 s{sT0}, s{sLIM}
        s_cselect_b32 s{sAOFF}, s{sCTR}, {OOB:#x}
        s_lshl_b32 s{sNXT}, s{sT0}, 1
        s_add_u32 s{sNXT}, s{sNXT}, s{sROT}
        s_add_u32 s{sNXT}, s{sNXT}, {OP}
        s_lshl_b32 s{sNXT}, s{sNXT}, 12
        s_and_b32 s{sNXT}, s{sNXT}, 0x3fffff
        s_cmp_lt_u32 s{sT0}, {NCH}
        s_cselect_b32 s{sNXT}, s{sNXT}, {OOB:#x}
        ''')
    def write_ml():
        a(f'''
        s_lshl_b32 s{sT0}, s{sW}, 2
        v_mov_b32 v{vT[3]}, s{sT0}
        ds_write_b32 v{vT[3]}, v{vM} offset:{L_M}
        ds_write_b32 v{vT[3]}, v{vL} offset:{L_L}
        ''')

    def stream(NE, NO, dyn, tg):
        NL = NE * U
        NT = (NL + 15) // 16
        N = 2 * NL
        assert NE - NO <= 2
        for e in range(NE - NO):
            a(f'''
            s_add_u32 s{sEX0 + e}, s{sIDX}, {NO * 32 + e * 16}
            s_lshl_b32 s{sEX0 + e}, s{sEX0 + e}, 12
            s_and_b32 s{sEX0 + e}, s{sEX0 + e}, 0x3fffff
            s_cmp_eq_u32 s{sPAR}, 0
            s_cselect_b32 s{sEX0 + e}, s{sEX0 + e}, {OOB:#x}
            ''')
        sVAL = {}
        free = [sVa, sVb]
        for t in range(NT):
            me = sum(1 << c for c in range(16) if 16 * t + c < NL)
            mo = sum(1 << c for c in range(16) if 16 * t + c < NL and not (32 <= 16 * t + c < 32 + 4 * (NE - NO)))
            if me == 0xffff and mo == 0xffff: continue
            sp = free.pop(0); lo = int(sp[2:].split(':')[0])
            sVAL[t] = sp
            a(f's_mov_b32 s{lo}, {me * 0x10001:#x}\ns_mov_b32 s{lo+1}, {mo * 0x10001:#x}\ns_cmp_eq_u32 s{sPAR}, 0\ns_cselect_b32 s{lo}, s{lo}, s{lo+1}\ns_mov_b32 s{lo+1}, s{lo}')
        q.clear()
        for x in range(S): q.append(('r', x))
        dK = [ring + ((N + i) % S) * 4 for i in range(8)]
        dV = [ring + ((N + 8 + i) % S) * 4 for i in range(8)]
        def dload(m, i):
            r = (dK if m == 'K' else dV)[i]
            vm(('d' + m, i), f'buffer_load_dwordx4 v[{r}:{r+3}], v{vKV if i < 4 else vKV2}, {K_ if m == "K" else V_}, s{sNXT} offen offset:{(i % 4) * 1024} {kvflags if m == "K" else vflags}')
        issued = [S]
        NTOT = N + (16 if dyn else 0)
        if dyn: a(f's_mov_b32 s{sAOFF}, s{sCTR}')
        def refill(upto):
            while issued[0] < min(NTOT, upto):
                x = issued[0]
                if x < N:
                    issue_static('K' if x < NL else 'V', x % NL, x, NE - NO)
                    if dyn and x == N - LA - 4: claim()
                else:
                    if x == N:
                        wait('A')
                        ticket()
                        a(f's_cbranch_scc1 L_t0ok')
                        lds_add(L_CNT)
                        a('L_t0ok:')
                    i = x - N
                    dload('K' if i < 8 else 'V', i % 8)
                    if i == 7: claim()
                issued[0] += 1
        for x in range(0, NL, 2):
            wait(('r', x + 1))
            dots(ring + (x % S) * 4, ring + ((x + 1) % S) * 4, vACC + x % 16)
            la = S if (not dyn or x + 2 + S <= NL) else max(LA, NL - (x + 2))
            refill(x + 2 + la)
            if (x + 2) % 16 == 0 or x + 2 == NL:
                t = x // 16
                reduce_tile(vSC[t], x + 2 - 16 * t, sVAL.get(t))
        a(f'v_max_f32 v{vM}, v{vSC[0]}, v{vSC[1]}')
        for t in range(2, NT): a(f'v_max_f32 v{vM}, v{vM}, v{vSC[t]}')
        allreduce(vM, 'v_max_f32', vT[1])
        for t in range(NT): a(f'v_sub_f32 v{vSC[t]}, v{vSC[t]}, v{vM}')
        for t in range(NT): a(f'v_mul_f32 v{vSC[t]}, s{sC1}, v{vSC[t]}')
        for t in range(NT): a(f'v_exp_f32 v{vSC[t]}, v{vSC[t]}')
        for t in range(NT): a(f'v_cvt_pk_bf16_f32 v{vSC[t]}, v{vSC[t]}, v{vSC[t]}')
        a(f'v_lshlrev_b32 v{vL}, 16, v{vSC[0]}')
        for t in range(1, NT): a(f'v_lshlrev_b32 v{vT[3]}, 16, v{vSC[t]}\nv_add_f32 v{vL}, v{vL}, v{vT[3]}')
        allreduce(vL, 'v_add_f32', vT[1])
        write_ml()
        stamp('k')
        ands(vSC[0], 'row_newbcast:0', 0)
        for n in range(NL):
            x = NL + n
            if n + 1 < NL: ands(vSC[(n+1) // 16], f'row_newbcast:{(n+1) % 16}', n + 1)
            wait(('r', x))
            mfma(ring + (x % S) * 4, n, first=(n == 0))
            if n % 2 == 1: refill(x + 1 + (LA if dyn else S))
        if not dyn: return
        assert issued[0] == NTOT
        stamp('s')
        a(f's_cmp_eq_u32 s{sNXT}, {OOB:#x}\ns_cbranch_scc0 L_dyn\ns_waitcnt vmcnt(0)\ns_branch L_dyn_done\nL_dyn:')
        def body(more):
            q.clear()
            for i in range(8): q.append(('dV', i))
            old = list(q)
            for i in range(0, 8, 2):
                dots(dK[i], dK[i+1], vACC + i)
                if more: dload('K', i); dload('K', i + 1)
            if more: claim()
            s = vSC[0]
            reduce_tile(s, 8, sLO8)
            mn = vT[0]
            a(f'v_max_f32 v{mn}, v{s}, v{vM}')
            allreduce(mn, 'v_max_f32', vT[1])
            a(f'''
            v_sub_f32 v{s}, v{s}, v{mn}
            v_sub_f32 v{vT[2]}, v{vM}, v{mn}
            v_mul_f32 v{s}, s{sC1}, v{s}
            v_mul_f32 v{vT[2]}, s{sC1}, v{vT[2]}
            v_exp_f32 v{s}, v{s}
            v_exp_f32 v{vT[2]}, v{vT[2]}
            v_mov_b32 v{vM}, v{mn}
            v_cvt_pk_bf16_f32 v{s}, v{s}, v{s}
            ''')
            for e in range(4): a(f'v_mul_f32 v{vD+e}, v{vD+e}, v{vT[2]}')
            a(f'v_lshlrev_b32 v{vT[3]}, 16, v{s}')
            allreduce(vT[3], 'v_add_f32', vT[1])
            a(f'v_fma_f32 v{vL}, v{vL}, v{vT[2]}, v{vT[3]}')
            if not more: write_ml()
            ands(s, 'row_newbcast:0', 0)
            for i in range(8):
                if i + 1 < 8: ands(s, f'row_newbcast:{i+1}', i + 1)
                n = len(q) - 1 - i
                a(f's_waitcnt vmcnt({n})')
                mfma(dV[i], i)
                if more and i % 2 == 1: dload('V', i - 1); dload('V', i)
        a('s_waitcnt vmcnt(8)')
        ticket()
        a('s_cbranch_scc0 L_dyn_last')
        body(True)
        a('s_branch L_dyn\nL_dyn_last:')
        lds_add(L_CNT)
        body(False)
        a('L_dyn_done:')
    a(f's_cmp_gt_u32 s{sW}, 3\ns_cbranch_scc1 L_young')
    stream(NEo, NOo, False, 'o')
    a('s_branch L_sdone\nL_young:')
    if NCH > 0: stream(NEy, NOy, True, 'y')
    else:
        stream(NEy, NOy, False, 'y'); lds_add(L_CNT)
    a('L_sdone:')
    a(f'''
    v_lshrrev_b32 v{vT[0]}, 5, v{vLANE}          ; half
    v_and_b32 v{vT[1]}, 31, v{vLANE}
    v_lshlrev_b32 v{vT[2]}, 4, v{vT[0]}
    v_lshlrev_b32 v{vT[3]}, 11, v{vT[0]}
    v_lshl_add_u32 v{vT[3]}, v{vT[1]}, 4, v{vT[3]}
    v_mov_b32 v{vT[6]}, 1
    s_mov_b32 exec_hi, 0
    ds_write_b128 v{vDA}, v[{vD}:{vD+3}] offset:{L_OP}
    s_mov_b64 exec, 1
    ds_add_rtn_u32 v{vT[6]}, v{vZ}, v{vT[6]} offset:{L_CNT + 4}
    s_mov_b64 exec, -1
    v_lshlrev_b32 v{vT[4]}, 4, v{vT[1]}
    v_lshl_add_u32 v{vT[4]}, v{vT[0]}, 3, v{vT[4]}
    s_lshl_b32 s{sT1}, s{sSLOT}, 10
    s_add_u32 s{sT1}, s{sT1}, {P1:#x}
    s_waitcnt lgkmcnt(0)
    v_readfirstlane_b32 s{sT0}, v{vT[6]}
    ''')
    stamp('v')
    t = vACC
    mm, ll = vA[0], vA[1]
    M, L_ = vD, vD + 1
    a(f'''
    s_cmp_lg_u32 s{sT0}, 7
    s_cbranch_scc1 L_pub_done
    s_setprio 3
    ds_read_b128 v[{mm}:{mm+3}], v{vT[2]} offset:{L_M}
    ''')
    for i in range(4): a(f'ds_read_b128 v[{g + 4*i}:{g + 4*i + 3}], v{vT[3]} offset:{L_OP + 512 * i}')
    a(f'''
    ds_read_b128 v[{ll}:{ll+3}], v{vT[2]} offset:{L_L}
    v_mov_b32 v{M+2}, v{vTAG}
    v_mov_b32 v{M+3}, v{vTAG}
    s_waitcnt lgkmcnt(5)
    v_max3_f32 v{M}, v{mm}, v{mm+1}, v{mm+2}
    v_max_f32 v{M}, v{M}, v{mm+3}
    v_mov_b32 v{vT[5]}, v{M}
    v_permlane32_swap_b32 v{M}, v{vT[5]}
    v_max_f32 v{M}, v{M}, v{vT[5]}
    ''')
    for i in range(4): a(f'v_sub_f32 v{mm+i}, v{mm+i}, v{M}')
    for i in range(4): a(f'v_mul_f32 v{mm+i}, s{sC1}, v{mm+i}')
    for i in range(4): a(f'v_exp_f32 v{mm+i}, v{mm+i}')
    a('s_waitcnt lgkmcnt(0)')
    for e in range(4): a(f'v_mul_f32 v{t+e}, v{mm}, v{g + e}')
    a(f'v_mul_f32 v{L_}, v{mm}, v{ll}')
    for i in range(1, 4):
        for e in range(4): a(f'v_fmac_f32 v{t+e}, v{mm+i}, v{g + 4*i + e}')
        a(f'v_fmac_f32 v{L_}, v{mm+i}, v{ll+i}')
    a(f'''
    v_mov_b32 v{vT[5]}, v{L_}
    v_permlane32_swap_b32 v{t}, v{t+2}
    v_permlane32_swap_b32 v{t+1}, v{t+3}
    v_permlane32_swap_b32 v{L_}, v{vT[5]}
    v_add_f32 v{t}, v{t}, v{t+2}
    v_add_f32 v{t+1}, v{t+1}, v{t+3}
    v_add_f32 v{L_}, v{L_}, v{vT[5]}
    ''')
    tagw([t, t + 1, M, L_])
    a(f'''
    buffer_store_dwordx2 v[{t}:{t+1}], v{vT[4]}, {WS_}, s{sT1} offen sc1
    s_mov_b64 exec, 1
    buffer_store_dwordx4 v[{M}:{M+3}], v{vT[4]}, {WS_}, s{sT1} offen offset:512 sc1
    v_mov_b32 v{vT[6]}, 1
    ds_add_u32 v{vZ}, v{vT[6]} offset:{L_CNT + 4}
    s_mov_b64 exec, -1
    s_setprio 0
    ''')
    if 'pub' in slist:
        a(f'''
        s_memrealtime s[96:97]
        s_add_u32 s24, s38, 0x10000000
        s_addc_u32 s25, s39, 0
        s_lshl_b32 s{sT2}, s2, 6
        s_add_u32 s{sT2}, s{sT2}, {4 * 15}
        v_mov_b32 v{vT[5]}, s{sT2}
        s_waitcnt lgkmcnt(0)
        v_mov_b32 v{vT[6]}, s96
        s_mov_b64 exec, 1
        global_store_dword v{vT[5]}, v{vT[6]}, s[24:25]
        s_mov_b64 exec, -1
        ''')
    a('L_pub_done:')
    if notail: a('s_branch L_fin')
    a(f's_cmp_eq_u32 s{sROLE}, 0\ns_cbranch_scc1 L_fin')
    vDA2 = vDA; vRA = vM
    wt = ring
    a(f'''
    v_bfe_u32 v{vT[0]}, v{vLANE}, 3, 1               ; rr
    v_and_b32 v{vT[1]}, 7, v{vLANE}                  ; cc
    v_and_b32 v{vT[2]}, 1, v{vG}                     ; b4
    v_lshrrev_b32 v{vT[3]}, 1, v{vG}                 ; b5
    s_lshl_b32 s{sT3}, s{sW}, 9
    v_lshlrev_b32 v{vDA2}, 8, v{vT[0]}
    v_lshl_add_u32 v{vDA2}, v{vT[1]}, 5, v{vDA2}
    v_lshl_add_u32 v{vDA2}, v{vT[2]}, 4, v{vDA2}
    v_add_u32 v{vDA2}, s{sT3}, v{vDA2}
    v_lshlrev_b32 v{vRA}, 10, v{vG}
    v_lshl_add_u32 v{vRA}, v{vC}, 4, v{vRA}
    s_cmp_eq_u32 s{sROLE}, 2
    s_cbranch_scc1 L_g
    ''')
    nprov = [0]
    def provision(n, loads):
        L = f'L_prov{nprov[0]}'; nprov[0] += 1
        a(f'''
        s_and_b32 s{sT3}, s{sW}, 3
        s_mul_i32 s{sT3}, s{sT3}, {n * 1024}
        v_add_u32 v{vL}, s{sT3}, v{vKV}
        s_cmp_gt_u32 s{sW}, 3
        s_cbranch_scc1 {L}_y
        ''')
        loads()
        a('s_waitcnt vmcnt(0)')
        for i in range(n): a(f'ds_write_b128 v{vL}, v[{wt + 4*(n+i)}:{wt + 4*(n+i) + 3}] offset:{L_WT + 1024 * i}')
        lds_add(L_CNT + 8)
        a(f's_branch {L}_d\n{L}_y:')
        lds_gate(L_CNT + 8, 4)
        for i in range(n): a(f'ds_read_b128 v[{wt + 4*i}:{wt + 4*i + 3}], v{vL} offset:{L_WT + 1024 * i}')
        a(f'{L}_d:\ns_waitcnt lgkmcnt(0)')
    def w_loads():
        a(f'''
        v_lshlrev_b32 v{vT[4]}, 5, v{vT[3]}
        v_lshl_add_u32 v{vT[4]}, v{vT[0]}, 4, v{vT[4]}
        v_lshl_add_u32 v{vT[4]}, v{vT[2]}, 1, v{vT[4]}
        v_mul_u32_u24 v{vT[4]}, 1280, v{vT[4]}
        v_lshl_add_u32 v{vT[4]}, v{vT[1]}, 4, v{vT[4]}
        s_lshl_b32 s{sT0}, s{sGAM}, 9
        s_lshl_b32 s{sT1}, s{sW}, 6
        s_add_u32 s{sT0}, s{sT0}, s{sT1}
        s_mul_i32 s{sT0}, s{sT0}, 1280
        s_lshl_b32 s{sT1}, s{sCS}, 7
        s_add_u32 s{sT0}, s{sT0}, s{sT1}
        ''')
        if wgate: lds_gate(L_CNT, wgate)
        stamp('gate')
        if now: return
        for half in (1, 0):
            for n in range(4):
                a(f's_add_u32 s{sT1}, s{sT0}, {(half * 256 + 4 * n) * 1280}')
                for k in range(2):
                    r = wt + 4 * (8 * half + 4 * k + n)
                    a(f'buffer_load_dwordx4 v[{r}:{r+3}], v{vT[4]}, {WO_}, s{sT1} offen offset:{k * 1280} {wflags}')
    def fetch(n):
        a(f's_mul_i32 s{sT3}, s{sW}, {n * 1024}\nv_add_u32 v{vL}, s{sT3}, v{vKV}')
        lds_gate(L_CNT, 4)
        for i in range(n): a(f'ds_read_b128 v[{wt + 4*i}:{wt + 4*i + 3}], v{vL} offset:{L_WT + 1024 * i}')
        a('s_waitcnt lgkmcnt(0)')
    if wstart: fetch(8)
    else: provision(8, w_loads)
    stamp('gw')
    a(f'''
    v_bfe_u32 v{vT[4]}, v{vLANE}, 2, 1
    v_lshl_add_u32 v{vT[4]}, v{vG}, 1, v{vT[4]}      ; s
    v_lshlrev_b32 v{vT[4]}, 10, v{vT[4]}
    v_and_b32 v{vT[5]}, 3, v{vLANE}
    v_lshl_add_u32 v{vT[5]}, v{vT[0]}, 2, v{vT[5]}   ; chunk
    v_lshl_add_u32 v{vT[5]}, v{vT[5]}, 4, v{vT[4]}
    s_lshl_b32 s{sT0}, s{sGAM}, 2
    s_lshr_b32 s{sT1}, s{sW}, 1
    s_add_u32 s{sT0}, s{sT0}, s{sT1}
    s_lshl_b32 s{sT0}, s{sT0}, 13
    s_add_u32 s{sT0}, s{sT0}, {P1:#x}
    s_and_b32 s{sT1}, s{sW}, 1
    s_lshl_b32 s{sT1}, s{sT1}, 8
    s_add_u32 s{sT1}, s{sT1}, s{sT0}
    s_mul_i32 s{sT2}, s{sGAM}, 2560
    s_lshl_b32 s{sT3}, s{sCS}, 8
    s_add_u32 s{sT2}, s{sT2}, s{sT3}
    s_add_u32 s{sT2}, s{sT2}, {P2:#x}
    v_lshl_add_u32 v{vT[0]}, v{vC}, 2, v{vG}
    v_lshlrev_b32 v{vT[0]}, 2, v{vT[0]}
    ''')
    lds_gate(L_CNT + 4, 9)
    def ld1(b):
        a(f'buffer_load_dwordx4 v[{b+8}:{b+11}], v{vT[4]}, {WS_}, s{sT0} offen offset:512 sc1')
        a(f'buffer_load_dwordx4 v[{b}:{b+3}], v{vT[5]}, {WS_}, s{sT1} offen sc1')
        a(f'buffer_load_dwordx4 v[{b+4}:{b+7}], v{vT[5]}, {WS_}, s{sT1} offen offset:128 sc1')
    poll(ld1, 12, g, 3)
    stamp('h1')
    mS, lS = g + 8, g + 9
    M = vT[2]; tt = vT[3]
    a(f'''
    v_max_f32_dpp v{M}, v{mS}, v{mS} row_half_mirror {DPPF}
    v_mov_b32 v{tt}, v{M}
    v_permlane16_swap_b32 v{M}, v{tt}
    v_max_f32 v{M}, v{M}, v{tt}
    v_mov_b32 v{tt}, v{M}
    v_permlane32_swap_b32 v{M}, v{tt}
    v_max_f32 v{M}, v{M}, v{tt}
    v_sub_f32 v{mS}, v{mS}, v{M}
    v_mul_f32 v{mS}, s{sC1}, v{mS}
    v_exp_f32 v{mS}, v{mS}
    ''')
    a(f'v_mul_f32 v{lS}, v{lS}, v{mS}')
    for i in range(8): a(f'v_mul_f32 v{g+i}, v{g+i}, v{mS}')
    a(f'v_add_f32_dpp v{lS}, v{lS}, v{lS} row_half_mirror {DPPF}')
    for e in range(4): a(f'v_permlane32_swap_b32 v{g+e}, v{g+4+e}')
    a(f'v_mov_b32 v{tt}, v{lS}')
    for e in range(4): a(f'v_add_f32 v{g+e}, v{g+e}, v{g+4+e}')
    a(f'''
    v_permlane16_swap_b32 v{lS}, v{tt}
    v_permlane16_swap_b32 v{g}, v{g+2}
    v_permlane16_swap_b32 v{g+1}, v{g+3}
    v_add_f32 v{lS}, v{lS}, v{tt}
    v_add_f32 v{g}, v{g}, v{g+2}
    v_add_f32 v{g+1}, v{g+1}, v{g+3}
    v_mov_b32 v{tt}, v{lS}
    v_add_f32_dpp v{g+2}, v{g}, v{g} row_shl:4 row_mask:0xf bank_mask:0x5
    v_permlane32_swap_b32 v{lS}, v{tt}
    v_add_f32_dpp v{g+3}, v{g+1}, v{g+1} row_shl:4 row_mask:0xf bank_mask:0x5
    v_add_f32 v{lS}, v{lS}, v{tt}
    v_add_f32_dpp v{g+2}, v{g}, v{g} row_shr:4 row_mask:0xf bank_mask:0xa
    v_rcp_f32 v{tt}, v{lS}
    v_add_f32_dpp v{g+3}, v{g+1}, v{g+1} row_shr:4 row_mask:0xf bank_mask:0xa
    v_mul_f32 v{g+2}, v{g+2}, v{tt}
    v_mul_f32 v{g+3}, v{g+3}, v{tt}
    v_cvt_pk_bf16_f32 v{g+2}, v{g+2}, v{g+2}
    v_cvt_pk_bf16_f32 v{g+3}, v{g+3}, v{g+3}
    ''')
    onehot_chain([(g + 2 + i // 4, f'quad_perm:[{i%4},{i%4},{i%4},{i%4}]', wt + 4 * i) for i in range(8)])
    write_d_rr(L_ZP)
    a(f's_cmp_lg_u32 s{sW}, 0\ns_cbranch_scc1 L_fin')
    lds_reduce16(L_ZP, g)
    lds_reduce16b(g)
    tagw([g])
    a(f'buffer_store_dword v{g}, v{vT[0]}, {WS_}, s{sT2} offen sc1')
    stamp('w')
    a('s_branch L_fin')
    wD = ring + 40
    vHA = vQ; vXA = vQ + 1; vPA = vQ + 2; vWA = vQ + 3
    a(f'''
    L_g:
    v_lshl_add_u32 v{vT[4]}, v{vG}, 1, v{vT[0]}
    v_mul_u32_u24 v{vT[4]}, 3456, v{vT[4]}
    v_and_b32 v{vT[5]}, 3, v{vLANE}
    v_lshl_add_u32 v{vT[4]}, v{vT[5]}, 4, v{vT[4]}
    s_mul_i32 s{sT0}, s{sW}, {80 * 3456}
    s_lshl_b32 s{sT1}, s{sFS}, 6
    s_add_u32 s{sT0}, s{sT0}, s{sT1}
    v_lshl_add_u32 v{vHA}, v{vG}, 1, v{vT[0]}
    v_lshl_add_u32 v{vHA}, v{vT[5]}, 3, v{vHA}
    s_mul_i32 s{sT3}, s{sW}, 80
    v_add_u32 v{vHA}, s{sT3}, v{vHA}
    v_lshlrev_b32 v{vHA}, 2, v{vHA}
    v_mul_u32_u24 v{vWA}, 1280, v{vG}
    v_lshl_add_u32 v{vWA}, v{vC}, 4, v{vWA}
    v_lshlrev_b32 v{vXA}, 5, v{vG}
    v_lshl_add_u32 v{vXA}, v{vT[1]}, 2, v{vXA}
    v_lshl_add_u32 v{vXA}, v{vT[0]}, 1, v{vXA}
    v_lshlrev_b32 v{vXA}, 1, v{vXA}
    v_lshrrev_b32 v{vPA}, 3, v{vLANE}
    v_mul_u32_u24 v{vPA}, 2560, v{vPA}
    v_lshl_add_u32 v{vPA}, v{vT[1]}, 4, v{vPA}
    ''')
    def g_loads():
        if now: return
        for half in (1, 0):
            for i in range(10):
                r = wt + 4 * (10 * half + i)
                a(f's_add_u32 s{sT1}, s{sT0}, {(half * 320 + 8 * i) * 3456}')
                a(f's_mov_b32 exec_lo, 0x0f0f0f0f\ns_mov_b32 exec_hi, 0x0f0f0f0f')
                a(f'buffer_load_dwordx4 v[{r}:{r+3}], v{vT[4]}, {WG_}, s{sT1} offen {gflags}')
                a(f's_mov_b32 exec_lo, 0xf0f0f0f0\ns_mov_b32 exec_hi, 0xf0f0f0f0')
                a(f'buffer_load_dwordx4 v[{r}:{r+3}], v{vT[4]}, {WU_}, s{sT1} offen {gflags}')
        a('s_mov_b64 exec, -1')
    if gstart: fetch(10)
    else: provision(10, g_loads)
    if dgate == 9: lds_gate(L_CNT + 4, 9)
    elif dgate: lds_gate(L_CNT, dgate)
    a(f'''
    s_mov_b64 exec, -1
    s_cmp_gt_u32 s{sW}, 4
    s_cbranch_scc1 L_g_nogather
    s_mul_i32 s{sT0}, s{sFS}, {32 * 1280}
    s_lshl_b32 s{sT2}, s{sW}, 8
    s_add_u32 s{sT0}, s{sT0}, s{sT2}
    buffer_load_dword v{vXH}, v{vXA}, {X_}, s{sT2} offen
    ''')
    if not now:
        for i in range(8):
            if i: a(f's_add_u32 s{sT0}, s{sT0}, {4 * 1280}')
            a(f'buffer_load_dwordx4 v[{wD+4*i}:{wD+4*i+3}], v{vWA}, {WD_}, s{sT0} offen {dflags}')
    a(f'''
    s_lshl_b32 s{sT1}, s{sW}, 9
    s_add_u32 s{sT0}, s{sT1}, {P2:#x}
    v_lshlrev_b32 v{vXA}, 1, v{vXA}
    v_add_u32 v{vXA}, s{sT1}, v{vXA}
    s_lshl_b32 s{sT3}, s{sW}, 3
    v_mov_b32 v{vT[0]}, s{sT3}
    s_waitcnt vmcnt(0)
    v_lshlrev_b32 v{vT[2]}, 16, v{vXH}
    v_and_b32 v{vT[3]}, s{sC2}, v{vXH}
    ''')
    if dgate != 9: lds_gate(L_CNT + 4, 9)
    stamp('gw')
    def ld2(b):
        for i in range(4): a(f'buffer_load_dwordx4 v[{b+4*i}:{b+4*i+3}], v{vPA}, {WS_}, s{sT0} offen offset:{128*i} sc1')
    poll(ld2, 16, g, 4)
    stamp('h2')
    for i in range(8): a(f'v_permlane32_swap_b32 v{g+i}, v{g+8+i}')
    for i in range(8): a(f'v_add_f32 v{g+i}, v{g+i}, v{g+8+i}')
    for i in range(4): a(f'v_permlane16_swap_b32 v{g+i}, v{g+4+i}')
    for i in range(4): a(f'v_add_f32 v{g+i}, v{g+i}, v{g+4+i}')
    for i in range(2): a(f'v_add_f32_dpp v{g+i}, v{g+i}, v{g+i} row_ror:8 row_mask:0xf bank_mask:0x3')
    for i in range(2): a(f'v_add_f32_dpp v{g+i}, v{g+2+i}, v{g+2+i} row_ror:8 row_mask:0xf bank_mask:0xc')
    h0, h1 = g, g + 1
    a(f'''
    v_cvt_pk_bf16_f32 v{g+2}, v{h0}, v{h1}
    v_lshlrev_b32 v{h0}, 16, v{g+2}
    v_and_b32 v{h1}, s{sC2}, v{g+2}
    v_add_f32 v{h0}, v{h0}, v{vT[2]}
    v_add_f32 v{h1}, v{h1}, v{vT[3]}
    v_cvt_pk_bf16_f32 v{g+2}, v{h0}, v{h1}
    v_lshlrev_b32 v{h0}, 16, v{g+2}
    v_and_b32 v{h1}, s{sC2}, v{g+2}
    v_add_f32 v{g+4}, v{h0}, v{h1}
    v_mul_f32 v{g+5}, v{h0}, v{h0}
    ds_write_b64 v{vXA}, v[{h0}:{h1}] offset:{L_HH}
    v_fmac_f32 v{g+5}, v{h1}, v{h1}
    ''')
    allreduce2(g + 4, g + 5, 'v_add_f32', g + 6, g + 7)
    a(f'''
    ds_write_b64 v{vT[0]}, v[{g+4}:{g+5}] offset:{L_ST}
    s_branch L_g_bar
    L_g_nogather:
    s_waitcnt vmcnt(0)
    L_g_bar:
    s_waitcnt lgkmcnt(0)
    s_barrier
    ds_read_b128 v[{g+4}:{g+7}], v{vZ} offset:{L_ST}
    ds_read_b128 v[{g+8}:{g+11}], v{vZ} offset:{L_ST + 16}
    ds_read_b64 v[{g+12}:{g+13}], v{vZ} offset:{L_ST + 32}
    ds_read_b32 v{g}, v{vHA} offset:{L_HH}
    ds_read_b32 v{g+1}, v{vHA} offset:{L_HH + 128}
    ds_read_b32 v{g+2}, v{vHA} offset:{L_HH + 256}
    s_waitcnt lgkmcnt(3)
    v_add_f32 v{g+4}, v{g+4}, v{g+6}
    v_add_f32 v{g+5}, v{g+5}, v{g+7}
    v_add_f32 v{g+8}, v{g+8}, v{g+10}
    v_add_f32 v{g+9}, v{g+9}, v{g+11}
    v_add_f32 v{g+4}, v{g+4}, v{g+12}
    v_add_f32 v{g+5}, v{g+5}, v{g+13}
    v_add_f32 v{g+4}, v{g+4}, v{g+8}
    v_add_f32 v{g+5}, v{g+5}, v{g+9}
    v_mul_f32 v{g+4}, {INV640:#x}, v{g+4}
    v_mul_f32 v{g+5}, {INV640:#x}, v{g+5}
    v_fma_f32 v{g+5}, -v{g+4}, v{g+4}, v{g+5}
    v_max_f32 v{g+5}, 0, v{g+5}
    ''')
    ln_consts(g + 4, g + 5, g + 6, g + 7, g + 8)
    a('s_waitcnt lgkmcnt(0)')
    ln_apply([g, g + 1, g + 2], g + 6, g + 7, g + 8, [g + 9, g + 10, g + 11])
    stamp('ln2')
    onehot_chain([(g + i // 4, f'quad_perm:[{i%4},{i%4},{i%4},{i%4}]', wt + 4 * i) for i in range(10)])
    write_d_rr(L_GP)
    stamp('g1')
    a(f's_cmp_gt_u32 s{sW}, 4\ns_cbranch_scc1 L_f')
    r = g
    lds_reduce16(L_GP, r)
    a(f'''
    s_mul_i32 s{sT0}, s{sFS}, 2560
    s_lshl_b32 s{sT1}, s{sW}, 9
    s_add_u32 s{sT0}, s{sT0}, s{sT1}
    s_add_u32 s{sT0}, s{sT0}, {P3:#x}
    v_lshlrev_b32 v{vT[0]}, 5, v{vC}
    v_lshl_add_u32 v{vT[0]}, v{vG}, 4, v{vT[0]}
    ''')
    lds_reduce16b(r)
    rbf(r, r)
    a(f'''
    v_mul_f32 v{r+1}, s{sC1}, v{r}
    v_exp_f32 v{r+1}, -v{r+1}
    v_add_f32 v{r+1}, 1.0, v{r+1}
    v_rcp_f32 v{r+2}, v{r+1}
    v_mul_f32 v{r+3}, v{r}, v{r+2}
    ''')
    rbf(r + 3, r + 3)
    a(f'''
    v_mul_f32_dpp v{r+3}, v{r}, v{r+3} row_ror:8 {DPPF}
    v_cvt_pk_bf16_f32 v{r+3}, v{r+3}, v{r+3}
    ''')
    onehot_chain([(r + 3, f'row_newbcast:{i}', wD + 4 * i) for i in range(8)])
    tagw([vD + i for i in range(4)])
    a(f'''
    s_mov_b32 exec_hi, 0
    buffer_store_dwordx4 v[{vD}:{vD+3}], v{vT[0]}, {WS_}, s{sT0} offen sc1
    s_mov_b64 exec, -1
    ''')
    stamp('g')
    a('s_branch L_fin')
    a(f'''
    L_f:
    s_cmp_lg_u32 s{sW}, 7
    s_cbranch_scc1 L_fin
    s_cmp_ge_u32 s{sFS}, 40
    s_cbranch_scc1 L_fin
    v_lshrrev_b32 v{vT[0]}, 2, v{vLANE}
    v_and_b32 v{vT[1]}, 3, v{vLANE}
    v_mul_u32_u24 v{vT[0]}, 2560, v{vT[0]}
    v_lshl_add_u32 v{vT[0]}, v{vT[1]}, 4, v{vT[0]}
    s_lshl_b32 s{sT3}, s{sFS}, 6
    s_add_u32 s{sT0}, s{sT3}, {P3:#x}
    s_add_u32 s{sT1}, s{sT0}, {16 * 2560}
    s_add_u32 s{sT2}, s{sT0}, {32 * 2560}
    s_add_u32 s{sOFF}, s{sT0}, {48 * 2560}
    v_lshl_add_u32 v{vT[1]}, v{vT[1]}, 2, v{vG}
    v_lshlrev_b32 v{vT[1]}, 2, v{vT[1]}
    v_add_u32 v{vT[1]}, s{sT3}, v{vT[1]}
    ds_read_b32 v{vT[2]}, v{vT[1]} offset:{L_HH}
    v_lshrrev_b32 v{vT[1]}, 1, v{vT[1]}
    ''')
    for b in (pA, pB):
        for e in range(4): a(f'v_mov_b32 v{b+12+e}, v{vTAG}')
    a(f'''
    s_cmp_eq_u32 s{sFS}, 0
    s_cselect_b32 s{sT3}, {EPOCH}, {OOB:#x}
    v_mov_b32 v{vT[4]}, s{sTAG}
    s_mov_b64 exec, 1
    buffer_store_dword v{vT[4]}, v{vZ}, {WS_}, s{sT3} offen sc1
    s_mov_b64 exec, -1
    ''')
    def ld3(b):
        for i in range(3): a(f'buffer_load_dwordx4 v[{b+4*i}:{b+4*i+3}], v{vT[0]}, {WS_}, s{(sT0, sT1, sT2)[i]} offen sc1')
        a(f's_mov_b64 exec, 0xffffff\nbuffer_load_dwordx4 v[{b+12}:{b+15}], v{vT[0]}, {WS_}, s{sOFF} offen sc1\ns_mov_b64 exec, -1')
    poll(ld3, 16, g, 4)
    stamp('h3')
    for e in range(4): a(f'v_add_f32 v{g+e}, v{g+e}, v{g+4+e}')
    for e in range(4): a(f'v_add_f32 v{g+8+e}, v{g+8+e}, v{g+12+e}')
    for e in range(4): a(f'v_add_f32 v{g+e}, v{g+e}, v{g+8+e}')
    a(f'''
    v_permlane32_swap_b32 v{g}, v{g+2}
    v_permlane32_swap_b32 v{g+1}, v{g+3}
    v_add_f32 v{g}, v{g}, v{g+2}
    v_add_f32 v{g+1}, v{g+1}, v{g+3}
    v_permlane16_swap_b32 v{g}, v{g+1}
    v_add_f32 v{g}, v{g}, v{g+1}
    v_add_f32_dpp v{g}, v{g}, v{g} row_ror:8 {DPPF}
    v_add_f32_dpp v{g}, v{g}, v{g} row_ror:4 {DPPF}
    ''')
    rbf(g, g)
    a(f'''
    s_waitcnt lgkmcnt(0)
    v_add_f32 v{g}, v{g}, v{vT[2]}
    v_cvt_pk_bf16_f32 v{g}, v{g}, v{g}
    s_mov_b32 exec_lo, 0x000f000f
    s_mov_b32 exec_hi, 0x000f000f
    buffer_store_short v{g}, v{vT[1]}, {OUT_}, 0 offen
    s_mov_b64 exec, -1
    L_fin:
    ''')
    if stamps and dbgout:
        stamp('end')
        a(f'''
        s_cmp_lg_u32 s{sW}, 7
        s_cbranch_scc1 L_end
        s_cmp_lg_u32 s{sROLE}, 2
        s_cbranch_scc1 L_end
        s_cmp_gt_u32 s{sFS}, 1
        s_cbranch_scc1 L_end
        v_readlane_b32 s{sT0}, v{vSTAMP}, 0
        s_lshl_b32 s{sT1}, s{sFS}, 5
        v_lshlrev_b32 v{vT[0]}, 2, v{vLANE}
        v_add_u32 v{vT[0]}, s{sT1}, v{vT[0]}
        v_subrev_u32 v{vT[1]}, s{sT0}, v{vSTAMP}
        s_mov_b64 exec, 0xff
        global_store_dword v{vT[0]}, v{vT[1]}, s[36:37]
        ''')
    elif stamps:
        stamp('end')
        a(f'''
        s_cmp_lg_u32 s{sW}, {stampwave}
        s_cbranch_scc1 L_end
        s_add_u32 s24, s38, 0x10000000
        s_addc_u32 s25, s39, 0
        s_lshl_b32 s{sT0}, s2, 6
        v_lshlrev_b32 v{vT[0]}, 2, v{vLANE}
        v_add_u32 v{vT[0]}, s{sT0}, v{vT[0]}
        s_mov_b64 exec, 0x7fff
        global_store_dword v{vT[0]}, v{vSTAMP}, s[24:25]
        ''')
    a('L_end:\ns_endpgm')
    return build_file([f'; @launch grid=(256,1,1) block=(512,1,1) lds={lds}'], [(NAME + '_kernel', a.text(), V.high, 102)])

if __name__ == '__main__':
    import json
    out = sys.argv[1]
    kw = json.loads(sys.argv[2]) if len(sys.argv) > 2 else {}
    open(out, 'w').write(gen(**kw))
```

```python
import sys, struct
from asmlib import *

def f2u(x): return struct.unpack('<I', struct.pack('<f', x))[0]
LOG2E = f2u(1.4426950408889634)
SCALE = f2u(128 ** -0.5)
INV640 = f2u(1.0 / 640)
EPS = f2u(1e-5)
NEGINF = 0xff800000

EPOCH = 0x0
CTR = 0x1000
CTRS = 0x1100
QS = 0x40000
P1 = 0x80000
P2 = 0xC0000
P3 = 0xD0000
WS_END = P3 + 54 * 2560
OOB = 0x40000000
L_Q = 0; L_CNT = 256; L_M = 320; L_L = 352; L_ST = 384; L_OP = 4096; L_ZP = 8192; L_GP = 12288; L_HH = 16384; L_WT = 20480

DPPF = 'row_mask:0xf bank_mask:0xf'

def gen(NEo=17, NOo=15, NEy=11, NOy=9, HROT=74, S=32, LA=16, stamps=False, kvflags='nt', wqflags='nt', wflags='nt', lds=104448,
        spin=200000, stampwave=0, notail=False, now=False, n0=4, psleep=0, mapping='all', gstop=0, g1=6, pipe=False, gflags=None, wgate=4, wstop=0, dflags=None, dgate=9, gstart=True, wstart=True, vflags=None, dbgout=False, diagpad=None):
    a = Asm()
    V = Alloc(1, 256)
    U = 4
    if gflags is None: gflags = wflags
    if vflags is None: vflags = kvflags
    if dflags is None: dflags = wflags
    OY = 16 * (NEo + NOo)
    OP = OY + 16 * (NEy + NOy)
    NCH = (1024 - OP) // 2
    assert OP <= 1024 and HROT % 2 == 0
    NTMAX = (max(NEo, NEy) * U + 15) // 16
    sW, sH, sIDX, sPAR, sS = 3, 4, 5, 6, 7
    K_, V_, WQ_, WS_, X_, WO_, WG_, WU_, WD_, OUT_ = [f's[{b}:{b+3}]' for b in (8, 12, 40, 44, 48, 52, 56, 60, 64, 68)]
    sOFF, sOFF0, sEX0, sT0, sT1, sT2, sT3 = 76, 77, 78, 80, 81, 82, 83
    sSLOT, sROLE, sGAM, sCS, sFS, sSPIN, sTAG, sTAG8 = 84, 85, 87, 88, 89, 91, 92, 93
    sC1, sC2 = 94, 95
    sROT, sCTR, sNXT, sLIM, sAOFF, sMSK8 = 72, 73, 74, 75, 86, 90
    sM1, sM0 = 's[16:17]', 's[18:19]'
    sVa, sVb = 's[20:21]', 's[22:23]'
    sLO8 = 's[26:27]'
    slist = stamps if isinstance(stamps, list) else []
    def stamp(name):
        if name in slist:
            a(f's_memrealtime s[96:97]\ns_waitcnt lgkmcnt(0)\nv_writelane_b32 v{vSTAMP}, s96, {1 + slist.index(name)}')
    q = []
    def vm(tag, text):
        a(text); q.append(tag)
    def wait(tag):
        idx = max(i for i, t in enumerate(q) if t == tag)
        n = len(q) - 1 - idx
        assert n <= 63, n
        a(f's_waitcnt vmcnt({n})')

    vSTAMP = V.get() if stamps else None
    vLANE = V.get(); vG = V.get(); vC = V.get(); vKV = V.get(); vKV2 = V.get()
    vT = [V.get() for _ in range(8)]
    vDA = V.get(); vXH = V.get(); vTAG = V.get(); vTK = V.get(); vM = V.get(); vL = V.get(); vZ = V.get()
    vMASK = V.get(4, 4)
    vA = [V.get(4, 4), V.get(4, 4)]
    vD = V.get(4, 4)
    vQ = V.get(4, 4)
    vSC = [V.get() for _ in range(NTMAX)]
    vACC = V.get(16, 4)
    gat = V.get(16, 4)
    ring = V.get(4 * S, 4)
    wqs = ring + 4 * (S - 20)
    assert n0 <= S - 20 and S == 32
    pA, pB = ring + 96, ring + 112

    def allreduce(r, op, t):
        for k in (8, 4, 2, 1):
            a(f'{op}_dpp v{r}, v{r}, v{r} row_ror:{k} {DPPF}')
        for sw in ('v_permlane16_swap_b32', 'v_permlane32_swap_b32'):
            a(f'v_mov_b32 v{t}, v{r}\n{sw} v{r}, v{t}\n{op} v{r}, v{r}, v{t}')
    def allreduce2(r0, r1, op, t0, t1):
        for k in (8, 4, 2, 1):
            a(f'{op}_dpp v{r0}, v{r0}, v{r0} row_ror:{k} {DPPF}\n{op}_dpp v{r1}, v{r1}, v{r1} row_ror:{k} {DPPF}')
        for sw in ('v_permlane16_swap_b32', 'v_permlane32_swap_b32'):
            a(f'v_mov_b32 v{t0}, v{r0}\nv_mov_b32 v{t1}, v{r1}\n{sw} v{r0}, v{t0}\n{sw} v{r1}, v{t1}\n{op} v{r0}, v{r0}, v{t0}\n{op} v{r1}, v{r1}, v{t1}')
    def rbf(d, s):
        a(f'v_cvt_pk_bf16_f32 v{d}, v{s}, v{s}\nv_lshlrev_b32 v{d}, 16, v{d}')
    def ln_consts(vmean, vvar, vm_bf, vs_bf, vr):
        rbf(vs_bf, vvar)
        rbf(vm_bf, vmean)
        a(f'v_add_f32 v{vs_bf}, {EPS:#x}, v{vs_bf}')
        rbf(vs_bf, vs_bf)
        a(f'v_sqrt_f32 v{vs_bf}, v{vs_bf}')
        rbf(vs_bf, vs_bf)
        a(f'v_rcp_f32 v{vr}, v{vs_bf}')
    def ln_apply(xs, vm_bf, vs_bf, vr, ts):
        for x in xs: a(f'v_sub_f32 v{x}, v{x}, v{vm_bf}')
        for x in xs: a(f'v_cvt_pk_bf16_f32 v{x}, v{x}, v{x}')
        for x in xs: a(f'v_lshlrev_b32 v{x}, 16, v{x}')
        for x, t in zip(xs, ts): a(f'v_mul_f32 v{t}, v{x}, v{vr}')
        for x, t in zip(xs, ts): a(f'v_fma_f32 v{x}, -v{t}, v{vs_bf}, v{x}')
        for x, t in zip(xs, ts): a(f'v_fma_f32 v{x}, v{x}, v{vr}, v{t}')
        for x in xs: a(f'v_cvt_pk_bf16_f32 v{x}, v{x}, v{x}')
    def ands(pk, sel, k):
        A = vA[k & 1]
        for jj in range(4): a(f'v_and_b32_dpp v{A + jj}, v{pk}, v{vMASK + jj} {sel} {DPPF}')
    def mfma(data, k, first=False):
        A = vA[k & 1]
        c = '0' if first else f'v[{vD}:{vD+3}]'
        a(f'v_mfma_f32_16x16x32_bf16 v[{vD}:{vD+3}], v[{A}:{A+3}], v[{data}:{data+3}], {c}')
    def onehot_chain(items, pre=None):
        ands(items[0][0], items[0][1], 0)
        for k, (pk, sel, data) in enumerate(items):
            if k + 1 < len(items): ands(items[k+1][0], items[k+1][1], k + 1)
            if pre: pre(k)
            mfma(data, k, first=(k == 0))
    def tagw(regs, rnd=False):
        if rnd:
            for r in regs: a(f'v_add_u32 v{r}, 0x80, v{r}')
        for r in regs: a(f'v_and_or_b32 v{r}, v{r}, s{sMSK8}, v{vTAG}')
    def check(src, dst, n):
        t = vT[7]
        for i in range(n): a(f'v_xor_b32 v{dst+i}, s{sTAG8}, v{src+i}')
        rs = [dst + i for i in range(n)]
        a(f'v_or3_b32 v{t}, v{rs[0]}, v{rs[1]}, v{rs[2]}'); rs = rs[3:]
        while rs:
            if len(rs) >= 2: a(f'v_or3_b32 v{t}, v{t}, v{rs[0]}, v{rs[1]}'); rs = rs[2:]
            else: a(f'v_or_b32 v{t}, v{t}, v{rs[0]}'); rs = []
        a(f'v_and_b32 v{t}, 0xff, v{t}\nv_cmp_ne_u32 vcc, 0, v{t}')
    npoll = [0]
    def poll(loads, n, dst, nl):
        L = f'L_poll{npoll[0]}'; npoll[0] += 1
        a(f's_mov_b32 s{sSPIN}, {spin}')
        if pipe:
            loads(pA)
            a(f'{L}:')
            loads(pB)
            a(f's_waitcnt vmcnt({nl})')
            check(pA, dst, n)
            a(f's_cbranch_vccz {L}_done')
            loads(pA)
            a(f's_waitcnt vmcnt({nl})')
            check(pB, dst, n)
            a(f'''
            s_cbranch_vccz {L}_done
            s_sub_u32 s{sSPIN}, s{sSPIN}, 1
            s_cbranch_scc0 {L}
            {L}_done:
            ''')
        else:
            a(f'{L}:')
            loads(pA)
            a('s_waitcnt vmcnt(0)')
            check(pA, dst, n)
            a(f's_cbranch_vccz {L}_done')
            if psleep: a(f's_sleep {psleep}')
            a(f's_sub_u32 s{sSPIN}, s{sSPIN}, 1\ns_cbranch_scc0 {L}\n{L}_done:')
    def lds_reduce16(base, r):
        for i in range(4): a(f'ds_read_b128 v[{r + 4*i}:{r + 4*i + 3}], v{vRA} offset:{base + 256 * i}')
    def lds_reduce16b(r):
        a('s_waitcnt lgkmcnt(2)')
        for e in range(4): a(f'v_add_f32 v{r+e}, v{r+e}, v{r+4+e}')
        a('s_waitcnt lgkmcnt(0)')
        for e in range(4): a(f'v_add_f32 v{r+8+e}, v{r+8+e}, v{r+12+e}')
        for e in range(4): a(f'v_add_f32 v{r+e}, v{r+e}, v{r+8+e}')
        a(f'''
        v_permlane32_swap_b32 v{r}, v{r+2}
        v_permlane32_swap_b32 v{r+1}, v{r+3}
        v_add_f32 v{r}, v{r}, v{r+2}
        v_add_f32 v{r+1}, v{r+1}, v{r+3}
        v_permlane16_swap_b32 v{r}, v{r+1}
        v_add_f32 v{r}, v{r}, v{r+1}
        ''')
    def write_d_rr(base):
        a(f'''
        s_mov_b32 exec_lo, 0x00ff00ff
        s_mov_b32 exec_hi, 0xff00ff00
        ds_write_b128 v{vDA2}, v[{vD}:{vD+3}] offset:{base}
        s_mov_b64 exec, -1
        s_waitcnt lgkmcnt(0)
        s_barrier
        ''')
    def lds_add(off, rtn=None):
        a(f'v_mov_b32 v{vT[6]}, 1\ns_mov_b64 exec, 1')
        if rtn: a(f'ds_add_rtn_u32 v{vT[6]}, v{vZ}, v{vT[6]} offset:{off}')
        else: a(f'ds_add_u32 v{vZ}, v{vT[6]} offset:{off}')
        a('s_mov_b64 exec, -1')
    ngate = [0]
    def lds_gate(off, val):
        L = f'L_gate{ngate[0]}'; ngate[0] += 1
        a(f'''
        {L}:
        ds_read_b32 v{vT[6]}, v{vZ} offset:{off}
        s_waitcnt lgkmcnt(0)
        v_cmp_gt_u32 vcc, {val}, v{vT[6]}
        s_cbranch_vccz {L}_done
        s_sleep 2
        s_branch {L}
        {L}_done:
        ''')

    a(f'''
    s_cmp_ge_u32 s2, 256
    s_cbranch_scc1 L_end
    s_load_dwordx16 s[16:31], s[0:1], 0
    s_load_dwordx8 s[32:39], s[0:1], 64
    ''')
    if stamps: a(f's_memrealtime s[98:99]\nv_mov_b32 v{vSTAMP}, 0')
    a(f'''
    v_lshrrev_b32 v{vT[0]}, 6, v0
    v_and_b32 v{vLANE}, 63, v0
    v_readfirstlane_b32 s{sW}, v{vT[0]}
    v_lshrrev_b32 v{vG}, 4, v{vLANE}
    v_and_b32 v{vC}, 15, v{vLANE}
    v_lshlrev_b32 v{vKV}, 4, v{vLANE}
    v_mov_b32 v{vZ}, 0
    s_and_b32 s{sPAR}, s2, 1
    ''')
    if mapping == 'all':
        a(f's_lshr_b32 s{sH}, s2, 3\ns_and_b32 s{sS}, s2, 7')
    elif mapping == 'pair':
        a(f'''
        s_and_b32 s{sH}, s2, 6
        s_lshl_b32 s{sH}, s{sH}, 2
        s_lshr_b32 s{sT0}, s2, 5
        s_add_u32 s{sH}, s{sH}, s{sT0}
        s_lshr_b32 s{sS}, s2, 2
        s_and_b32 s{sS}, s{sS}, 6
        s_or_b32 s{sS}, s{sS}, s{sPAR}
        ''')
    else:
        a(f'''
        s_and_b32 s{sH}, s2, 2
        s_lshl_b32 s{sH}, s{sH}, 3
        s_lshr_b32 s{sT0}, s2, 4
        s_add_u32 s{sH}, s{sH}, s{sT0}
        s_lshr_b32 s{sS}, s2, 1
        s_and_b32 s{sS}, s{sS}, 6
        s_or_b32 s{sS}, s{sS}, s{sPAR}
        ''')
    a(f'''
    s_lshl_b32 s{sT1}, s{sH}, 8
    s_mul_i32 s{sT2}, s{sS}, {80 * 8192}
    s_add_u32 s{sT1}, s{sT1}, s{sT2}
    s_mov_b32 s42, {80 * 8192}
    s_mov_b32 s43, 0x20000
    s_mov_b32 s50, 1280
    s_mov_b32 s51, 0x20000
    s_mov_b32 s46, {WS_END}
    s_mov_b32 s47, 0x20000
    v_lshlrev_b32 v{vT[1]}, 13, v{vG}
    v_lshl_add_u32 v{vT[1]}, v{vC}, 4, v{vT[1]}
    v_lshlrev_b32 v{vT[2]}, 2, v{vLANE}
    v_lshl_add_u32 v{vT[3]}, v{vC}, 2, v{vG}
    v_lshlrev_b32 v{vT[3]}, 1, v{vT[3]}
    s_mul_i32 s{sT3}, s{sS}, 160
    s_lshr_b32 s{sIDX}, s{sS}, 1
    s_lshl_b32 s{sIDX}, s{sIDX}, 2
    s_and_b32 s{sT2}, s{sW}, 3
    s_add_u32 s{sIDX}, s{sIDX}, s{sT2}
    s_mul_i32 s{sROT}, s{sH}, {HROT}
    s_cmp_lt_u32 s{sW}, 4
    s_cselect_b32 s{sT2}, 0, {OY}
    s_add_u32 s{sIDX}, s{sIDX}, s{sT2}
    s_add_u32 s{sIDX}, s{sIDX}, s{sROT}
    s_lshl_b32 s{sOFF0}, s{sPAR}, 4
    s_add_u32 s{sOFF0}, s{sOFF0}, s{sIDX}
    s_lshl_b32 s{sOFF0}, s{sOFF0}, 12
    s_and_b32 s{sOFF0}, s{sOFF0}, 0x3fffff
    s_lshl_b32 s{sT0}, s{sH}, 22
    s_mul_i32 s{sCTR}, s{sH}, {CTRS}
    s_add_u32 s{sCTR}, s{sCTR}, {CTR}
    s_mov_b32 s10, 0x400000
    s_mov_b32 s11, 0x20000
    s_waitcnt lgkmcnt(0)
    s_mov_b32 s48, s16
    s_mov_b32 s49, s17
    s_add_u32 s40, s22, s{sT1}
    s_addc_u32 s41, s23, 0
    s_add_u32 s8, s18, s{sT0}
    s_addc_u32 s9, s19, 0
    s_mov_b32 s44, s38
    s_mov_b32 s45, s39
    s_load_dword s{sTAG}, s[38:39], {EPOCH}
    ''')
    if stamps: a(f'v_writelane_b32 v{vSTAMP}, s98, 0')
    vX = gat; vXS = gat + 5
    a(f'''
    s_cmp_lg_u32 s{sW}, 0
    s_cbranch_scc1 L_noq1
    s_cmp_eq_u32 s{sS}, 0
    s_cselect_b32 s{sT1}, s{sCTR}, {OOB:#x}
    s_mov_b64 exec, 1
    buffer_store_dword v{vZ}, v{vZ}, {WS_}, s{sT1} offen sc1
    s_mov_b64 exec, -1
    ''')
    for i in range(20):
        if i: a(f's_mov_b32 s{sT1}, {i * 32768}')
        vm(('wq', i), f'buffer_load_dwordx4 v[{wqs + 4*i}:{wqs + 4*i + 3}], v{vT[1]}, {WQ_}, {"0" if i == 0 else "s%d" % sT1} offen {wqflags}')
        if i == 3:
            for k in range(5): vm('x', f'buffer_load_dword v{vX + k}, v{vT[2]}, {X_}, 0 offen offset:{256 * k}')
            vm('x', f'buffer_load_ushort v{vXS}, v{vT[3]}, {X_}, s{sT3} offen')
            vm('x', f'buffer_load_ushort v{vXS + 1}, v{vT[3]}, {X_}, s{sT3} offen offset:128')
    a('L_noq1:\ns_barrier')

    def issue_static(m, n, x, NX, track=True):
        k, i = divmod(n, U)
        so = sOFF
        if 8 <= k < 8 + NX: so = sEX0 + k - 8
        elif i == 0:
            if k == 0: a(f's_mov_b32 s{sOFF}, s{sOFF0}')
            else: a(f's_add_u32 s{sOFF}, s{sOFF}, {32 * 4096}\ns_and_b32 s{sOFF}, s{sOFF}, 0x3fffff')
        r = ring + (x % S) * 4
        txt = f'buffer_load_dwordx4 v[{r}:{r+3}], v{vKV}, {K_ if m == "K" else V_}, s{so} offen offset:{i * 1024} {kvflags if m == "K" else vflags}'
        if track: vm(('r', x), txt)
        else: a(txt)
    assert min(NOo, NOy) * U >= S
    def lanemask(nvalid):
        nvalid = max(0, min(16, nvalid))
        m = (1 << nvalid) - 1
        return m | (m << 16)
    def common_setup():
        a(f'''
        s_add_u32 s12, s20, s{sT0}
        s_addc_u32 s13, s21, 0
        s_mov_b32 s14, 0x400000
        s_mov_b32 s15, 0x20000
        s_lshl_b32 s{sSLOT}, s{sH}, 3
        s_add_u32 s{sSLOT}, s{sSLOT}, s{sS}
        s_and_b32 s{sGAM}, s2, 7
        s_lshr_b32 s{sT1}, s2, 3
        s_lshl_b32 s{sT2}, s{sGAM}, 2
        s_add_u32 s{sT1}, s{sT1}, s{sT2}
        s_and_b32 s{sT1}, s{sT1}, 31
        s_lshr_b32 s{sFS}, s{sT1}, 1
        s_lshl_b32 s{sFS}, s{sFS}, 3
        s_add_u32 s{sFS}, s{sFS}, s{sGAM}
        s_cmp_lt_u32 s{sFS}, 27
        s_cselect_b32 s{sROLE}, 2, 0
        s_mov_b32 s{sLIM}, {NCH}
        s_cselect_b32 s{sLIM}, {max(0, NCH - gstop)}, s{sLIM}
        s_lshl_b32 s{sFS}, s{sFS}, 1
        s_and_b32 s{sT2}, s{sT1}, 1
        s_add_u32 s{sFS}, s{sFS}, s{sT2}
        s_sub_u32 s{sCS}, s{sT1}, 8
        s_cmp_lt_u32 s{sCS}, 10
        s_cselect_b32 s{sROLE}, 1, s{sROLE}
        s_cselect_b32 s{sLIM}, {max(0, NCH - wstop)}, s{sLIM}
        ''')
        for b, p, n in ((52, 24, 4096 * 1280), (56, 28, 640 * 3456), (60, 30, 640 * 3456), (64, 32, 1728 * 1280), (68, 34, 1280)):
            a(f's_mov_b32 s{b}, s{p}\ns_mov_b32 s{b+1}, s{p+1}\ns_mov_b32 s{b+2}, {n}\ns_mov_b32 s{b+3}, 0x20000')
        a(f'''
        s_mov_b32 s16, 0xcccccccc
        s_mov_b32 s17, 0xcccccccc
        s_mov_b32 s18, 0xaaaaaaaa
        s_mov_b32 s19, 0xaaaaaaaa
        s_mov_b32 s26, 0x00ff00ff
        s_mov_b32 s27, 0x00ff00ff
        s_mov_b32 s{sC1}, {LOG2E:#x}
        s_mov_b32 s{sC2}, 0xffff0000
        s_mov_b32 s{sMSK8}, 0xffffff00
        v_add_u32 v{vKV2}, 4096, v{vKV}
        v_and_b32 v{vT[5]}, 1, v{vC}
        v_lshlrev_b32 v{vT[5]}, 4, v{vT[5]}
        v_mov_b32 v{vT[6]}, 0xffff
        v_lshlrev_b32 v{vT[5]}, v{vT[5]}, v{vT[6]}
        v_bfe_u32 v{vT[6]}, v{vC}, 1, 2
        ''')
        for jj in range(4):
            a(f'v_cmp_eq_u32 vcc, {jj}, v{vT[6]}\nv_cndmask_b32 v{vMASK + jj}, 0, v{vT[5]}, vcc')
        a(f'''
        v_lshlrev_b32 v{vDA}, 5, v{vC}
        v_lshl_add_u32 v{vDA}, v{vG}, 4, v{vDA}
        s_waitcnt lgkmcnt(0)
        s_add_u32 s{sTAG}, s{sTAG}, 1
        s_and_b32 s{sTAG8}, s{sTAG}, 0xff
        v_mov_b32 v{vTAG}, s{sTAG8}
        ''')
    a(f's_cmp_eq_u32 s{sW}, 0\ns_cbranch_scc1 L_q')
    for x in range(4): issue_static('K', x, x, 0, track=False)
    a('L_q:')
    common_setup()
    a(f's_cmp_eq_u32 s{sW}, 0\ns_cbranch_scc1 L_q2')
    if (gstart or wstart) and not now:
        a(f'''
        s_cmp_lt_u32 s{sW}, 4
        s_cbranch_scc1 L_dma_done
        v_bfe_u32 v{vT[0]}, v{vLANE}, 3, 1               ; rr
        s_and_b32 s{sT3}, s{sW}, 3
        s_cmp_eq_u32 s{sROLE}, 2
        s_cbranch_scc1 L_dma_g
        s_cmp_eq_u32 s{sROLE}, 1
        s_cbranch_scc0 L_dma_done
        ''')
        if wstart:
            a(f'''
            v_lshrrev_b32 v{vT[4]}, 1, v{vG}
            v_lshlrev_b32 v{vT[4]}, 5, v{vT[4]}
            v_lshl_add_u32 v{vT[4]}, v{vT[0]}, 4, v{vT[4]}
            v_and_b32 v{vT[2]}, 1, v{vG}
            v_lshl_add_u32 v{vT[4]}, v{vT[2]}, 1, v{vT[4]}
            v_mul_u32_u24 v{vT[4]}, 1280, v{vT[4]}
            v_and_b32 v{vT[1]}, 7, v{vLANE}
            v_lshl_add_u32 v{vT[4]}, v{vT[1]}, 4, v{vT[4]}
            s_lshl_b32 s{sT0}, s{sGAM}, 9
            s_lshl_b32 s{sT1}, s{sT3}, 7
            s_add_u32 s{sT0}, s{sT0}, s{sT1}
            s_mul_i32 s{sT0}, s{sT0}, 1280
            s_lshl_b32 s{sT1}, s{sCS}, 7
            s_add_u32 s{sT0}, s{sT0}, s{sT1}
            s_lshl_b32 s{sT3}, s{sT3}, 14
            s_add_u32 s{sT3}, s{sT3}, {L_WT}
            ''')
            for half in range(2):
                for n in range(4):
                    for k in range(2):
                        a(f's_add_u32 m0, s{sT3}, {(8 * half + 4 * k + n) * 1024}\ns_add_u32 s{sT1}, s{sT0}, {(half * 64 + 4 * n + k) * 1280}')
                        a(f'buffer_load_dwordx4 v{vT[4]}, {WO_}, s{sT1} offen {wflags} lds')
        a('s_branch L_dma_done\nL_dma_g:')
        if gstart:
            a(f'''
            v_lshl_add_u32 v{vT[4]}, v{vG}, 1, v{vT[0]}
            v_mul_u32_u24 v{vT[4]}, 3456, v{vT[4]}
            v_and_b32 v{vT[5]}, 3, v{vLANE}
            v_lshl_add_u32 v{vT[4]}, v{vT[5]}, 4, v{vT[4]}
            s_mul_i32 s{sT0}, s{sT3}, {160 * 3456}
            s_lshl_b32 s{sT1}, s{sFS}, 6
            s_add_u32 s{sT0}, s{sT0}, s{sT1}
            s_mul_i32 s{sT3}, s{sT3}, {20 * 1024}
            s_add_u32 s{sT3}, s{sT3}, {L_WT}
            ''')
            for i in range(20):
                a(f's_add_u32 m0, s{sT3}, {i * 1024}\ns_add_u32 s{sT1}, s{sT0}, {8 * i * 3456}')
                a(f's_mov_b32 exec_lo, 0x0f0f0f0f\ns_mov_b32 exec_hi, 0x0f0f0f0f')
                a(f'buffer_load_dwordx4 v{vT[4]}, {WG_}, s{sT1} offen {gflags} lds')
                a(f's_mov_b32 exec_lo, 0xf0f0f0f0\ns_mov_b32 exec_hi, 0xf0f0f0f0')
                a(f'buffer_load_dwordx4 v{vT[4]}, {WU_}, s{sT1} offen {gflags} lds')
            a('s_mov_b64 exec, -1')
        a('L_dma_done:')
    for x in range(4, S): issue_static('K', x, x, 0, track=False)
    a('s_branch L_qdone\nL_q2:')
    a(f'ds_write_b32 v{vZ}, v{vZ} offset:{L_CNT}\nds_write_b32 v{vZ}, v{vZ} offset:{L_CNT+4}\nds_write_b32 v{vZ}, v{vZ} offset:{L_CNT+8}')
    wait('x')
    xs = vACC
    for i in range(5):
        a(f'v_lshlrev_b32 v{xs + 2*i}, 16, v{vX + i}\nv_and_b32 v{xs + 2*i + 1}, s{sC2}, v{vX + i}')
    sm = vT[0]
    a(f'v_add_f32 v{sm}, v{xs}, v{xs+1}')
    for i in range(2, 10): a(f'v_add_f32 v{sm}, v{sm}, v{xs + i}')
    allreduce(sm, 'v_add_f32', vT[2])
    a(f'v_mul_f32 v{sm}, {INV640:#x}, v{sm}')
    vv = vT[3]
    for i in range(10): a(f'v_sub_f32 v{xs + i}, v{xs + i}, v{sm}')
    a(f'v_mul_f32 v{vv}, v{xs}, v{xs}')
    for i in range(1, 10): a(f'v_fmac_f32 v{vv}, v{xs + i}, v{xs + i}')
    allreduce(vv, 'v_add_f32', vT[2])
    a(f'v_mul_f32 v{vv}, {INV640:#x}, v{vv}')
    ln_consts(sm, vv, vT[4], vT[5], vT[6])
    for i in range(2): a(f'v_lshlrev_b32 v{vXS + i}, 16, v{vXS + i}')
    ln_apply([vXS, vXS + 1], vT[4], vT[5], vT[6], [vT[1], vT[2]])
    stamp('ln')
    onehot_chain([(vXS + i // 16, f'row_newbcast:{i % 16}', wqs + 4 * i) for i in range(20)],
                 pre=lambda k: wait(('wq', k + 1)) if k % 2 == 0 else None)
    g = gat
    a(f's_lshl_b32 s{sT0}, s{sSLOT}, 9\ns_add_u32 s{sT0}, s{sT0}, {QS:#x}')
    tagw([vD + i for i in range(4)], rnd=True)
    a(f'''
    s_mov_b32 exec_hi, 0
    buffer_store_dwordx4 v[{vD}:{vD+3}], v{vDA}, {WS_}, s{sT0} offen sc1
    s_mov_b64 exec, -1
    ''')
    stamp('qpub')
    for x in range(n0): issue_static('K', x, x, 0, track=False)
    a(f'''
    s_lshl_b32 s{sT0}, s{sH}, 12
    s_add_u32 s{sT0}, s{sT0}, {QS:#x}
    s_mov_b32 s{sSPIN}, {spin}
    L_qpoll:
    ''')
    for i in range(4):
        a(f'buffer_load_dwordx4 v[{pA+4*i}:{pA+4*i+3}], v{vKV}, {WS_}, s{sT0} offen offset:{i * 1024} sc1')
    a('s_waitcnt vmcnt(0)')
    check(pA, g, 16)
    a(f'''
    s_cbranch_vccz L_qpoll_done
    s_sub_u32 s{sSPIN}, s{sSPIN}, 1
    s_cbranch_scc0 L_qpoll
    L_qpoll_done:
    ''')
    stamp('qgot')
    for e in range(4): a(f'v_add_f32 v{g+e}, v{g+e}, v{g+4+e}\nv_add_f32 v{g+8+e}, v{g+8+e}, v{g+12+e}')
    for e in range(4): a(f'v_add_f32 v{g+e}, v{g+e}, v{g+8+e}')
    a(f'''
    v_and_b32 v{vT[0]}, 31, v{vLANE}
    v_lshrrev_b32 v{vT[1]}, 5, v{vLANE}
    v_permlane32_swap_b32 v{g}, v{g+2}
    v_permlane32_swap_b32 v{g+1}, v{g+3}
    v_lshl_add_u32 v{vT[0]}, v{vT[0]}, 1, v{vT[1]}
    v_add_f32 v{g}, v{g}, v{g+2}
    v_add_f32 v{g+1}, v{g+1}, v{g+3}
    v_lshlrev_b32 v{vT[0]}, 2, v{vT[0]}
    v_cvt_pk_bf16_f32 v{g}, v{g}, v{g+1}
    ds_write_b32 v{vT[0]}, v{g} offset:{L_Q}
    s_waitcnt lgkmcnt(0)
    s_barrier
    ''')
    for x in range(n0, S): issue_static('K', x, x, 0, track=False)
    a('s_branch L_qread\nL_qdone:\ns_barrier\nL_qread:')
    a(f'''
    v_lshlrev_b32 v{vT[0]}, 4, v{vC}
    ds_read_b128 v[{vQ}:{vQ+3}], v{vT[0]} offset:{L_Q}
    s_lshl_b32 s{sT0}, s{sW}, 9
    v_add_u32 v{vDA}, s{sT0}, v{vDA}
    s_waitcnt lgkmcnt(0)
    ''')
    stamp('q')

    def reduce_tile(s, n, valid):
        A = [vACC + i if i < n else None for i in range(16)]
        B = []
        for jj in range(8):
            x, y = A[jj], A[jj + 8]
            if x is None: B.append(None); continue
            if y is None: a(f'v_add_f32_dpp v{x}, v{x}, v{x} row_ror:8 {DPPF}')
            else: a(f'v_add_f32_dpp v{x}, v{x}, v{x} row_ror:8 row_mask:0xf bank_mask:0x3')
            B.append(x)
        for jj in range(8):
            x, y = A[jj], A[jj + 8]
            if x is not None and y is not None:
                a(f'v_add_f32_dpp v{x}, v{y}, v{y} row_ror:8 row_mask:0xf bank_mask:0xc')
        C = []
        for jj in range(4):
            x = B[jj]
            d = vACC + 8 + jj
            a(f'v_add_f32_dpp v{d}, v{x}, v{x} row_shl:4 row_mask:0xf bank_mask:0x5')
            C.append(d)
        for jj in range(4):
            x, y = B[jj], B[jj + 4]
            z = y if y is not None else x
            a(f'v_add_f32_dpp v{C[jj]}, v{z}, v{z} row_shr:4 row_mask:0xf bank_mask:0xa')
        for jj in range(4): a(f'v_add_f32_dpp v{C[jj]}, v{C[jj]}, v{C[jj]} quad_perm:[2,3,0,1] {DPPF}')
        a(f'v_cndmask_b32 v{C[0]}, v{C[0]}, v{C[2]}, {sM1}\nv_cndmask_b32 v{C[1]}, v{C[1]}, v{C[3]}, {sM1}')
        for jj in range(2): a(f'v_add_f32_dpp v{C[jj]}, v{C[jj]}, v{C[jj]} quad_perm:[1,0,3,2] {DPPF}')
        a(f'v_cndmask_b32 v{s}, v{C[0]}, v{C[1]}, {sM0}')
        rbf(s, s)
        a(f'v_mul_f32 v{s}, {SCALE:#x}, v{s}')
        rbf(s, s)
        if valid:
            a(f'v_mov_b32 v{C[0]}, {NEGINF:#x}\nv_cndmask_b32 v{s}, v{C[0]}, v{s}, {valid}')
    def dots(r0, r1, a0):
        for jj in range(4):
            a(f'v_dot2_f32_bf16 v{a0}, v{r0 + jj}, v{vQ + jj}, {"0" if jj == 0 else "v%d" % a0}')
            a(f'v_dot2_f32_bf16 v{a0+1}, v{r1 + jj}, v{vQ + jj}, {"0" if jj == 0 else "v%d" % (a0+1)}')
    def claim():
        a(f'v_mov_b32 v{vTK}, 1\ns_mov_b64 exec, 1')
        vm('A', f'buffer_atomic_add v{vTK}, v{vZ}, {WS_}, s{sAOFF} offen sc0 sc1')
        a('s_mov_b64 exec, -1')
    def ticket():
        a(f'''
        v_readfirstlane_b32 s{sT0}, v{vTK}
        s_cmp_eq_u32 s{sAOFF}, s{sCTR}
        s_cselect_b32 s{sT0}, s{sT0}, {NCH}
        s_cmp_lt_u32 s{sT0}, s{sLIM}
        s_cselect_b32 s{sAOFF}, s{sCTR}, {OOB:#x}
        s_lshl_b32 s{sNXT}, s{sT0}, 1
        s_add_u32 s{sNXT}, s{sNXT}, s{sROT}
        s_add_u32 s{sNXT}, s{sNXT}, {OP}
        s_lshl_b32 s{sNXT}, s{sNXT}, 12
        s_and_b32 s{sNXT}, s{sNXT}, 0x3fffff
        s_cmp_lt_u32 s{sT0}, {NCH}
        s_cselect_b32 s{sNXT}, s{sNXT}, {OOB:#x}
        ''')
    def write_ml():
        a(f'''
        s_lshl_b32 s{sT0}, s{sW}, 2
        v_mov_b32 v{vT[3]}, s{sT0}
        ds_write_b32 v{vT[3]}, v{vM} offset:{L_M}
        ds_write_b32 v{vT[3]}, v{vL} offset:{L_L}
        ''')

    def stream(NE, NO, dyn, tg):
        NL = NE * U
        NT = (NL + 15) // 16
        N = 2 * NL
        assert NE - NO <= 2
        for e in range(NE - NO):
            a(f'''
            s_add_u32 s{sEX0 + e}, s{sIDX}, {NO * 32 + e * 16}
            s_lshl_b32 s{sEX0 + e}, s{sEX0 + e}, 12
            s_and_b32 s{sEX0 + e}, s{sEX0 + e}, 0x3fffff
            s_cmp_eq_u32 s{sPAR}, 0
            s_cselect_b32 s{sEX0 + e}, s{sEX0 + e}, {OOB:#x}
            ''')
        sVAL = {}
        free = [sVa, sVb]
        for t in range(NT):
            me = sum(1 << c for c in range(16) if 16 * t + c < NL)
            mo = sum(1 << c for c in range(16) if 16 * t + c < NL and not (32 <= 16 * t + c < 32 + 4 * (NE - NO)))
            if me == 0xffff and mo == 0xffff: continue
            sp = free.pop(0); lo = int(sp[2:].split(':')[0])
            sVAL[t] = sp
            a(f's_mov_b32 s{lo}, {me * 0x10001:#x}\ns_mov_b32 s{lo+1}, {mo * 0x10001:#x}\ns_cmp_eq_u32 s{sPAR}, 0\ns_cselect_b32 s{lo}, s{lo}, s{lo+1}\ns_mov_b32 s{lo+1}, s{lo}')
        q.clear()
        for x in range(S): q.append(('r', x))
        dK = [ring + ((N + i) % S) * 4 for i in range(8)]
        dV = [ring + ((N + 8 + i) % S) * 4 for i in range(8)]
        def dload(m, i):
            r = (dK if m == 'K' else dV)[i]
            vm(('d' + m, i), f'buffer_load_dwordx4 v[{r}:{r+3}], v{vKV if i < 4 else vKV2}, {K_ if m == "K" else V_}, s{sNXT} offen offset:{(i % 4) * 1024} {kvflags if m == "K" else vflags}')
        issued = [S]
        NTOT = N + (16 if dyn else 0)
        if dyn: a(f's_mov_b32 s{sAOFF}, s{sCTR}')
        def refill(upto):
            while issued[0] < min(NTOT, upto):
                x = issued[0]
                if x < N:
                    issue_static('K' if x < NL else 'V', x % NL, x, NE - NO)
                    if dyn and x == N - LA - 4: claim()
                else:
                    if x == N:
                        wait('A')
                        ticket()
                        a(f's_cbranch_scc1 L_t0ok')
                        lds_add(L_CNT)
                        a('L_t0ok:')
                    i = x - N
                    dload('K' if i < 8 else 'V', i % 8)
                    if i == 7: claim()
                issued[0] += 1
        for x in range(0, NL, 2):
            wait(('r', x + 1))
            dots(ring + (x % S) * 4, ring + ((x + 1) % S) * 4, vACC + x % 16)
            la = S if (not dyn or x + 2 + S <= NL) else max(LA, NL - (x + 2))
            refill(x + 2 + la)
            if (x + 2) % 16 == 0 or x + 2 == NL:
                t = x // 16
                reduce_tile(vSC[t], x + 2 - 16 * t, sVAL.get(t))
        a(f'v_max_f32 v{vM}, v{vSC[0]}, v{vSC[1]}')
        for t in range(2, NT): a(f'v_max_f32 v{vM}, v{vM}, v{vSC[t]}')
        allreduce(vM, 'v_max_f32', vT[1])
        for t in range(NT): a(f'v_sub_f32 v{vSC[t]}, v{vSC[t]}, v{vM}')
        for t in range(NT): a(f'v_mul_f32 v{vSC[t]}, s{sC1}, v{vSC[t]}')
        for t in range(NT): a(f'v_exp_f32 v{vSC[t]}, v{vSC[t]}')
        for t in range(NT): a(f'v_cvt_pk_bf16_f32 v{vSC[t]}, v{vSC[t]}, v{vSC[t]}')
        a(f'v_lshlrev_b32 v{vL}, 16, v{vSC[0]}')
        for t in range(1, NT): a(f'v_lshlrev_b32 v{vT[3]}, 16, v{vSC[t]}\nv_add_f32 v{vL}, v{vL}, v{vT[3]}')
        allreduce(vL, 'v_add_f32', vT[1])
        write_ml()
        stamp('k')
        ands(vSC[0], 'row_newbcast:0', 0)
        for n in range(NL):
            x = NL + n
            if n + 1 < NL: ands(vSC[(n+1) // 16], f'row_newbcast:{(n+1) % 16}', n + 1)
            wait(('r', x))
            mfma(ring + (x % S) * 4, n, first=(n == 0))
            if n % 2 == 1: refill(x + 1 + (LA if dyn else S))
        if not dyn: return
        assert issued[0] == NTOT
        stamp('s')
        a(f's_cmp_eq_u32 s{sNXT}, {OOB:#x}\ns_cbranch_scc0 L_dyn\ns_waitcnt vmcnt(0)\ns_branch L_dyn_done\nL_dyn:')
        def body(more):
            q.clear()
            for i in range(8): q.append(('dV', i))
            old = list(q)
            for i in range(0, 8, 2):
                dots(dK[i], dK[i+1], vACC + i)
                if more: dload('K', i); dload('K', i + 1)
            if more: claim()
            s = vSC[0]
            reduce_tile(s, 8, sLO8)
            mn = vT[0]
            a(f'v_max_f32 v{mn}, v{s}, v{vM}')
            allreduce(mn, 'v_max_f32', vT[1])
            a(f'''
            v_sub_f32 v{s}, v{s}, v{mn}
            v_sub_f32 v{vT[2]}, v{vM}, v{mn}
            v_mul_f32 v{s}, s{sC1}, v{s}
            v_mul_f32 v{vT[2]}, s{sC1}, v{vT[2]}
            v_exp_f32 v{s}, v{s}
            v_exp_f32 v{vT[2]}, v{vT[2]}
            v_mov_b32 v{vM}, v{mn}
            v_cvt_pk_bf16_f32 v{s}, v{s}, v{s}
            ''')
            for e in range(4): a(f'v_mul_f32 v{vD+e}, v{vD+e}, v{vT[2]}')
            a(f'v_lshlrev_b32 v{vT[3]}, 16, v{s}')
            allreduce(vT[3], 'v_add_f32', vT[1])
            a(f'v_fma_f32 v{vL}, v{vL}, v{vT[2]}, v{vT[3]}')
            if not more: write_ml()
            ands(s, 'row_newbcast:0', 0)
            for i in range(8):
                if i + 1 < 8: ands(s, f'row_newbcast:{i+1}', i + 1)
                n = len(q) - 1 - i
                a(f's_waitcnt vmcnt({n})')
                mfma(dV[i], i)
                if more and i % 2 == 1: dload('V', i - 1); dload('V', i)
        a('s_waitcnt vmcnt(8)')
        ticket()
        a('s_cbranch_scc0 L_dyn_last')
        body(True)
        a('s_branch L_dyn\nL_dyn_last:')
        lds_add(L_CNT)
        body(False)
        a('L_dyn_done:')
    a(f's_cmp_gt_u32 s{sW}, 3\ns_cbranch_scc1 L_young')
    stream(NEo, NOo, False, 'o')
    a('s_branch L_sdone\nL_young:')
    if NCH > 0: stream(NEy, NOy, True, 'y')
    else:
        stream(NEy, NOy, False, 'y'); lds_add(L_CNT)
    a('L_sdone:')
    a(f'''
    v_lshrrev_b32 v{vT[0]}, 5, v{vLANE}          ; half
    v_and_b32 v{vT[1]}, 31, v{vLANE}
    v_lshlrev_b32 v{vT[2]}, 4, v{vT[0]}
    v_lshlrev_b32 v{vT[3]}, 11, v{vT[0]}
    v_lshl_add_u32 v{vT[3]}, v{vT[1]}, 4, v{vT[3]}
    v_mov_b32 v{vT[6]}, 1
    s_mov_b32 exec_hi, 0
    ds_write_b128 v{vDA}, v[{vD}:{vD+3}] offset:{L_OP}
    s_mov_b64 exec, 1
    ds_add_rtn_u32 v{vT[6]}, v{vZ}, v{vT[6]} offset:{L_CNT + 4}
    s_mov_b64 exec, -1
    v_lshlrev_b32 v{vT[4]}, 4, v{vT[1]}
    v_lshl_add_u32 v{vT[4]}, v{vT[0]}, 3, v{vT[4]}
    s_lshl_b32 s{sT1}, s{sSLOT}, 10
    s_add_u32 s{sT1}, s{sT1}, {P1:#x}
    s_waitcnt lgkmcnt(0)
    v_readfirstlane_b32 s{sT0}, v{vT[6]}
    ''')
    stamp('v')
    t = vACC
    mm, ll = vA[0], vA[1]
    M, L_ = vD, vD + 1
    a(f'''
    s_cmp_lg_u32 s{sT0}, 7
    s_cbranch_scc1 L_pub_done
    s_setprio 3
    ds_read_b128 v[{mm}:{mm+3}], v{vT[2]} offset:{L_M}
    ''')
    for i in range(4): a(f'ds_read_b128 v[{g + 4*i}:{g + 4*i + 3}], v{vT[3]} offset:{L_OP + 512 * i}')
    a(f'''
    ds_read_b128 v[{ll}:{ll+3}], v{vT[2]} offset:{L_L}
    v_mov_b32 v{M+2}, v{vTAG}
    v_mov_b32 v{M+3}, v{vTAG}
    s_waitcnt lgkmcnt(5)
    v_max3_f32 v{M}, v{mm}, v{mm+1}, v{mm+2}
    v_max_f32 v{M}, v{M}, v{mm+3}
    v_mov_b32 v{vT[5]}, v{M}
    v_permlane32_swap_b32 v{M}, v{vT[5]}
    v_max_f32 v{M}, v{M}, v{vT[5]}
    ''')
    for i in range(4): a(f'v_sub_f32 v{mm+i}, v{mm+i}, v{M}')
    for i in range(4): a(f'v_mul_f32 v{mm+i}, s{sC1}, v{mm+i}')
    for i in range(4): a(f'v_exp_f32 v{mm+i}, v{mm+i}')
    a('s_waitcnt lgkmcnt(0)')
    for e in range(4): a(f'v_mul_f32 v{t+e}, v{mm}, v{g + e}')
    a(f'v_mul_f32 v{L_}, v{mm}, v{ll}')
    for i in range(1, 4):
        for e in range(4): a(f'v_fmac_f32 v{t+e}, v{mm+i}, v{g + 4*i + e}')
        a(f'v_fmac_f32 v{L_}, v{mm+i}, v{ll+i}')
    a(f'''
    v_mov_b32 v{vT[5]}, v{L_}
    v_permlane32_swap_b32 v{t}, v{t+2}
    v_permlane32_swap_b32 v{t+1}, v{t+3}
    v_permlane32_swap_b32 v{L_}, v{vT[5]}
    v_add_f32 v{t}, v{t}, v{t+2}
    v_add_f32 v{t+1}, v{t+1}, v{t+3}
    v_add_f32 v{L_}, v{L_}, v{vT[5]}
    ''')
    tagw([t, t + 1, M, L_])
    a(f'''
    buffer_store_dwordx2 v[{t}:{t+1}], v{vT[4]}, {WS_}, s{sT1} offen sc1
    s_mov_b64 exec, 1
    buffer_store_dwordx4 v[{M}:{M+3}], v{vT[4]}, {WS_}, s{sT1} offen offset:512 sc1
    v_mov_b32 v{vT[6]}, 1
    ds_add_u32 v{vZ}, v{vT[6]} offset:{L_CNT + 4}
    s_mov_b64 exec, -1
    s_setprio 0
    ''')
    if 'pub' in slist:
        a(f'''
        s_memrealtime s[96:97]
        s_add_u32 s24, s38, 0x10000000
        s_addc_u32 s25, s39, 0
        s_lshl_b32 s{sT2}, s2, 6
        s_add_u32 s{sT2}, s{sT2}, {4 * 15}
        v_mov_b32 v{vT[5]}, s{sT2}
        s_waitcnt lgkmcnt(0)
        v_mov_b32 v{vT[6]}, s96
        s_mov_b64 exec, 1
        global_store_dword v{vT[5]}, v{vT[6]}, s[24:25]
        s_mov_b64 exec, -1
        ''')
    a('L_pub_done:')
    if notail: a('s_branch L_fin')
    a(f's_cmp_eq_u32 s{sROLE}, 0\ns_cbranch_scc1 L_fin')
    vDA2 = vDA; vRA = vM
    wt = ring
    a(f'''
    v_bfe_u32 v{vT[0]}, v{vLANE}, 3, 1               ; rr
    v_and_b32 v{vT[1]}, 7, v{vLANE}                  ; cc
    v_and_b32 v{vT[2]}, 1, v{vG}                     ; b4
    v_lshrrev_b32 v{vT[3]}, 1, v{vG}                 ; b5
    s_lshl_b32 s{sT3}, s{sW}, 9
    v_lshlrev_b32 v{vDA2}, 8, v{vT[0]}
    v_lshl_add_u32 v{vDA2}, v{vT[1]}, 5, v{vDA2}
    v_lshl_add_u32 v{vDA2}, v{vT[2]}, 4, v{vDA2}
    v_add_u32 v{vDA2}, s{sT3}, v{vDA2}
    v_lshlrev_b32 v{vRA}, 10, v{vG}
    v_lshl_add_u32 v{vRA}, v{vC}, 4, v{vRA}
    s_cmp_eq_u32 s{sROLE}, 2
    s_cbranch_scc1 L_g
    ''')
    nprov = [0]
    def provision(n, loads):
        L = f'L_prov{nprov[0]}'; nprov[0] += 1
        a(f'''
        s_and_b32 s{sT3}, s{sW}, 3
        s_mul_i32 s{sT3}, s{sT3}, {n * 1024}
        v_add_u32 v{vL}, s{sT3}, v{vKV}
        s_cmp_gt_u32 s{sW}, 3
        s_cbranch_scc1 {L}_y
        ''')
        loads()
        a('s_waitcnt vmcnt(0)')
        for i in range(n): a(f'ds_write_b128 v{vL}, v[{wt + 4*(n+i)}:{wt + 4*(n+i) + 3}] offset:{L_WT + 1024 * i}')
        lds_add(L_CNT + 8)
        a(f's_branch {L}_d\n{L}_y:')
        lds_gate(L_CNT + 8, 4)
        for i in range(n): a(f'ds_read_b128 v[{wt + 4*i}:{wt + 4*i + 3}], v{vL} offset:{L_WT + 1024 * i}')
        a(f'{L}_d:\ns_waitcnt lgkmcnt(0)')
    def w_loads():
        a(f'''
        v_lshlrev_b32 v{vT[4]}, 5, v{vT[3]}
        v_lshl_add_u32 v{vT[4]}, v{vT[0]}, 4, v{vT[4]}
        v_lshl_add_u32 v{vT[4]}, v{vT[2]}, 1, v{vT[4]}
        v_mul_u32_u24 v{vT[4]}, 1280, v{vT[4]}
        v_lshl_add_u32 v{vT[4]}, v{vT[1]}, 4, v{vT[4]}
        s_lshl_b32 s{sT0}, s{sGAM}, 9
        s_lshl_b32 s{sT1}, s{sW}, 6
        s_add_u32 s{sT0}, s{sT0}, s{sT1}
        s_mul_i32 s{sT0}, s{sT0}, 1280
        s_lshl_b32 s{sT1}, s{sCS}, 7
        s_add_u32 s{sT0}, s{sT0}, s{sT1}
        ''')
        if wgate: lds_gate(L_CNT, wgate)
        stamp('gate')
        if now: return
        for half in (1, 0):
            for n in range(4):
                a(f's_add_u32 s{sT1}, s{sT0}, {(half * 256 + 4 * n) * 1280}')
                for k in range(2):
                    r = wt + 4 * (8 * half + 4 * k + n)
                    a(f'buffer_load_dwordx4 v[{r}:{r+3}], v{vT[4]}, {WO_}, s{sT1} offen offset:{k * 1280} {wflags}')
    def fetch(n):
        a(f's_mul_i32 s{sT3}, s{sW}, {n * 1024}\nv_add_u32 v{vL}, s{sT3}, v{vKV}')
        lds_gate(L_CNT, 4)
        for i in range(n): a(f'ds_read_b128 v[{wt + 4*i}:{wt + 4*i + 3}], v{vL} offset:{L_WT + 1024 * i}')
        a('s_waitcnt lgkmcnt(0)')
    if wstart: fetch(8)
    else: provision(8, w_loads)
    stamp('gw')
    a(f'''
    v_bfe_u32 v{vT[4]}, v{vLANE}, 2, 1
    v_lshl_add_u32 v{vT[4]}, v{vG}, 1, v{vT[4]}      ; s
    v_lshlrev_b32 v{vT[4]}, 10, v{vT[4]}
    v_and_b32 v{vT[5]}, 3, v{vLANE}
    v_lshl_add_u32 v{vT[5]}, v{vT[0]}, 2, v{vT[5]}   ; chunk
    v_lshl_add_u32 v{vT[5]}, v{vT[5]}, 4, v{vT[4]}
    s_lshl_b32 s{sT0}, s{sGAM}, 2
    s_lshr_b32 s{sT1}, s{sW}, 1
    s_add_u32 s{sT0}, s{sT0}, s{sT1}
    s_lshl_b32 s{sT0}, s{sT0}, 13
    s_add_u32 s{sT0}, s{sT0}, {P1:#x}
    s_and_b32 s{sT1}, s{sW}, 1
    s_lshl_b32 s{sT1}, s{sT1}, 8
    s_add_u32 s{sT1}, s{sT1}, s{sT0}
    s_mul_i32 s{sT2}, s{sGAM}, 2560
    s_lshl_b32 s{sT3}, s{sCS}, 8
    s_add_u32 s{sT2}, s{sT2}, s{sT3}
    s_add_u32 s{sT2}, s{sT2}, {P2:#x}
    v_lshl_add_u32 v{vT[0]}, v{vC}, 2, v{vG}
    v_lshlrev_b32 v{vT[0]}, 2, v{vT[0]}
    ''')
    lds_gate(L_CNT + 4, 9)
    def ld1(b):
        a(f'buffer_load_dwordx4 v[{b+8}:{b+11}], v{vT[4]}, {WS_}, s{sT0} offen offset:512 sc1')
        a(f'buffer_load_dwordx4 v[{b}:{b+3}], v{vT[5]}, {WS_}, s{sT1} offen sc1')
        a(f'buffer_load_dwordx4 v[{b+4}:{b+7}], v{vT[5]}, {WS_}, s{sT1} offen offset:128 sc1')
    poll(ld1, 12, g, 3)
    stamp('h1')
    mS, lS = g + 8, g + 9
    M = vT[2]; tt = vT[3]
    a(f'''
    v_max_f32_dpp v{M}, v{mS}, v{mS} row_half_mirror {DPPF}
    v_mov_b32 v{tt}, v{M}
    v_permlane16_swap_b32 v{M}, v{tt}
    v_max_f32 v{M}, v{M}, v{tt}
    v_mov_b32 v{tt}, v{M}
    v_permlane32_swap_b32 v{M}, v{tt}
    v_max_f32 v{M}, v{M}, v{tt}
    v_sub_f32 v{mS}, v{mS}, v{M}
    v_mul_f32 v{mS}, s{sC1}, v{mS}
    v_exp_f32 v{mS}, v{mS}
    ''')
    a(f'v_mul_f32 v{lS}, v{lS}, v{mS}')
    for i in range(8): a(f'v_mul_f32 v{g+i}, v{g+i}, v{mS}')
    a(f'v_add_f32_dpp v{lS}, v{lS}, v{lS} row_half_mirror {DPPF}')
    for e in range(4): a(f'v_permlane32_swap_b32 v{g+e}, v{g+4+e}')
    a(f'v_mov_b32 v{tt}, v{lS}')
    for e in range(4): a(f'v_add_f32 v{g+e}, v{g+e}, v{g+4+e}')
    a(f'''
    v_permlane16_swap_b32 v{lS}, v{tt}
    v_permlane16_swap_b32 v{g}, v{g+2}
    v_permlane16_swap_b32 v{g+1}, v{g+3}
    v_add_f32 v{lS}, v{lS}, v{tt}
    v_add_f32 v{g}, v{g}, v{g+2}
    v_add_f32 v{g+1}, v{g+1}, v{g+3}
    v_mov_b32 v{tt}, v{lS}
    v_add_f32_dpp v{g+2}, v{g}, v{g} row_shl:4 row_mask:0xf bank_mask:0x5
    v_permlane32_swap_b32 v{lS}, v{tt}
    v_add_f32_dpp v{g+3}, v{g+1}, v{g+1} row_shl:4 row_mask:0xf bank_mask:0x5
    v_add_f32 v{lS}, v{lS}, v{tt}
    v_add_f32_dpp v{g+2}, v{g}, v{g} row_shr:4 row_mask:0xf bank_mask:0xa
    v_rcp_f32 v{tt}, v{lS}
    v_add_f32_dpp v{g+3}, v{g+1}, v{g+1} row_shr:4 row_mask:0xf bank_mask:0xa
    v_mul_f32 v{g+2}, v{g+2}, v{tt}
    v_mul_f32 v{g+3}, v{g+3}, v{tt}
    v_cvt_pk_bf16_f32 v{g+2}, v{g+2}, v{g+2}
    v_cvt_pk_bf16_f32 v{g+3}, v{g+3}, v{g+3}
    ''')
    onehot_chain([(g + 2 + i // 4, f'quad_perm:[{i%4},{i%4},{i%4},{i%4}]', wt + 4 * i) for i in range(8)])
    write_d_rr(L_ZP)
    a(f's_cmp_lg_u32 s{sW}, 0\ns_cbranch_scc1 L_fin')
    lds_reduce16(L_ZP, g)
    lds_reduce16b(g)
    tagw([g])
    a(f'buffer_store_dword v{g}, v{vT[0]}, {WS_}, s{sT2} offen sc1')
    stamp('w')
    a('s_branch L_fin')
    wD = ring + 40
    vHA = vQ; vXA = vQ + 1; vPA = vQ + 2; vWA = vQ + 3
    a(f'''
    L_g:
    v_lshl_add_u32 v{vT[4]}, v{vG}, 1, v{vT[0]}
    v_mul_u32_u24 v{vT[4]}, 3456, v{vT[4]}
    v_and_b32 v{vT[5]}, 3, v{vLANE}
    v_lshl_add_u32 v{vT[4]}, v{vT[5]}, 4, v{vT[4]}
    s_mul_i32 s{sT0}, s{sW}, {80 * 3456}
    s_lshl_b32 s{sT1}, s{sFS}, 6
    s_add_u32 s{sT0}, s{sT0}, s{sT1}
    v_lshl_add_u32 v{vHA}, v{vG}, 1, v{vT[0]}
    v_lshl_add_u32 v{vHA}, v{vT[5]}, 3, v{vHA}
    s_mul_i32 s{sT3}, s{sW}, 80
    v_add_u32 v{vHA}, s{sT3}, v{vHA}
    v_lshlrev_b32 v{vHA}, 2, v{vHA}
    v_mul_u32_u24 v{vWA}, 1280, v{vG}
    v_lshl_add_u32 v{vWA}, v{vC}, 4, v{vWA}
    v_lshlrev_b32 v{vXA}, 5, v{vG}
    v_lshl_add_u32 v{vXA}, v{vT[1]}, 2, v{vXA}
    v_lshl_add_u32 v{vXA}, v{vT[0]}, 1, v{vXA}
    v_lshlrev_b32 v{vXA}, 1, v{vXA}
    v_lshrrev_b32 v{vPA}, 3, v{vLANE}
    v_mul_u32_u24 v{vPA}, 2560, v{vPA}
    v_lshl_add_u32 v{vPA}, v{vT[1]}, 4, v{vPA}
    ''')
    def g_loads():
        if now: return
        for half in (1, 0):
            for i in range(10):
                r = wt + 4 * (10 * half + i)
                a(f's_add_u32 s{sT1}, s{sT0}, {(half * 320 + 8 * i) * 3456}')
                a(f's_mov_b32 exec_lo, 0x0f0f0f0f\ns_mov_b32 exec_hi, 0x0f0f0f0f')
                a(f'buffer_load_dwordx4 v[{r}:{r+3}], v{vT[4]}, {WG_}, s{sT1} offen {gflags}')
                a(f's_mov_b32 exec_lo, 0xf0f0f0f0\ns_mov_b32 exec_hi, 0xf0f0f0f0')
                a(f'buffer_load_dwordx4 v[{r}:{r+3}], v{vT[4]}, {WU_}, s{sT1} offen {gflags}')
        a('s_mov_b64 exec, -1')
    if gstart: fetch(10)
    else: provision(10, g_loads)
    if dgate == 9: lds_gate(L_CNT + 4, 9)
    elif dgate: lds_gate(L_CNT, dgate)
    a(f'''
    s_mov_b64 exec, -1
    s_cmp_gt_u32 s{sW}, 4
    s_cbranch_scc1 L_g_nogather
    s_mul_i32 s{sT0}, s{sFS}, {32 * 1280}
    s_lshl_b32 s{sT2}, s{sW}, 8
    s_add_u32 s{sT0}, s{sT0}, s{sT2}
    buffer_load_dword v{vXH}, v{vXA}, {X_}, s{sT2} offen
    ''')
    if not now:
        for i in range(8):
            if i: a(f's_add_u32 s{sT0}, s{sT0}, {4 * 1280}')
            a(f'buffer_load_dwordx4 v[{wD+4*i}:{wD+4*i+3}], v{vWA}, {WD_}, s{sT0} offen {dflags}')
    a(f'''
    s_lshl_b32 s{sT1}, s{sW}, 9
    s_add_u32 s{sT0}, s{sT1}, {P2:#x}
    v_lshlrev_b32 v{vXA}, 1, v{vXA}
    v_add_u32 v{vXA}, s{sT1}, v{vXA}
    s_lshl_b32 s{sT3}, s{sW}, 3
    v_mov_b32 v{vT[0]}, s{sT3}
    s_waitcnt vmcnt(0)
    v_lshlrev_b32 v{vT[2]}, 16, v{vXH}
    v_and_b32 v{vT[3]}, s{sC2}, v{vXH}
    ''')
    if dgate != 9: lds_gate(L_CNT + 4, 9)
    stamp('gw')
    def ld2(b):
        for i in range(4): a(f'buffer_load_dwordx4 v[{b+4*i}:{b+4*i+3}], v{vPA}, {WS_}, s{sT0} offen offset:{128*i} sc1')
    poll(ld2, 16, g, 4)
    stamp('h2')
    for i in range(8): a(f'v_permlane32_swap_b32 v{g+i}, v{g+8+i}')
    for i in range(8): a(f'v_add_f32 v{g+i}, v{g+i}, v{g+8+i}')
    for i in range(4): a(f'v_permlane16_swap_b32 v{g+i}, v{g+4+i}')
    for i in range(4): a(f'v_add_f32 v{g+i}, v{g+i}, v{g+4+i}')
    for i in range(2): a(f'v_add_f32_dpp v{g+i}, v{g+i}, v{g+i} row_ror:8 row_mask:0xf bank_mask:0x3')
    for i in range(2): a(f'v_add_f32_dpp v{g+i}, v{g+2+i}, v{g+2+i} row_ror:8 row_mask:0xf bank_mask:0xc')
    h0, h1 = g, g + 1
    a(f'''
    v_cvt_pk_bf16_f32 v{g+2}, v{h0}, v{h1}
    v_lshlrev_b32 v{h0}, 16, v{g+2}
    v_and_b32 v{h1}, s{sC2}, v{g+2}
    v_add_f32 v{h0}, v{h0}, v{vT[2]}
    v_add_f32 v{h1}, v{h1}, v{vT[3]}
    v_cvt_pk_bf16_f32 v{g+2}, v{h0}, v{h1}
    v_lshlrev_b32 v{h0}, 16, v{g+2}
    v_and_b32 v{h1}, s{sC2}, v{g+2}
    v_add_f32 v{g+4}, v{h0}, v{h1}
    v_mul_f32 v{g+5}, v{h0}, v{h0}
    ds_write_b64 v{vXA}, v[{h0}:{h1}] offset:{L_HH}
    v_fmac_f32 v{g+5}, v{h1}, v{h1}
    ''')
    allreduce2(g + 4, g + 5, 'v_add_f32', g + 6, g + 7)
    a(f'''
    ds_write_b64 v{vT[0]}, v[{g+4}:{g+5}] offset:{L_ST}
    s_branch L_g_bar
    L_g_nogather:
    s_waitcnt vmcnt(0)
    L_g_bar:
    s_waitcnt lgkmcnt(0)
    s_barrier
    ds_read_b128 v[{g+4}:{g+7}], v{vZ} offset:{L_ST}
    ds_read_b128 v[{g+8}:{g+11}], v{vZ} offset:{L_ST + 16}
    ds_read_b64 v[{g+12}:{g+13}], v{vZ} offset:{L_ST + 32}
    ds_read_b32 v{g}, v{vHA} offset:{L_HH}
    ds_read_b32 v{g+1}, v{vHA} offset:{L_HH + 128}
    ds_read_b32 v{g+2}, v{vHA} offset:{L_HH + 256}
    s_waitcnt lgkmcnt(3)
    v_add_f32 v{g+4}, v{g+4}, v{g+6}
    v_add_f32 v{g+5}, v{g+5}, v{g+7}
    v_add_f32 v{g+8}, v{g+8}, v{g+10}
    v_add_f32 v{g+9}, v{g+9}, v{g+11}
    v_add_f32 v{g+4}, v{g+4}, v{g+12}
    v_add_f32 v{g+5}, v{g+5}, v{g+13}
    v_add_f32 v{g+4}, v{g+4}, v{g+8}
    v_add_f32 v{g+5}, v{g+5}, v{g+9}
    v_mul_f32 v{g+4}, {INV640:#x}, v{g+4}
    v_mul_f32 v{g+5}, {INV640:#x}, v{g+5}
    v_fma_f32 v{g+5}, -v{g+4}, v{g+4}, v{g+5}
    v_max_f32 v{g+5}, 0, v{g+5}
    ''')
    ln_consts(g + 4, g + 5, g + 6, g + 7, g + 8)
    a('s_waitcnt lgkmcnt(0)')
    ln_apply([g, g + 1, g + 2], g + 6, g + 7, g + 8, [g + 9, g + 10, g + 11])
    stamp('ln2')
    onehot_chain([(g + i // 4, f'quad_perm:[{i%4},{i%4},{i%4},{i%4}]', wt + 4 * i) for i in range(10)])
    write_d_rr(L_GP)
    stamp('g1')
    a(f's_cmp_gt_u32 s{sW}, 4\ns_cbranch_scc1 L_f')
    r = g
    lds_reduce16(L_GP, r)
    a(f'''
    s_mul_i32 s{sT0}, s{sFS}, 2560
    s_lshl_b32 s{sT1}, s{sW}, 9
    s_add_u32 s{sT0}, s{sT0}, s{sT1}
    s_add_u32 s{sT0}, s{sT0}, {P3:#x}
    v_lshlrev_b32 v{vT[0]}, 5, v{vC}
    v_lshl_add_u32 v{vT[0]}, v{vG}, 4, v{vT[0]}
    ''')
    lds_reduce16b(r)
    rbf(r, r)
    a(f'''
    v_mul_f32 v{r+1}, s{sC1}, v{r}
    v_exp_f32 v{r+1}, -v{r+1}
    v_add_f32 v{r+1}, 1.0, v{r+1}
    v_rcp_f32 v{r+2}, v{r+1}
    v_mul_f32 v{r+3}, v{r}, v{r+2}
    ''')
    rbf(r + 3, r + 3)
    a(f'''
    v_mul_f32_dpp v{r+3}, v{r}, v{r+3} row_ror:8 {DPPF}
    v_cvt_pk_bf16_f32 v{r+3}, v{r+3}, v{r+3}
    ''')
    onehot_chain([(r + 3, f'row_newbcast:{i}', wD + 4 * i) for i in range(8)])
    tagw([vD + i for i in range(4)])
    a(f'''
    s_mov_b32 exec_hi, 0
    buffer_store_dwordx4 v[{vD}:{vD+3}], v{vT[0]}, {WS_}, s{sT0} offen sc1
    s_mov_b64 exec, -1
    ''')
    stamp('g')
    a('s_branch L_fin')
    a(f'''
    L_f:
    s_cmp_lg_u32 s{sW}, 7
    s_cbranch_scc1 L_fin
    s_cmp_ge_u32 s{sFS}, 40
    s_cbranch_scc1 L_fin
    v_lshrrev_b32 v{vT[0]}, 2, v{vLANE}
    v_and_b32 v{vT[1]}, 3, v{vLANE}
    v_mul_u32_u24 v{vT[0]}, 2560, v{vT[0]}
    v_lshl_add_u32 v{vT[0]}, v{vT[1]}, 4, v{vT[0]}
    s_lshl_b32 s{sT3}, s{sFS}, 6
    s_add_u32 s{sT0}, s{sT3}, {P3:#x}
    s_add_u32 s{sT1}, s{sT0}, {16 * 2560}
    s_add_u32 s{sT2}, s{sT0}, {32 * 2560}
    s_add_u32 s{sOFF}, s{sT0}, {48 * 2560}
    v_lshl_add_u32 v{vT[1]}, v{vT[1]}, 2, v{vG}
    v_lshlrev_b32 v{vT[1]}, 2, v{vT[1]}
    v_add_u32 v{vT[1]}, s{sT3}, v{vT[1]}
    ds_read_b32 v{vT[2]}, v{vT[1]} offset:{L_HH}
    v_lshrrev_b32 v{vT[1]}, 1, v{vT[1]}
    ''')
    for b in (pA, pB):
        for e in range(4): a(f'v_mov_b32 v{b+12+e}, v{vTAG}')
    a(f'''
    s_cmp_eq_u32 s{sFS}, 0
    s_cselect_b32 s{sT3}, {EPOCH}, {OOB:#x}
    v_mov_b32 v{vT[4]}, s{sTAG}
    s_mov_b64 exec, 1
    buffer_store_dword v{vT[4]}, v{vZ}, {WS_}, s{sT3} offen sc1
    s_mov_b64 exec, -1
    ''')
    def ld3(b):
        for i in range(3): a(f'buffer_load_dwordx4 v[{b+4*i}:{b+4*i+3}], v{vT[0]}, {WS_}, s{(sT0, sT1, sT2)[i]} offen sc1')
        a(f's_mov_b64 exec, 0xffffff\nbuffer_load_dwordx4 v[{b+12}:{b+15}], v{vT[0]}, {WS_}, s{sOFF} offen sc1\ns_mov_b64 exec, -1')
    poll(ld3, 16, g, 4)
    stamp('h3')
    for e in range(4): a(f'v_add_f32 v{g+e}, v{g+e}, v{g+4+e}')
    for e in range(4): a(f'v_add_f32 v{g+8+e}, v{g+8+e}, v{g+12+e}')
    for e in range(4): a(f'v_add_f32 v{g+e}, v{g+e}, v{g+8+e}')
    a(f'''
    v_permlane32_swap_b32 v{g}, v{g+2}
    v_permlane32_swap_b32 v{g+1}, v{g+3}
    v_add_f32 v{g}, v{g}, v{g+2}
    v_add_f32 v{g+1}, v{g+1}, v{g+3}
    v_permlane16_swap_b32 v{g}, v{g+1}
    v_add_f32 v{g}, v{g}, v{g+1}
    v_add_f32_dpp v{g}, v{g}, v{g} row_ror:8 {DPPF}
    v_add_f32_dpp v{g}, v{g}, v{g} row_ror:4 {DPPF}
    ''')
    rbf(g, g)
    a(f'''
    s_waitcnt lgkmcnt(0)
    v_add_f32 v{g}, v{g}, v{vT[2]}
    v_cvt_pk_bf16_f32 v{g}, v{g}, v{g}
    s_mov_b32 exec_lo, 0x000f000f
    s_mov_b32 exec_hi, 0x000f000f
    buffer_store_short v{g}, v{vT[1]}, {OUT_}, 0 offen
    s_mov_b64 exec, -1
    L_fin:
    ''')
    if diagpad:
        pad, k, mult = diagpad
        a(f'''
        s_cmp_lg_u32 s{sW}, 7
        s_cbranch_scc1 L_end
        s_cmp_lg_u32 s{sROLE}, 2
        s_cbranch_scc1 L_end
        s_cmp_lg_u32 s{sFS}, 0
        s_cbranch_scc1 L_end
        v_readlane_b32 s{sT0}, v{vSTAMP}, 0
        v_readlane_b32 s{sT1}, v{vSTAMP}, {k}
        s_sub_u32 s{sT1}, s{sT1}, s{sT0}
        s_mul_i32 s{sT1}, s{sT1}, {mult}
        s_add_u32 s{sT1}, s{sT1}, {pad}
        L_diag:
        s_memrealtime s[96:97]
        s_waitcnt lgkmcnt(0)
        s_sub_u32 s{sT2}, s96, s{sT0}
        s_cmp_lt_u32 s{sT2}, s{sT1}
        s_cbranch_scc1 L_diag
        ''')
    elif stamps and dbgout:
        stamp('end')
        a(f'''
        s_cmp_lg_u32 s{sW}, 7
        s_cbranch_scc1 L_end
        s_cmp_lg_u32 s{sROLE}, 2
        s_cbranch_scc1 L_end
        s_cmp_gt_u32 s{sFS}, 1
        s_cbranch_scc1 L_end
        v_readlane_b32 s{sT0}, v{vSTAMP}, 0
        s_lshl_b32 s{sT1}, s{sFS}, 5
        v_lshlrev_b32 v{vT[0]}, 2, v{vLANE}
        v_add_u32 v{vT[0]}, s{sT1}, v{vT[0]}
        v_subrev_u32 v{vT[1]}, s{sT0}, v{vSTAMP}
        s_mov_b64 exec, 0xff
        global_store_dword v{vT[0]}, v{vT[1]}, s[36:37]
        ''')
    elif stamps:
        stamp('end')
        a(f'''
        s_cmp_lg_u32 s{sW}, {stampwave}
        s_cbranch_scc1 L_end
        s_add_u32 s24, s38, 0x10000000
        s_addc_u32 s25, s39, 0
        s_lshl_b32 s{sT0}, s2, 6
        v_lshlrev_b32 v{vT[0]}, 2, v{vLANE}
        v_add_u32 v{vT[0]}, s{sT0}, v{vT[0]}
        s_mov_b64 exec, 0x7fff
        global_store_dword v{vT[0]}, v{vSTAMP}, s[24:25]
        ''')
    a('L_end:\ns_endpgm')
    return build_file([f'; @launch grid=(256,1,1) block=(512,1,1) lds={lds}'], [(NAME + '_kernel', a.text(), V.high, 102)])

if __name__ == '__main__':
    import json
    out = sys.argv[1]
    kw = json.loads(sys.argv[2]) if len(sys.argv) > 2 else {}
    open(out, 'w').write(gen(**kw))
```

```python
import sys, struct
from asmlib import *

def f2u(x): return struct.unpack('<I', struct.pack('<f', x))[0]
LOG2E = f2u(1.4426950408889634)
SCALE = f2u(128 ** -0.5)
INV640 = f2u(1.0 / 640)
EPS = f2u(1e-5)
NEGINF = 0xff800000

EPOCH = 0x0
CTR = 0x1000
CTRS = 0x1100
QS = 0x40000
P1 = 0x80000
P2 = 0xC0000
P3 = 0xE0000
WS_END = P3 + 54 * 2560
OOB = 0x40000000
L_Q = 0; L_CNT = 256; L_M = 320; L_L = 352; L_F = 384; L_ST = 448; L_OP = 4096; L_ZP = 8192; L_GP = 12288; L_HH = 16384; L_WT = 20480

DPPF = 'row_mask:0xf bank_mask:0xf'

def role_table(seed=1):
    import random
    rnd = random.Random(seed)
    needG = [2] * 22 + [1] * 10
    needW = [2] * 22 + [4] * 6 + [3] * 4
    order = list(range(32)); rnd.shuffle(order)
    needG = [needG[order[h]] for h in range(32)]; needW = [needW[order[h]] for h in range(32)]
    while True:
        g = list(needG); w = list(needW); tab = [255] * 256; ok = True
        for x in range(8):
            fs = [2 * p + b for p in range(x, 27, 8) for b in range(2)]
            left = 8 - x
            hs = sorted(range(32), key=lambda h: (-(g[h] + w[h]), -g[h], rnd.random()))
            used = set()
            cg = [h for h in sorted(range(32), key=lambda h: (-g[h], -(g[h] + w[h]), rnd.random())) if g[h] > 0][:len(fs)]
            if len(cg) < len(fs): ok = False; break
            for h, f in zip(cg, fs): tab[8 * h + x] = f; g[h] -= 1; used.add(h)
            cw = [h for h in sorted(range(32), key=lambda h: (-(w[h] + g[h]), rnd.random())) if w[h] > 0 and h not in used][:10]
            if len(cw) < 10: ok = False; break
            for c, h in enumerate(cw): tab[8 * h + x] = 64 + c; w[h] -= 1
        if ok and not any(g) and not any(w): return tab

def gen(NE=28, NO=28, HROT=160, S=36, F=6, CU=1, FH=2, stamps=False, kvflags='nt', wqflags='nt', wflags='', lds=104448,
        spin=200000, stampwave=0, notail=False, now=False, mapping='all', gstop=0, wstop=0, gflags=None, dflags=None,
        vflags=None, dbgout=False, diagpad=None, p2nat=True, rtab=True, fast=(1, 1, 1), thr=(32, 48, 48), gap=1, gswap=True,
        boost=2, dearly=False, qsleep=4, sprio=0):
    a = Asm()
    V = Alloc(1, 256)
    U = 4
    if gflags is None: gflags = wflags
    if vflags is None: vflags = kvflags
    if dflags is None: dflags = wflags
    OP = 16 * (NE + NO)
    NCH = (1024 - OP) // CU
    NK = U * CU
    assert OP <= 1024 and HROT % 2 == 0
    NTMAX = max(5, (NE * U + 15) // 16)
    sW, sH, sIDX, sPAR, sS = 3, 4, 5, 6, 7
    K_, V_, WQ_, WS_, X_, WO_, WG_, WU_, WD_, OUT_ = [f's[{b}:{b+3}]' for b in (8, 12, 40, 44, 48, 52, 56, 60, 64, 68)]
    sOFF, sOFF0, sEX0, sT0, sT1, sT2, sT3 = 76, 77, 78, 80, 81, 82, 83
    sSLOT, sROLE, sGAM, sCS, sFS, sSPIN, sTAG, sTAG8 = 84, 85, 87, 88, 89, 91, 92, 93
    sC1, sC2 = 94, 95
    sROT, sCTR, sNXT, sLIM, sAOFF, sMSK8 = 72, 73, 74, 75, 86, 90
    sM1, sM0 = 's[16:17]', 's[18:19]'
    sVa, sVb = 's[20:21]', 's[22:23]'
    sLO8 = 's[26:27]'
    slist = stamps if isinstance(stamps, list) else []
    def stamp(name):
        if name in slist:
            a(f's_memrealtime s[96:97]\ns_waitcnt lgkmcnt(0)\nv_writelane_b32 v{vSTAMP}, s96, {1 + slist.index(name)}')
    q = []
    def vm(tag, text):
        a(text); q.append(tag)
    def wait(tag):
        idx = max(i for i, t in enumerate(q) if t == tag)
        n = len(q) - 1 - idx
        assert n <= 63, n
        a(f's_waitcnt vmcnt({n})')

    vSTAMP = V.get() if stamps else None
    vLANE = V.get(); vG = V.get(); vC = V.get(); vKV = V.get(); vKV2 = V.get()
    vT = [V.get() for _ in range(8)]
    vDA = V.get(); vXH = V.get(); vTAG = V.get(); vTK = V.get(); vM = V.get(); vL = V.get(); vZ = V.get()
    vMASK = V.get(4, 4)
    vA = [V.get(4, 4), V.get(4, 4)]
    vD = V.get(4, 4)
    vQ = V.get(4, 4)
    vSC = [V.get() for _ in range(NTMAX)]
    vACC = V.get(16, 4)
    gat = V.get(16, 4)
    ring = V.get(4 * S, 4)
    wqs = ring
    assert S >= 32
    pA, pB = ring + 96, ring + 112
    pS = [ring + 112, ring + 96, ring + 80]

    def allreduce(r, op, t):
        for k in (8, 4, 2, 1):
            a(f'{op}_dpp v{r}, v{r}, v{r} row_ror:{k} {DPPF}')
        for sw in ('v_permlane16_swap_b32', 'v_permlane32_swap_b32'):
            a(f'v_mov_b32 v{t}, v{r}\n{sw} v{r}, v{t}\n{op} v{r}, v{r}, v{t}')
    def allreduce2(r0, r1, op, t0, t1):
        for k in (8, 4, 2, 1):
            a(f'{op}_dpp v{r0}, v{r0}, v{r0} row_ror:{k} {DPPF}\n{op}_dpp v{r1}, v{r1}, v{r1} row_ror:{k} {DPPF}')
        for sw in ('v_permlane16_swap_b32', 'v_permlane32_swap_b32'):
            a(f'v_mov_b32 v{t0}, v{r0}\nv_mov_b32 v{t1}, v{r1}\n{sw} v{r0}, v{t0}\n{sw} v{r1}, v{t1}\n{op} v{r0}, v{r0}, v{t0}\n{op} v{r1}, v{r1}, v{t1}')
    def rbf(d, s):
        a(f'v_cvt_pk_bf16_f32 v{d}, v{s}, v{s}\nv_lshlrev_b32 v{d}, 16, v{d}')
    def ln_consts(vmean, vvar, vm_bf, vs_bf, vr):
        rbf(vs_bf, vvar)
        rbf(vm_bf, vmean)
        a(f'v_add_f32 v{vs_bf}, {EPS:#x}, v{vs_bf}')
        rbf(vs_bf, vs_bf)
        a(f'v_sqrt_f32 v{vs_bf}, v{vs_bf}')
        rbf(vs_bf, vs_bf)
        a(f'v_rcp_f32 v{vr}, v{vs_bf}')
    def ln_apply(xs, vm_bf, vs_bf, vr, ts):
        for x in xs: a(f'v_sub_f32 v{x}, v{x}, v{vm_bf}')
        for x in xs: a(f'v_cvt_pk_bf16_f32 v{x}, v{x}, v{x}')
        for x in xs: a(f'v_lshlrev_b32 v{x}, 16, v{x}')
        for x, t in zip(xs, ts): a(f'v_mul_f32 v{t}, v{x}, v{vr}')
        for x, t in zip(xs, ts): a(f'v_fma_f32 v{x}, -v{t}, v{vs_bf}, v{x}')
        for x, t in zip(xs, ts): a(f'v_fma_f32 v{x}, v{x}, v{vr}, v{t}')
        for x in xs: a(f'v_cvt_pk_bf16_f32 v{x}, v{x}, v{x}')
    def ands(pk, sel, k):
        A = vA[k & 1]
        for jj in range(4): a(f'v_and_b32_dpp v{A + jj}, v{pk}, v{vMASK + jj} {sel} {DPPF}')
    def mfma(data, k, first=False):
        A = vA[k & 1]
        c = '0' if first else f'v[{vD}:{vD+3}]'
        a(f'v_mfma_f32_16x16x32_bf16 v[{vD}:{vD+3}], v[{A}:{A+3}], v[{data}:{data+3}], {c}')
    def onehot_chain(items, pre=None):
        ands(items[0][0], items[0][1], 0)
        for k, (pk, sel, data) in enumerate(items):
            if k + 1 < len(items): ands(items[k+1][0], items[k+1][1], k + 1)
            if pre: pre(k)
            mfma(data, k, first=(k == 0))
    def tagw(regs, rnd=False):
        if rnd:
            for r in regs: a(f'v_add_u32 v{r}, 0x80, v{r}')
        for r in regs: a(f'v_and_or_b32 v{r}, v{r}, s{sMSK8}, v{vTAG}')
    def check(src, dst, n):
        t = vT[7]
        for i in range(n): a(f'v_xor_b32 v{dst+i}, s{sTAG8}, v{src+i}')
        rs = [dst + i for i in range(n)]
        a(f'v_or3_b32 v{t}, v{rs[0]}, v{rs[1]}, v{rs[2]}'); rs = rs[3:]
        while rs:
            if len(rs) >= 2: a(f'v_or3_b32 v{t}, v{t}, v{rs[0]}, v{rs[1]}'); rs = rs[2:]
            else: a(f'v_or_b32 v{t}, v{t}, v{rs[0]}'); rs = []
        a(f'v_and_b32 v{t}, 0xff, v{t}\nv_cmp_ne_u32 vcc, 0, v{t}')
    npoll = [0]
    def poll(loads, n, dst, nl, k, st, sl=0):
        L = f'L_poll{npoll[0]}'; npoll[0] += 1
        a(f's_mov_b32 s{sSPIN}, {spin}')
        for i in range(k - 1):
            loads(pS[i])
            if st: a(f's_sleep {st}')
        a(f'{L}:')
        for i in range(k):
            loads(pS[(i + k - 1) % k])
            a(f's_waitcnt vmcnt({nl * (k - 1)})')
            check(pS[i], dst, n)
            a(f's_cbranch_vccz {L}_done')
        if sl: a(f's_sleep {sl}')
        a(f's_sub_u32 s{sSPIN}, s{sSPIN}, 1\ns_cbranch_scc0 {L}\n{L}_done:')
    sPEND = 's[28:29]'
    def poll2(loads, n, dst, nl, k, th, first=True, wide=True):
        L = f'L_pp{npoll[0]}'; npoll[0] += 1
        b = pS[0]
        t = vT[7]
        widen = '\n'.join([f'v_or_b32_dpp v{t}, v{t}, v{t} {sel} {DPPF}' for sel in ['quad_perm:[1,0,3,2]', 'quad_perm:[2,3,0,1]'] + (['row_ror:8'] if wide else [])] + [f'v_cmp_ne_u32 vcc, 0, v{t}'])
        def masked():
            a(f's_mov_b64 exec, {sPEND}'); loads(b); a('s_mov_b64 exec, -1')
        a(f's_mov_b32 s{sSPIN}, {spin}')
        if first: a(f's_mov_b64 {sPEND}, -1')
        else: a(f's_branch {L}_e')
        a(f'{L}:')
        masked()
        a('s_waitcnt vmcnt(0)')
        check(b, dst, n)
        a(f'''
        s_cbranch_vccz {L}_done
        {L}_e:
        {widen}
        s_mov_b64 {sPEND}, vcc
        s_sub_u32 s{sSPIN}, s{sSPIN}, 1
        s_cbranch_scc1 {L}_done
        ''')
        if k <= 1:
            a(f's_branch {L}\n{L}_done:'); return
        a(f's_bcnt1_i32_b64 s{sOFF0}, vcc\ns_cmp_gt_u32 s{sOFF0}, {th}\ns_cbranch_scc1 {L}')
        for j in range(k - 1):
            masked()
            a(f's_sleep {gap * 2}')
        a(f'{L}_f:')
        masked()
        a(f's_waitcnt vmcnt({nl * (k - 1)})')
        check(b, dst, n)
        a(f'''
        s_cbranch_vccz {L}_done
        {widen}
        s_mov_b64 {sPEND}, vcc
        s_sub_u32 s{sSPIN}, s{sSPIN}, 1
        s_cbranch_scc0 {L}_f
        {L}_done:
        ''')
    def lds_reduce16(base, r):
        for i in range(4): a(f'ds_read_b128 v[{r + 4*i}:{r + 4*i + 3}], v{vRA} offset:{base + 256 * i}')
    def lds_reduce16b(r):
        a('s_waitcnt lgkmcnt(2)')
        for e in range(4): a(f'v_add_f32 v{r+e}, v{r+e}, v{r+4+e}')
        a('s_waitcnt lgkmcnt(0)')
        for e in range(4): a(f'v_add_f32 v{r+8+e}, v{r+8+e}, v{r+12+e}')
        for e in range(4): a(f'v_add_f32 v{r+e}, v{r+e}, v{r+8+e}')
        a(f'''
        v_permlane32_swap_b32 v{r}, v{r+2}
        v_permlane32_swap_b32 v{r+1}, v{r+3}
        v_add_f32 v{r}, v{r}, v{r+2}
        v_add_f32 v{r+1}, v{r+1}, v{r+3}
        v_permlane16_swap_b32 v{r}, v{r+1}
        v_add_f32 v{r}, v{r}, v{r+1}
        ''')
    def write_d_rr(base):
        a(f'''
        s_mov_b32 exec_lo, 0x00ff00ff
        s_mov_b32 exec_hi, 0xff00ff00
        ds_write_b128 v{vDA2}, v[{vD}:{vD+3}] offset:{base}
        s_mov_b64 exec, -1
        s_waitcnt lgkmcnt(0)
        s_barrier
        ''')
    def lds_add(off, rtn=None):
        a(f'v_mov_b32 v{vT[6]}, 1\ns_mov_b64 exec, 1')
        if rtn: a(f'ds_add_rtn_u32 v{vT[6]}, v{vZ}, v{vT[6]} offset:{off}')
        else: a(f'ds_add_u32 v{vZ}, v{vT[6]} offset:{off}')
        a('s_mov_b64 exec, -1')
    ngate = [0]
    def lds_gate(off, val):
        L = f'L_gate{ngate[0]}'; ngate[0] += 1
        a(f'''
        {L}:
        ds_read_b32 v{vT[6]}, v{vZ} offset:{off}
        s_waitcnt lgkmcnt(0)
        v_cmp_gt_u32 vcc, {val}, v{vT[6]}
        s_cbranch_vccz {L}_done
        s_sleep 2
        s_branch {L}
        {L}_done:
        ''')

    a(f'''
    s_cmp_ge_u32 s2, 256
    s_cbranch_scc1 L_end
    s_load_dwordx16 s[16:31], s[0:1], 0
    s_load_dwordx8 s[32:39], s[0:1], 64
    ''')
    if rtab:
        assert mapping == 'all'
        a(f'''
        s_getpc_b64 s[96:97]
        L_pc:
        s_add_u32 s96, s96, L_tab-L_pc
        s_addc_u32 s97, s97, 0
        s_and_b32 s{sT0}, s2, 0xfc
        s_load_dword s101, s[96:97], s{sT0}
        ''')
    if stamps: a(f's_memrealtime s[98:99]\nv_mov_b32 v{vSTAMP}, 0')
    a(f'''
    v_lshrrev_b32 v{vT[0]}, 6, v0
    v_and_b32 v{vLANE}, 63, v0
    v_readfirstlane_b32 s{sW}, v{vT[0]}
    v_lshrrev_b32 v{vG}, 4, v{vLANE}
    v_and_b32 v{vC}, 15, v{vLANE}
    v_lshlrev_b32 v{vKV}, 4, v{vLANE}
    v_mov_b32 v{vZ}, 0
    s_and_b32 s{sPAR}, s2, 1
    ''')
    if mapping == 'all':
        a(f's_lshr_b32 s{sH}, s2, 3\ns_and_b32 s{sS}, s2, 7')
    elif mapping == 'pair':
        a(f'''
        s_and_b32 s{sH}, s2, 6
        s_lshl_b32 s{sH}, s{sH}, 2
        s_lshr_b32 s{sT0}, s2, 5
        s_add_u32 s{sH}, s{sH}, s{sT0}
        s_lshr_b32 s{sS}, s2, 2
        s_and_b32 s{sS}, s{sS}, 6
        s_or_b32 s{sS}, s{sS}, s{sPAR}
        ''')
    else:
        a(f'''
        s_and_b32 s{sH}, s2, 2
        s_lshl_b32 s{sH}, s{sH}, 3
        s_lshr_b32 s{sT0}, s2, 4
        s_add_u32 s{sH}, s{sH}, s{sT0}
        s_lshr_b32 s{sS}, s2, 1
        s_and_b32 s{sS}, s{sS}, 6
        s_or_b32 s{sS}, s{sS}, s{sPAR}
        ''')
    a(f'''
    s_lshl_b32 s{sT1}, s{sH}, 8
    s_mul_i32 s{sT2}, s{sS}, {80 * 8192}
    s_add_u32 s{sT1}, s{sT1}, s{sT2}
    s_mov_b32 s42, {80 * 8192}
    s_mov_b32 s43, 0x20000
    s_mov_b32 s50, 1280
    s_mov_b32 s51, 0x20000
    s_mov_b32 s46, {WS_END}
    s_mov_b32 s47, 0x20000
    v_lshlrev_b32 v{vT[1]}, 13, v{vG}
    v_lshl_add_u32 v{vT[1]}, v{vC}, 4, v{vT[1]}
    v_lshlrev_b32 v{vT[2]}, 2, v{vLANE}
    v_lshl_add_u32 v{vT[3]}, v{vC}, 2, v{vG}
    v_lshlrev_b32 v{vT[3]}, 1, v{vT[3]}
    s_mul_i32 s{sT3}, s{sS}, 160
    s_lshr_b32 s{sIDX}, s{sS}, 1
    s_lshl_b32 s{sIDX}, s{sIDX}, 2
    s_and_b32 s{sT2}, s{sW}, 3
    s_add_u32 s{sIDX}, s{sIDX}, s{sT2}
    s_mul_i32 s{sROT}, s{sH}, {HROT}
    s_add_u32 s{sIDX}, s{sIDX}, s{sROT}
    s_lshl_b32 s{sOFF0}, s{sPAR}, 4
    s_add_u32 s{sOFF0}, s{sOFF0}, s{sIDX}
    s_lshl_b32 s{sOFF0}, s{sOFF0}, 12
    s_and_b32 s{sOFF0}, s{sOFF0}, 0x3fffff
    s_lshl_b32 s{sT0}, s{sH}, 22
    s_mul_i32 s{sCTR}, s{sH}, {CTRS}
    s_add_u32 s{sCTR}, s{sCTR}, {CTR}
    s_mov_b32 s10, 0x400000
    s_mov_b32 s11, 0x20000
    s_waitcnt lgkmcnt(0)
    s_mov_b32 s48, s16
    s_mov_b32 s49, s17
    s_add_u32 s40, s22, s{sT1}
    s_addc_u32 s41, s23, 0
    s_add_u32 s8, s18, s{sT0}
    s_addc_u32 s9, s19, 0
    s_mov_b32 s44, s38
    s_mov_b32 s45, s39
    s_load_dword s{sTAG}, s[38:39], {EPOCH}
    ''')
    if stamps: a(f'v_writelane_b32 v{vSTAMP}, s98, 0')
    vX = gat; vXS = gat + 5
    a(f'''
    s_cmp_lg_u32 s{sW}, 0
    s_cbranch_scc1 L_noq1
    s_cmp_eq_u32 s{sS}, 0
    s_cselect_b32 s{sT1}, s{sCTR}, {OOB:#x}
    s_mov_b64 exec, 1
    buffer_store_dword v{vZ}, v{vZ}, {WS_}, s{sT1} offen sc1
    s_mov_b64 exec, -1
    ''')
    for i in range(20):
        if i: a(f's_mov_b32 s{sT1}, {i * 32768}')
        vm(('wq', i), f'buffer_load_dwordx4 v[{wqs + 4*i}:{wqs + 4*i + 3}], v{vT[1]}, {WQ_}, {"0" if i == 0 else "s%d" % sT1} offen {wqflags}')
        if i == 3:
            for k in range(5): vm('x', f'buffer_load_dword v{vX + k}, v{vT[2]}, {X_}, 0 offen offset:{256 * k}')
            vm('x', f'buffer_load_ushort v{vXS}, v{vT[3]}, {X_}, s{sT3} offen')
            vm('x', f'buffer_load_ushort v{vXS + 1}, v{vT[3]}, {X_}, s{sT3} offen offset:128')
    a('L_noq1:')

    def issue_static(m, n, x, NX, track=True):
        k, i = divmod(n, U)
        so = sOFF
        if XP <= k < XP + NX: so = sEX0 + k - XP
        elif i == 0:
            if k == 0: a(f's_mov_b32 s{sOFF}, s{sOFF0}')
            else: a(f's_add_u32 s{sOFF}, s{sOFF}, {32 * 4096}\ns_and_b32 s{sOFF}, s{sOFF}, 0x3fffff')
        r = ring + (x % S) * 4
        txt = f'buffer_load_dwordx4 v[{r}:{r+3}], v{vKV}, {K_ if m == "K" else V_}, s{so} offen offset:{i * 1024} {kvflags if m == "K" else vflags}'
        if track: vm(('r', x), txt)
        else: a(txt)
    XP = 12
    assert XP * U >= S and NO >= XP
    def lanemask(nvalid):
        nvalid = max(0, min(16, nvalid))
        m = (1 << nvalid) - 1
        return m | (m << 16)
    def common_setup():
        a(f'''
        s_add_u32 s12, s20, s{sT0}
        s_addc_u32 s13, s21, 0
        s_mov_b32 s14, 0x400000
        s_mov_b32 s15, 0x20000
        s_lshl_b32 s{sSLOT}, s{sH}, 3
        s_add_u32 s{sSLOT}, s{sSLOT}, s{sS}
        ''')
        if rtab: a(f'''
        s_and_b32 s{sGAM}, s2, 7
        s_and_b32 s{sT1}, s2, 3
        s_lshl_b32 s{sT1}, s{sT1}, 3
        s_lshr_b32 s{sFS}, s101, s{sT1}
        s_and_b32 s{sFS}, s{sFS}, 0xff
        s_mov_b32 s{sLIM}, {NCH}
        s_cmp_lt_u32 s{sFS}, 54
        s_cselect_b32 s{sROLE}, 2, 0
        s_cselect_b32 s{sLIM}, {max(0, NCH - gstop)}, s{sLIM}
        s_sub_u32 s{sCS}, s{sFS}, 64
        s_cmp_lt_u32 s{sCS}, 10
        s_cselect_b32 s{sROLE}, 1, s{sROLE}
        s_cselect_b32 s{sLIM}, {max(0, NCH - wstop)}, s{sLIM}
        ''')
        else: a(f'''
        s_and_b32 s{sGAM}, s2, 7
        s_lshr_b32 s{sT1}, s2, 3
        s_lshl_b32 s{sT2}, s{sGAM}, 2
        s_add_u32 s{sT1}, s{sT1}, s{sT2}
        s_and_b32 s{sT1}, s{sT1}, 31
        s_lshr_b32 s{sFS}, s{sT1}, 1
        s_lshl_b32 s{sFS}, s{sFS}, 3
        s_add_u32 s{sFS}, s{sFS}, s{sGAM}
        s_cmp_lt_u32 s{sFS}, 27
        s_cselect_b32 s{sROLE}, 2, 0
        s_mov_b32 s{sLIM}, {NCH}
        s_cselect_b32 s{sLIM}, {max(0, NCH - gstop)}, s{sLIM}
        s_lshl_b32 s{sFS}, s{sFS}, 1
        s_and_b32 s{sT2}, s{sT1}, 1
        s_add_u32 s{sFS}, s{sFS}, s{sT2}
        s_sub_u32 s{sCS}, s{sT1}, 8
        s_cmp_lt_u32 s{sCS}, 10
        s_cselect_b32 s{sROLE}, 1, s{sROLE}
        s_cselect_b32 s{sLIM}, {max(0, NCH - wstop)}, s{sLIM}
        ''')
        for b, p, n in ((52, 24, 4096 * 1280), (56, 28, 640 * 3456), (60, 30, 640 * 3456), (64, 32, 1728 * 1280), (68, 34, 1280)):
            a(f's_mov_b32 s{b}, s{p}\ns_mov_b32 s{b+1}, s{p+1}\ns_mov_b32 s{b+2}, {n}\ns_mov_b32 s{b+3}, 0x20000')
        a(f'''
        s_mov_b32 s16, 0xcccccccc
        s_mov_b32 s17, 0xcccccccc
        s_mov_b32 s18, 0xaaaaaaaa
        s_mov_b32 s19, 0xaaaaaaaa
        s_mov_b32 s26, {lanemask(NK):#x}
        s_mov_b32 s27, {lanemask(NK):#x}
        s_mov_b32 s{sC1}, {LOG2E:#x}
        s_mov_b32 s{sC2}, 0xffff0000
        s_mov_b32 s{sMSK8}, 0xffffff00
        v_add_u32 v{vKV2}, 4096, v{vKV}
        v_and_b32 v{vT[5]}, 1, v{vC}
        v_lshlrev_b32 v{vT[5]}, 4, v{vT[5]}
        v_mov_b32 v{vT[6]}, 0xffff
        v_lshlrev_b32 v{vT[5]}, v{vT[5]}, v{vT[6]}
        v_bfe_u32 v{vT[6]}, v{vC}, 1, 2
        ''')
        for jj in range(4):
            a(f'v_cmp_eq_u32 vcc, {jj}, v{vT[6]}\nv_cndmask_b32 v{vMASK + jj}, 0, v{vT[5]}, vcc')
        a(f'''
        v_lshlrev_b32 v{vDA}, 5, v{vC}
        v_lshl_add_u32 v{vDA}, v{vG}, 4, v{vDA}
        s_waitcnt lgkmcnt(0)
        s_add_u32 s{sTAG}, s{sTAG}, 1
        s_and_b32 s{sTAG8}, s{sTAG}, 0xff
        v_mov_b32 v{vTAG}, s{sTAG8}
        ''')
    a(f's_cmp_lt_u32 s{sW}, 4\ns_cbranch_scc1 L_q')
    if sprio: a(f's_setprio {sprio}')
    for x in range(F): issue_static('K', x, x, 0, track=False)
    a('L_q:')
    common_setup()
    a(f's_cmp_lt_u32 s{sW}, 4\ns_cbranch_scc1 L_helper')
    for x in range(F, S):
        a(f's_waitcnt vmcnt({F - 1})')
        issue_static('K', x, x, 0, track=False)
    a('s_barrier\ns_branch L_qread\nL_helper:')
    a(f's_cmp_eq_u32 s{sW}, 0\ns_cbranch_scc1 L_q2')
    def g_rowbase(dst, k, t):
        tab = []
        for gg in range(4):
            b5, b4 = gg >> 1, gg & 1
            v = 5 * b5 + (2 * k + b4 if k < 2 else 4)
            tab.append(16 * (v >> 1) + (v & 1) + (4 * b4 if k == 2 else 0))
        packed = sum(x << (8 * i) for i, x in enumerate(tab))
        a(f'''
        s_mov_b32 s{sT2}, {packed:#x}
        v_lshlrev_b32 v{t}, 3, v{vG}
        v_bfe_u32 v{dst}, s{sT2}, v{t}, 8
        v_and_b32 v{t}, 8, v{vLANE}
        v_add_u32 v{dst}, v{dst}, v{t}
        ''')
    GSTEPS = [(k, n) for k in range(2) for n in range(4)] + [(2, 0), (2, 1)]
    def w_addr(t0, t1):
        a(f'''
        v_lshrrev_b32 v{t0}, 1, v{vG}
        v_lshlrev_b32 v{t0}, 5, v{t0}
        v_bfe_u32 v{t1}, v{vLANE}, 3, 1
        v_lshl_add_u32 v{t0}, v{t1}, 4, v{t0}
        v_and_b32 v{t1}, 1, v{vG}
        v_lshl_add_u32 v{t0}, v{t1}, 1, v{t0}
        v_mul_u32_u24 v{t0}, 1280, v{t0}
        v_and_b32 v{t1}, 7, v{vLANE}
        v_lshl_add_u32 v{t0}, v{t1}, 4, v{t0}
        ''')
    ndma = [0]
    def dma():
        L = f'L_dma{ndma[0]}'; ndma[0] += 1
        if now: return
        a(f'''
        s_cmp_eq_u32 s{sROLE}, 2
        s_cbranch_scc1 {L}_g
        s_cmp_eq_u32 s{sROLE}, 1
        s_cbranch_scc0 {L}_done
        ''')
        w_addr(vT[4], vT[1])
        a(f'''
        s_lshl_b32 s{sT0}, s{sGAM}, 9
        s_lshl_b32 s{sT1}, s{sW}, 7
        s_add_u32 s{sT0}, s{sT0}, s{sT1}
        s_mul_i32 s{sT0}, s{sT0}, 1280
        s_lshl_b32 s{sT1}, s{sCS}, 7
        s_add_u32 s{sT0}, s{sT0}, s{sT1}
        s_lshl_b32 s{sT3}, s{sW}, 14
        s_add_u32 s{sT3}, s{sT3}, {L_WT}
        ''')
        for half in range(2):
            for n in range(4):
                for k in range(2):
                    a(f's_add_u32 m0, s{sT3}, {(8 * half + 4 * k + n) * 1024}\ns_add_u32 s{sT1}, s{sT0}, {(half * 64 + 4 * n + k) * 1280}')
                    a(f's_waitcnt vmcnt({FH - 1})')
                    a(f'buffer_load_dwordx4 v{vT[4]}, {WO_}, s{sT1} offen {wflags} lds')
        a(f's_branch {L}_done\n{L}_g:')
        a(f'v_and_b32 v{vT[5]}, 3, v{vLANE}')
        for k in range(3):
            g_rowbase(vT[k], k, vT[4])
            a(f'v_mul_u32_u24 v{vT[k]}, 3456, v{vT[k]}\nv_lshl_add_u32 v{vT[k]}, v{vT[5]}, 4, v{vT[k]}')
        a(f'''
        s_mul_i32 s{sT0}, s{sW}, {160 * 3456}
        s_lshl_b32 s{sT1}, s{sFS}, 6
        s_add_u32 s{sT0}, s{sT0}, s{sT1}
        s_mul_i32 s{sT3}, s{sW}, {20 * 1024}
        s_add_u32 s{sT3}, s{sT3}, {L_WT}
        ''')
        for i in range(20):
            k, n = GSTEPS[i % 10]
            a(f's_add_u32 m0, s{sT3}, {i * 1024}\ns_add_u32 s{sT1}, s{sT0}, {(80 * (i // 10) + 2 * n) * 3456}')
            a(f's_mov_b32 exec_lo, 0x0f0f0f0f\ns_mov_b32 exec_hi, 0x0f0f0f0f\ns_waitcnt vmcnt({FH - 1})')
            a(f'buffer_load_dwordx4 v{vT[k]}, {WG_}, s{sT1} offen {gflags} lds')
            a(f's_mov_b32 exec_lo, 0xf0f0f0f0\ns_mov_b32 exec_hi, 0xf0f0f0f0\ns_waitcnt vmcnt({FH - 1})')
            a(f'buffer_load_dwordx4 v{vT[k]}, {WU_}, s{sT1} offen {gflags} lds')
        a(f's_mov_b64 exec, -1\n{L}_done:')
    a('s_barrier\ns_branch L_hdma\nL_q2:')
    a(f'ds_write_b32 v{vZ}, v{vZ} offset:{L_CNT}\nds_write_b32 v{vZ}, v{vZ} offset:{L_CNT+4}\nds_write_b32 v{vZ}, v{vZ} offset:{L_CNT+8}\nds_write_b32 v{vZ}, v{vZ} offset:{L_CNT+12}')
    wait('x')
    xs = vACC
    for i in range(5):
        a(f'v_lshlrev_b32 v{xs + 2*i}, 16, v{vX + i}\nv_and_b32 v{xs + 2*i + 1}, s{sC2}, v{vX + i}')
    sm = vT[0]
    a(f'v_add_f32 v{sm}, v{xs}, v{xs+1}')
    for i in range(2, 10): a(f'v_add_f32 v{sm}, v{sm}, v{xs + i}')
    allreduce(sm, 'v_add_f32', vT[2])
    a(f'v_mul_f32 v{sm}, {INV640:#x}, v{sm}')
    vv = vT[3]
    for i in range(10): a(f'v_sub_f32 v{xs + i}, v{xs + i}, v{sm}')
    a(f'v_mul_f32 v{vv}, v{xs}, v{xs}')
    for i in range(1, 10): a(f'v_fmac_f32 v{vv}, v{xs + i}, v{xs + i}')
    allreduce(vv, 'v_add_f32', vT[2])
    a(f'v_mul_f32 v{vv}, {INV640:#x}, v{vv}')
    ln_consts(sm, vv, vT[4], vT[5], vT[6])
    for i in range(2): a(f'v_lshlrev_b32 v{vXS + i}, 16, v{vXS + i}')
    ln_apply([vXS, vXS + 1], vT[4], vT[5], vT[6], [vT[1], vT[2]])
    stamp('ln')
    onehot_chain([(vXS + i // 16, f'row_newbcast:{i % 16}', wqs + 4 * i) for i in range(20)],
                 pre=lambda k: wait(('wq', k + 1)) if k % 2 == 0 else None)
    g = gat
    a(f's_lshl_b32 s{sT0}, s{sSLOT}, 9\ns_add_u32 s{sT0}, s{sT0}, {QS:#x}')
    tagw([vD + i for i in range(4)], rnd=True)
    a(f'''
    s_mov_b32 exec_hi, 0
    buffer_store_dwordx4 v[{vD}:{vD+3}], v{vDA}, {WS_}, s{sT0} offen sc1
    s_mov_b64 exec, -1
    ''')
    stamp('qpub')
    a(f'''
    s_lshl_b32 s{sT0}, s{sH}, 12
    s_add_u32 s{sT0}, s{sT0}, {QS:#x}
    s_mov_b32 s{sSPIN}, {spin}
    L_qpoll:
    ''')
    for i in range(4):
        a(f'buffer_load_dwordx4 v[{pA+4*i}:{pA+4*i+3}], v{vKV}, {WS_}, s{sT0} offen offset:{i * 1024} sc1')
    a('s_waitcnt vmcnt(0)')
    check(pA, g, 16)
    a(f'''
    s_cbranch_vccz L_qpoll_done
    s_sleep {qsleep}
    s_sub_u32 s{sSPIN}, s{sSPIN}, 1
    s_cbranch_scc0 L_qpoll
    L_qpoll_done:
    ''')
    stamp('qgot')
    for e in range(4): a(f'v_add_f32 v{g+e}, v{g+e}, v{g+4+e}\nv_add_f32 v{g+8+e}, v{g+8+e}, v{g+12+e}')
    for e in range(4): a(f'v_add_f32 v{g+e}, v{g+e}, v{g+8+e}')
    a(f'''
    v_and_b32 v{vT[0]}, 31, v{vLANE}
    v_lshrrev_b32 v{vT[1]}, 5, v{vLANE}
    v_permlane32_swap_b32 v{g}, v{g+2}
    v_permlane32_swap_b32 v{g+1}, v{g+3}
    v_lshl_add_u32 v{vT[0]}, v{vT[0]}, 1, v{vT[1]}
    v_add_f32 v{g}, v{g}, v{g+2}
    v_add_f32 v{g+1}, v{g+1}, v{g+3}
    v_lshlrev_b32 v{vT[0]}, 2, v{vT[0]}
    v_cvt_pk_bf16_f32 v{g}, v{g}, v{g+1}
    ds_write_b32 v{vT[0]}, v{g} offset:{L_Q}
    s_waitcnt lgkmcnt(0)
    s_barrier
    ''')
    a('L_hdma:')
    dma()
    a('s_waitcnt vmcnt(0)')
    lds_add(L_CNT + 12)
    stamp('dma')
    a('s_branch L_pub_done\nL_qread:')
    a(f'''
    v_lshlrev_b32 v{vT[0]}, 4, v{vC}
    ds_read_b128 v[{vQ}:{vQ+3}], v{vT[0]} offset:{L_Q}
    s_and_b32 s{sT0}, s{sW}, 3
    s_lshl_b32 s{sT0}, s{sT0}, 9
    v_add_u32 v{vDA}, s{sT0}, v{vDA}
    s_waitcnt lgkmcnt(0)
    ''')
    stamp('q')

    def reduce_tile(s, n, valid):
        A = [vACC + i if i < n else None for i in range(16)]
        B = []
        for jj in range(8):
            x, y = A[jj], A[jj + 8]
            if x is None: B.append(None); continue
            if y is None: a(f'v_add_f32_dpp v{x}, v{x}, v{x} row_ror:8 {DPPF}')
            else: a(f'v_add_f32_dpp v{x}, v{x}, v{x} row_ror:8 row_mask:0xf bank_mask:0x3')
            B.append(x)
        for jj in range(8):
            x, y = A[jj], A[jj + 8]
            if x is not None and y is not None:
                a(f'v_add_f32_dpp v{x}, v{y}, v{y} row_ror:8 row_mask:0xf bank_mask:0xc')
        C = []
        for jj in range(4):
            x = B[jj]
            d = vACC + 8 + jj
            a(f'v_add_f32_dpp v{d}, v{x}, v{x} row_shl:4 row_mask:0xf bank_mask:0x5')
            C.append(d)
        for jj in range(4):
            x, y = B[jj], B[jj + 4]
            z = y if y is not None else x
            a(f'v_add_f32_dpp v{C[jj]}, v{z}, v{z} row_shr:4 row_mask:0xf bank_mask:0xa')
        for jj in range(4): a(f'v_add_f32_dpp v{C[jj]}, v{C[jj]}, v{C[jj]} quad_perm:[2,3,0,1] {DPPF}')
        a(f'v_cndmask_b32 v{C[0]}, v{C[0]}, v{C[2]}, {sM1}\nv_cndmask_b32 v{C[1]}, v{C[1]}, v{C[3]}, {sM1}')
        for jj in range(2): a(f'v_add_f32_dpp v{C[jj]}, v{C[jj]}, v{C[jj]} quad_perm:[1,0,3,2] {DPPF}')
        a(f'v_cndmask_b32 v{s}, v{C[0]}, v{C[1]}, {sM0}')
        rbf(s, s)
        a(f'v_mul_f32 v{s}, {SCALE:#x}, v{s}')
        rbf(s, s)
        if valid:
            a(f'v_mov_b32 v{C[0]}, {NEGINF:#x}\nv_cndmask_b32 v{s}, v{C[0]}, v{s}, {valid}')
    def dots(r0, r1, a0):
        for jj in range(4):
            a(f'v_dot2_f32_bf16 v{a0}, v{r0 + jj}, v{vQ + jj}, {"0" if jj == 0 else "v%d" % a0}')
            a(f'v_dot2_f32_bf16 v{a0+1}, v{r1 + jj}, v{vQ + jj}, {"0" if jj == 0 else "v%d" % (a0+1)}')
    def claim():
        a(f'v_mov_b32 v{vTK}, 1\ns_mov_b64 exec, 1')
        vm('A', f'buffer_atomic_add v{vTK}, v{vZ}, {WS_}, s{sAOFF} offen sc0 sc1')
        a('s_mov_b64 exec, -1')
    def ticket():
        a(f'''
        v_readfirstlane_b32 s{sT0}, v{vTK}
        s_cmp_eq_u32 s{sAOFF}, s{sCTR}
        s_cselect_b32 s{sT0}, s{sT0}, {NCH}
        s_cmp_lt_u32 s{sT0}, s{sLIM}
        s_cselect_b32 s{sAOFF}, s{sCTR}, {OOB:#x}
        s_lshl_b32 s{sNXT}, s{sT0}, {CU - 1}
        s_add_u32 s{sNXT}, s{sNXT}, s{sROT}
        s_add_u32 s{sNXT}, s{sNXT}, {OP}
        s_lshl_b32 s{sNXT}, s{sNXT}, 12
        s_and_b32 s{sNXT}, s{sNXT}, 0x3fffff
        s_cmp_lt_u32 s{sT0}, {NCH}
        s_cselect_b32 s{sNXT}, s{sNXT}, {OOB:#x}
        ''')
    def write_ml():
        a(f'''
        s_and_b32 s{sT0}, s{sW}, 3
        s_lshl_b32 s{sT0}, s{sT0}, 2
        v_mov_b32 v{vT[3]}, s{sT0}
        ds_write_b32 v{vT[3]}, v{vM} offset:{L_M}
        ds_write_b32 v{vT[3]}, v{vL} offset:{L_L}
        ''')

    nml = [0]
    def ml_final(always_store=False):
        L = f'L_ml{nml[0]}'; nml[0] += 1
        mq = gat
        a(f'''
        v_mov_b32 v{vT[6]}, 1
        s_mov_b64 exec, 1
        ds_add_rtn_u32 v{vT[6]}, v{vZ}, v{vT[6]} offset:{L_CNT + 8}
        s_mov_b64 exec, -1
        v_and_b32 v{vT[5]}, 3, v{vLANE}
        v_lshlrev_b32 v{vT[5]}, 2, v{vT[5]}
        s_mov_b32 s{sT1}, {OOB:#x}
        s_waitcnt lgkmcnt(0)
        v_readfirstlane_b32 s{sT0}, v{vT[6]}
        s_cmp_lg_u32 s{sT0}, 3
        s_cbranch_scc1 {L}
        ds_read_b32 v{vT[4]}, v{vT[5]} offset:{L_M}
        ds_read_b32 v{mq+1}, v{vT[5]} offset:{L_L}
        v_mov_b32 v{mq+2}, v{vTAG}
        v_mov_b32 v{mq+3}, v{vTAG}
        s_lshl_b32 s{sT1}, s{sSLOT}, 10
        s_add_u32 s{sT1}, s{sT1}, {P1 + 512:#x}
        s_waitcnt lgkmcnt(0)
        v_max_f32_dpp v{mq}, v{vT[4]}, v{vT[4]} quad_perm:[1,0,3,2] {DPPF}
        v_max_f32_dpp v{mq}, v{mq}, v{mq} quad_perm:[2,3,0,1] {DPPF}
        v_sub_f32 v{vT[4]}, v{vT[4]}, v{mq}
        v_mul_f32 v{vT[4]}, s{sC1}, v{vT[4]}
        v_exp_f32 v{vT[4]}, v{vT[4]}
        v_mul_f32 v{mq+1}, v{mq+1}, v{vT[4]}
        ds_write_b32 v{vT[5]}, v{vT[4]} offset:{L_F}
        v_add_f32_dpp v{mq+1}, v{mq+1}, v{mq+1} quad_perm:[1,0,3,2] {DPPF}
        v_add_f32_dpp v{mq+1}, v{mq+1}, v{mq+1} quad_perm:[2,3,0,1] {DPPF}
        ''')
        tagw([mq, mq + 1])
        st = f'buffer_store_dwordx4 v[{mq}:{mq+3}], v{vZ}, {WS_}, s{sT1} offen sc1'
        if always_store:
            a(f'{L}:\ns_mov_b64 exec, 1'); vm('mls', st); a('s_mov_b64 exec, -1')
        else:
            a(f's_mov_b64 exec, 1\n{st}\ns_mov_b64 exec, -1\n{L}:')
    def stream():
        dyn = NCH > 0
        NL = NE * U
        NT = (NL + 15) // 16
        N = 2 * NL
        assert NE - NO <= 2
        for e in range(NE - NO):
            a(f'''
            s_add_u32 s{sEX0 + e}, s{sIDX}, {NO * 32 + e * 16}
            s_lshl_b32 s{sEX0 + e}, s{sEX0 + e}, 12
            s_and_b32 s{sEX0 + e}, s{sEX0 + e}, 0x3fffff
            s_cmp_eq_u32 s{sPAR}, 0
            s_cselect_b32 s{sEX0 + e}, s{sEX0 + e}, {OOB:#x}
            ''')
        sVAL = {}
        free = [sVa, sVb]
        for t in range(NT):
            me = sum(1 << c for c in range(16) if 16 * t + c < NL)
            mo = sum(1 << c for c in range(16) if 16 * t + c < NL and not (4 * XP <= 16 * t + c < 4 * XP + 4 * (NE - NO)))
            if me == 0xffff and mo == 0xffff: continue
            sp = free.pop(0); lo = int(sp[2:].split(':')[0])
            sVAL[t] = sp
            a(f's_mov_b32 s{lo}, {me * 0x10001:#x}\ns_mov_b32 s{lo+1}, {mo * 0x10001:#x}\ns_cmp_eq_u32 s{sPAR}, 0\ns_cselect_b32 s{lo}, s{lo}, s{lo+1}\ns_mov_b32 s{lo+1}, s{lo}')
        q.clear()
        for x in range(S): q.append(('r', x))
        done = [S - F]
        def wait_n(n):
            if len(q) - done[0] > n:
                a(f's_waitcnt vmcnt({n})'); done[0] = len(q) - n
        def wait_t(tag):
            idx = max(i for i, t in enumerate(q) if t == tag)
            wait_n(len(q) - 1 - idx)
        dK = [ring + ((N + i) % S) * 4 for i in range(NK)]
        dV = [ring + ((N + NK + i) % S) * 4 for i in range(NK)]
        def dload(m, i):
            r = (dK if m == 'K' else dV)[i]
            vm(('d' + m, i), f'buffer_load_dwordx4 v[{r}:{r+3}], v{vKV if i < 4 else vKV2}, {K_ if m == "K" else V_}, s{sNXT} offen offset:{(i % 4) * 1024} {kvflags if m == "K" else vflags}')
        NTOT = N + (2 * NK if dyn else 0)
        if dyn: a(f's_mov_b32 s{sAOFF}, s{sCTR}')
        st = dict(i=S)
        def issue_next(paced=True):
            x = st['i']
            if paced: wait_n(F - 1)
            if x < N:
                issue_static('K' if x < NL else 'V', x % NL, x, NE - NO)
                if dyn and x == N - F - 2: claim()
                if not dyn and x == N - 1: lds_add(L_CNT)
            else:
                if x == N:
                    wait_t('A')
                    ticket()
                    a(f's_cbranch_scc1 L_t0ok')
                    lds_add(L_CNT)
                    ml_final()
                    a('L_t0ok:')
                i = x - N
                dload('K' if i < NK else 'V', i % NK)
                if i == NK - 1: claim()
            st['i'] += 1
        def softmax():
            a(f'v_max_f32 v{vM}, v{vSC[0]}, v{vSC[1]}')
            for t in range(2, NT): a(f'v_max_f32 v{vM}, v{vM}, v{vSC[t]}')
            allreduce(vM, 'v_max_f32', vT[1])
            for t in range(NT): a(f'v_sub_f32 v{vSC[t]}, v{vSC[t]}, v{vM}')
            for t in range(NT): a(f'v_mul_f32 v{vSC[t]}, s{sC1}, v{vSC[t]}')
            for t in range(NT): a(f'v_exp_f32 v{vSC[t]}, v{vSC[t]}')
            for t in range(NT): a(f'v_cvt_pk_bf16_f32 v{vSC[t]}, v{vSC[t]}, v{vSC[t]}')
            issue_next()
            a(f'v_lshlrev_b32 v{vL}, 16, v{vSC[0]}')
            for t in range(1, NT): a(f'v_lshlrev_b32 v{vT[3]}, 16, v{vSC[t]}\nv_add_f32 v{vL}, v{vL}, v{vT[3]}')
            allreduce(vL, 'v_add_f32', vT[1])
            write_ml()
            if not dyn: ml_final()
            stamp('k')
            ands(vSC[0], 'row_newbcast:0', 0)
        c = 0
        while c < N:
            if st['i'] < NTOT and st['i'] - c < S: issue_next()
            budget = 4
            while c < N and budget > 0:
                step = 2 if c < NL else 1
                if st['i'] < NTOT and st['i'] - c < F + step: break
                if c < NL:
                    wait_t(('r', c + 1))
                    dots(ring + (c % S) * 4, ring + ((c + 1) % S) * 4, vACC + c % 16)
                    if (c + 2) % 16 == 0 or c + 2 == NL:
                        if st['i'] - (c + 2) < S and boost: issue_next(paced=False)
                        t = c // 16
                        reduce_tile(vSC[t], c + 2 - 16 * t, sVAL.get(t))
                        budget = 0
                    if c + 2 == NL:
                        issue_next()
                        softmax()
                else:
                    n = c - NL
                    if n + 1 < NL: ands(vSC[(n+1) // 16], f'row_newbcast:{(n+1) % 16}', n + 1)
                    wait_t(('r', c))
                    mfma(ring + (c % S) * 4, n, first=(n == 0))
                c += step; budget -= step
        if not dyn: return
        while st['i'] < NTOT: issue_next(paced=False)
        stamp('s')
        a(f's_cmp_eq_u32 s{sNXT}, {OOB:#x}\ns_cbranch_scc0 L_dyn\ns_waitcnt vmcnt(0)\ns_branch L_dyn_done\nL_dyn:')
        def body(more):
            q.clear()
            for i in range(NK): q.append(('dV', i))
            for i in range(0, NK, 2):
                dots(dK[i], dK[i+1], vACC + i)
                if more: dload('K', i); dload('K', i + 1)
            if more: claim()
            s = vSC[0]
            reduce_tile(s, NK, sLO8)
            mn = vT[0]
            a(f'v_max_f32 v{mn}, v{s}, v{vM}')
            allreduce(mn, 'v_max_f32', vT[1])
            a(f'''
            v_sub_f32 v{s}, v{s}, v{mn}
            v_sub_f32 v{vT[2]}, v{vM}, v{mn}
            v_mul_f32 v{s}, s{sC1}, v{s}
            v_mul_f32 v{vT[2]}, s{sC1}, v{vT[2]}
            v_exp_f32 v{s}, v{s}
            v_exp_f32 v{vT[2]}, v{vT[2]}
            v_mov_b32 v{vM}, v{mn}
            v_cvt_pk_bf16_f32 v{s}, v{s}, v{s}
            ''')
            for e in range(4): a(f'v_mul_f32 v{vD+e}, v{vD+e}, v{vT[2]}')
            def lsum():
                a(f'v_lshlrev_b32 v{vT[3]}, 16, v{s}')
                allreduce(vT[3], 'v_add_f32', vT[1])
                a(f'v_fma_f32 v{vL}, v{vL}, v{vT[2]}, v{vT[3]}')
            if not more:
                lsum()
                write_ml()
                ml_final(always_store=True)
            ands(s, 'row_newbcast:0', 0)
            for i in range(NK):
                if i + 1 < NK: ands(s, f'row_newbcast:{i+1}', i + 1)
                a(f's_waitcnt vmcnt({len(q) - 1 - i})')
                mfma(dV[i], i)
                if more: dload('V', i)
            if more: lsum()
        a(f's_waitcnt vmcnt({NK})')
        ticket()
        a('s_cbranch_scc0 L_dyn_last')
        body(True)
        a('s_branch L_dyn\nL_dyn_last:')
        lds_add(L_CNT)
        body(False)
        a('L_dyn_done:')
    stream()
    a('L_sdone:')
    a(f'''
    v_lshrrev_b32 v{vT[0]}, 5, v{vLANE}          ; half
    v_and_b32 v{vT[1]}, 31, v{vLANE}
    v_lshlrev_b32 v{vT[2]}, 3, v{vT[0]}
    v_lshlrev_b32 v{vT[3]}, 10, v{vT[0]}
    v_lshl_add_u32 v{vT[3]}, v{vT[1]}, 4, v{vT[3]}
    v_mov_b32 v{vT[6]}, 1
    s_mov_b32 exec_hi, 0
    ds_write_b128 v{vDA}, v[{vD}:{vD+3}] offset:{L_OP}
    s_mov_b64 exec, 1
    ds_add_rtn_u32 v{vT[6]}, v{vZ}, v{vT[6]} offset:{L_CNT + 4}
    s_mov_b64 exec, -1
    v_lshlrev_b32 v{vT[4]}, 4, v{vT[1]}
    v_lshl_add_u32 v{vT[4]}, v{vT[0]}, 3, v{vT[4]}
    s_lshl_b32 s{sT1}, s{sSLOT}, 10
    s_add_u32 s{sT1}, s{sT1}, {P1:#x}
    s_waitcnt lgkmcnt(0)
    v_readfirstlane_b32 s{sT0}, v{vT[6]}
    ''')
    stamp('v')
    t = vACC
    mm = vA[0]
    a(f'''
    s_cmp_lg_u32 s{sT0}, 3
    s_cbranch_scc1 L_pub_done
    s_setprio 3
    ds_read_b64 v[{mm}:{mm+1}], v{vT[2]} offset:{L_F}
    ''')
    for i in range(2): a(f'ds_read_b128 v[{g + 4*i}:{g + 4*i + 3}], v{vT[3]} offset:{L_OP + 512 * i}')
    a(f'v_mov_b32 v{vT[6]}, 1\ns_waitcnt lgkmcnt(1)')
    for e in range(4): a(f'v_mul_f32 v{t+e}, v{mm}, v{g + e}')
    a('s_waitcnt lgkmcnt(0)')
    for e in range(4): a(f'v_fmac_f32 v{t+e}, v{mm+1}, v{g + 4 + e}')
    a(f'''
    v_permlane32_swap_b32 v{t}, v{t+2}
    v_permlane32_swap_b32 v{t+1}, v{t+3}
    v_add_f32 v{t}, v{t}, v{t+2}
    v_add_f32 v{t+1}, v{t+1}, v{t+3}
    ''')
    tagw([t, t + 1])
    a(f'''
    buffer_store_dwordx2 v[{t}:{t+1}], v{vT[4]}, {WS_}, s{sT1} offen sc1
    s_mov_b64 exec, 1
    ds_add_u32 v{vZ}, v{vT[6]} offset:{L_CNT + 4}
    s_mov_b64 exec, -1
    s_setprio 0
    ''')
    if 'pub' in slist:
        a(f'''
        s_memrealtime s[96:97]
        s_add_u32 s24, s38, 0x10000000
        s_addc_u32 s25, s39, 0
        s_lshl_b32 s{sT2}, s2, 6
        s_add_u32 s{sT2}, s{sT2}, {4 * 15}
        v_mov_b32 v{vT[5]}, s{sT2}
        s_waitcnt lgkmcnt(0)
        v_mov_b32 v{vT[6]}, s96
        s_mov_b64 exec, 1
        global_store_dword v{vT[5]}, v{vT[6]}, s[24:25]
        s_mov_b64 exec, -1
        ''')
    a('L_pub_done:')
    if notail: a('s_branch L_fin')
    a(f's_cmp_eq_u32 s{sROLE}, 0\ns_cbranch_scc1 L_fin')
    vDA2 = vDA; vRA = vM
    wt = ring
    a(f'''
    v_bfe_u32 v{vT[0]}, v{vLANE}, 3, 1               ; rr
    v_and_b32 v{vT[1]}, 7, v{vLANE}                  ; cc
    v_and_b32 v{vT[2]}, 1, v{vG}                     ; b4
    v_lshrrev_b32 v{vT[3]}, 1, v{vG}                 ; b5
    s_lshl_b32 s{sT3}, s{sW}, 9
    v_lshlrev_b32 v{vDA2}, 8, v{vT[0]}
    v_lshl_add_u32 v{vDA2}, v{vT[1]}, 5, v{vDA2}
    v_lshl_add_u32 v{vDA2}, v{vT[2]}, 4, v{vDA2}
    v_add_u32 v{vDA2}, s{sT3}, v{vDA2}
    v_lshlrev_b32 v{vRA}, 10, v{vG}
    v_lshl_add_u32 v{vRA}, v{vC}, 4, v{vRA}
    s_cmp_eq_u32 s{sROLE}, 2
    s_cbranch_scc1 L_g
    ''')
    def fetch(n):
        a(f's_mul_i32 s{sT3}, s{sW}, {n * 1024}\nv_add_u32 v{vL}, s{sT3}, v{vKV}')
        for i in range(n): a(f'ds_read_b128 v[{wt + 4*i}:{wt + 4*i + 3}], v{vL} offset:{L_WT + 1024 * i}')
    lds_gate(L_CNT + 12, 4)
    fetch(8)
    a(f'''
    v_bfe_u32 v{vT[4]}, v{vLANE}, 2, 1
    v_lshl_add_u32 v{vT[4]}, v{vG}, 1, v{vT[4]}      ; s
    v_lshlrev_b32 v{vT[4]}, 10, v{vT[4]}
    v_and_b32 v{vT[5]}, 3, v{vLANE}
    v_lshl_add_u32 v{vT[5]}, v{vT[0]}, 2, v{vT[5]}   ; chunk
    v_lshl_add_u32 v{vT[5]}, v{vT[5]}, 4, v{vT[4]}
    s_lshl_b32 s{sT0}, s{sGAM}, 2
    s_lshr_b32 s{sT1}, s{sW}, 1
    s_add_u32 s{sT0}, s{sT0}, s{sT1}
    s_lshl_b32 s{sT0}, s{sT0}, 13
    s_add_u32 s{sT0}, s{sT0}, {P1:#x}
    s_and_b32 s{sT1}, s{sW}, 1
    s_lshl_b32 s{sT1}, s{sT1}, 8
    s_add_u32 s{sT1}, s{sT1}, s{sT0}
    ''')
    if p2nat:
        a(f'''
        s_mul_i32 s{sT2}, s{sGAM}, 2560
        s_lshl_b32 s{sT3}, s{sCS}, 8
        s_add_u32 s{sT2}, s{sT2}, s{sT3}
        s_add_u32 s{sT2}, s{sT2}, {P2:#x}
        v_lshl_add_u32 v{vT[0]}, v{vC}, 2, v{vG}
        v_lshlrev_b32 v{vT[0]}, 2, v{vT[0]}
        ''')
    else:
        a(f'''
        s_lshl_b32 s{sT2}, s{sCS}, 11
        s_lshl_b32 s{sT3}, s{sGAM}, 6
        s_add_u32 s{sT2}, s{sT2}, s{sT3}
        s_add_u32 s{sT2}, s{sT2}, {P2:#x}
        v_and_b32 v{vT[0]}, 3, v{vC}
        v_lshl_add_u32 v{vT[0]}, v{vT[0]}, 2, v{vG}
        v_lshlrev_b32 v{vT[0]}, 2, v{vT[0]}
        v_lshrrev_b32 v{vT[1]}, 2, v{vC}
        v_lshl_add_u32 v{vT[0]}, v{vT[1]}, 9, v{vT[0]}
        ''')
    lds_gate(L_CNT + 8, 4)
    def ld1(b):
        a(f'buffer_load_dwordx4 v[{b}:{b+3}], v{vT[5]}, {WS_}, s{sT1} offen sc1')
        a(f'buffer_load_dwordx4 v[{b+4}:{b+7}], v{vT[5]}, {WS_}, s{sT1} offen offset:128 sc1')
    def ld1m(b):
        a(f'buffer_load_dwordx4 v[{b+8}:{b+11}], v{vT[4]}, {WS_}, s{sT0} offen offset:512 sc1')
        ld1(b)
    poll2(ld1m, 12, g, 3, fast[0], thr[0])
    stamp('ml')
    mS, lS = g + 8, g + 9
    M = vT[2]; tt = vT[3]
    a(f'''
    v_max_f32_dpp v{M}, v{mS}, v{mS} row_half_mirror {DPPF}
    v_mov_b32 v{tt}, v{M}
    v_permlane16_swap_b32 v{M}, v{tt}
    v_max_f32 v{M}, v{M}, v{tt}
    v_mov_b32 v{tt}, v{M}
    v_permlane32_swap_b32 v{M}, v{tt}
    v_max_f32 v{M}, v{M}, v{tt}
    v_sub_f32 v{mS}, v{mS}, v{M}
    v_mul_f32 v{mS}, s{sC1}, v{mS}
    v_exp_f32 v{mS}, v{mS}
    v_mul_f32 v{lS}, v{lS}, v{mS}
    v_add_f32_dpp v{lS}, v{lS}, v{lS} row_half_mirror {DPPF}
    v_mov_b32 v{tt}, v{lS}
    v_permlane16_swap_b32 v{lS}, v{tt}
    v_add_f32 v{lS}, v{lS}, v{tt}
    v_mov_b32 v{tt}, v{lS}
    v_permlane32_swap_b32 v{lS}, v{tt}
    v_add_f32 v{lS}, v{lS}, v{tt}
    v_rcp_f32 v{tt}, v{lS}
    v_mul_f32 v{mS}, v{mS}, v{tt}
    ''')
    stamp('h1')
    for i in range(8): a(f'v_mul_f32 v{g+i}, v{g+i}, v{mS}')
    for e in range(4): a(f'v_permlane32_swap_b32 v{g+e}, v{g+4+e}')
    for e in range(4): a(f'v_add_f32 v{g+e}, v{g+e}, v{g+4+e}')
    a(f'''
    v_permlane16_swap_b32 v{g}, v{g+2}
    v_permlane16_swap_b32 v{g+1}, v{g+3}
    v_add_f32 v{g}, v{g}, v{g+2}
    v_add_f32 v{g+1}, v{g+1}, v{g+3}
    v_add_f32_dpp v{g+2}, v{g}, v{g} row_shl:4 row_mask:0xf bank_mask:0x5
    v_add_f32_dpp v{g+3}, v{g+1}, v{g+1} row_shl:4 row_mask:0xf bank_mask:0x5
    v_add_f32_dpp v{g+2}, v{g}, v{g} row_shr:4 row_mask:0xf bank_mask:0xa
    v_add_f32_dpp v{g+3}, v{g+1}, v{g+1} row_shr:4 row_mask:0xf bank_mask:0xa
    v_cvt_pk_bf16_f32 v{g+2}, v{g+2}, v{g+2}
    v_cvt_pk_bf16_f32 v{g+3}, v{g+3}, v{g+3}
    ''')
    onehot_chain([(g + 2 + i // 4, f'quad_perm:[{i%4},{i%4},{i%4},{i%4}]', wt + 4 * i) for i in range(8)])
    write_d_rr(L_ZP)
    a(f's_cmp_lg_u32 s{sW}, 0\ns_cbranch_scc1 L_fin')
    lds_reduce16(L_ZP, g)
    lds_reduce16b(g)
    tagw([g])
    a(f'buffer_store_dword v{g}, v{vT[0]}, {WS_}, s{sT2} offen sc1')
    stamp('w')
    a('s_branch L_fin')
    wD = ring + 40
    vHA = [vQ, vQ + 1, vQ + 2]; vPA = vQ + 3; vXv = [vSC[0], vSC[1], vSC[2]]; vCS = vSC[3]; vWA = vSC[4]
    a('L_g:')
    a(f's_mul_i32 s{sT3}, s{sW}, 80\nv_and_b32 v{vT[5]}, 3, v{vLANE}')
    for k in range(3):
        g_rowbase(vHA[k], k, vT[4])
        if k < 2: a(f'v_lshl_add_u32 v{vHA[k]}, v{vT[5]}, 1, v{vHA[k]}')
        else:
            a(f'''
            v_lshl_add_u32 v{vHA[k]}, v{vT[5]}, 1, v{vHA[k]}
            v_lshrrev_b32 v{vT[4]}, 1, v{vT[5]}
            v_and_b32 v{vT[4]}, v{vT[4]}, v{vT[2]}
            v_lshlrev_b32 v{vT[4]}, 3, v{vT[4]}
            v_sub_u32 v{vHA[k]}, v{vHA[k]}, v{vT[4]}
            ''')
        a(f'v_add_u32 v{vHA[k]}, s{sT3}, v{vHA[k]}\nv_lshlrev_b32 v{vHA[k]}, 1, v{vHA[k]}')
        a(f'buffer_load_ushort v{vXv[k]}, v{vHA[k]}, {X_}, 0 offen')
        a(f'v_lshlrev_b32 v{vHA[k]}, 1, v{vHA[k]}')
    a(f'''
    v_mul_u32_u24 v{vWA}, 1280, v{vG}
    v_lshl_add_u32 v{vWA}, v{vC}, 4, v{vWA}
    v_bfe_u32 v{vPA}, v{vLANE}, 2, 1
    v_lshl_add_u32 v{vPA}, v{vG}, 1, v{vPA}
    v_mul_u32_u24 v{vPA}, {2560 if p2nat else 64}, v{vPA}
    v_lshl_add_u32 v{vT[4]}, v{vT[0]}, 2, v{vT[5]}
    v_lshl_add_u32 v{vPA}, v{vT[4]}, 3, v{vPA}
    ''')
    lds_gate(L_CNT + 12, 4)
    fetch(10)
    if not dearly: lds_gate(L_CNT + 4, 5)
    else: a('s_waitcnt lgkmcnt(0)')
    a(f'''
    s_mul_i32 s{sT0}, s{sFS}, {32 * 1280}
    s_lshl_b32 s{sT2}, s{sW}, 8
    s_add_u32 s{sT0}, s{sT0}, s{sT2}
    s_cmp_gt_u32 s{sW}, 4
    s_cbranch_scc1 L_g_nod
    ''')
    if not now:
        for i in range(8):
            if i: a(f's_add_u32 s{sT0}, s{sT0}, {4 * 1280}')
            a(f'buffer_load_dwordx4 v[{wD+4*i}:{wD+4*i+3}], v{vWA}, {WD_}, s{sT0} offen {dflags}')
    a(f'L_g_nod:\nv_mov_b32 v{g}, 0x3f803f80')
    onehot_chain([(g, 'quad_perm:[0,0,0,0]', wt + 4 * i) for i in range(10)])
    write_d_rr(L_ZP)
    lds_reduce16(L_ZP, g)
    lds_reduce16b(g)
    a(f'''
    v_mov_b32 v{vCS}, v{g}
    s_mul_i32 s{sT0}, s{sW}, {320 if p2nat else 2560}
    s_add_u32 s{sT0}, s{sT0}, {P2:#x}
    s_lshl_b32 s{sT3}, s{sW}, 3
    v_mov_b32 v{vT[0]}, s{sT3}
    s_mul_i32 s{sT2}, s{sFS}, 2560
    s_lshl_b32 s{sT1}, s{sW}, 9
    s_add_u32 s{sT2}, s{sT2}, s{sT1}
    s_add_u32 s{sT2}, s{sT2}, {P3:#x}
    v_lshlrev_b32 v{vT[1]}, 5, v{vC}
    v_lshl_add_u32 v{vT[1]}, v{vG}, 4, v{vT[1]}
    s_waitcnt vmcnt(0)
    ''')
    for k in range(3): a(f'v_lshlrev_b32 v{vXv[k]}, 16, v{vXv[k]}')
    stamp('gw')
    def ld2(b):
        for i in range(5): a(f'buffer_load_dwordx2 v[{b+2*i}:{b+2*i+1}], v{vPA}, {WS_}, s{sT0} offen offset:{(64 if p2nat else 512)*i} sc1')
    poll2(ld2, 10, g, 5, fast[1], thr[1])
    stamp('h2')
    for i in range(5): a(f'v_permlane32_swap_b32 v{g+i}, v{g+5+i}')
    for i in range(5): a(f'v_add_f32 v{g+i}, v{g+i}, v{g+5+i}')
    z = [g + 10, g + 11, g + 12]
    a(f'''
    v_mov_b32 v{g+5}, v{g+4}
    v_permlane16_swap_b32 v{g}, v{g+1}
    v_permlane16_swap_b32 v{g+2}, v{g+3}
    v_permlane16_swap_b32 v{g+4}, v{g+5}
    v_add_f32 v{g}, v{g}, v{g+1}
    v_add_f32 v{g+2}, v{g+2}, v{g+3}
    v_add_f32 v{g+4}, v{g+4}, v{g+5}
    ''')
    for k in range(3): a(f'v_add_f32_dpp v{z[k]}, v{g+2*k}, v{g+2*k} row_shl:4 row_mask:0xf bank_mask:0x5')
    for k in range(3): a(f'v_add_f32_dpp v{z[k]}, v{g+2*k}, v{g+2*k} row_shr:4 row_mask:0xf bank_mask:0xa')
    for k in range(2): a(f'v_cvt_pk_bf16_f32 v{z[k]}, v{z[k]}, v{z[k]}')
    a(f'v_mov_b32_dpp v{z[2]}, v{z[2]} quad_perm:[2,3,0,1] row_mask:0xa bank_mask:0xf')
    for k in range(2): a(f'v_lshlrev_b32 v{z[k]}, 16, v{z[k]}')
    a(f'v_cvt_pk_bf16_f32 v{z[2]}, v{z[2]}, v{z[2]}')
    for k in range(2): a(f'v_add_f32 v{z[k]}, v{z[k]}, v{vXv[k]}')
    a(f'v_lshlrev_b32 v{z[2]}, 16, v{z[2]}')
    for k in range(2): a(f'v_cvt_pk_bf16_f32 v{z[k]}, v{z[k]}, v{z[k]}')
    a(f'v_add_f32 v{z[2]}, v{z[2]}, v{vXv[2]}\nv_cvt_pk_bf16_f32 v{z[2]}, v{z[2]}, v{z[2]}')
    hh = [g, g + 1, g + 2]; s1, s2, t1, t2 = g + 4, g + 5, g + 6, g + 7
    side = []
    for k in range(3): side.append(f'v_lshlrev_b32 v{hh[k]}, 16, v{z[k]}')
    side += [f'v_add_f32 v{s1}, v{hh[0]}, v{hh[1]}', f'v_mul_f32 v{s2}, v{hh[0]}, v{hh[0]}', f'v_mul_f32 v{t1}, 0.5, v{hh[2]}',
             f'v_fmac_f32 v{s2}, v{hh[1]}, v{hh[1]}', f'v_add_f32 v{s1}, v{s1}, v{t1}', f'v_fmac_f32 v{s2}, v{t1}, v{hh[2]}']
    for k in range(3): side.append(f'ds_write_b32 v{vHA[k]}, v{hh[k]} offset:{L_HH}')
    for sel in ('quad_perm:[1,0,3,2]', 'quad_perm:[2,3,0,1]', 'row_ror:8'):
        side += [f'v_add_f32_dpp v{s1}, v{s1}, v{s1} {sel} {DPPF}', f'v_add_f32_dpp v{s2}, v{s2}, v{s2} {sel} {DPPF}', None]
    side += [f'v_permlane16_swap_b32 v{s1}, v{s2}', f'v_add_f32 v{s1}, v{s1}, v{s2}', f'v_mov_b32 v{t1}, v{s1}', None,
             f'v_permlane32_swap_b32 v{s1}, v{t1}', f'v_add_f32 v{s1}, v{s1}, v{t1}']
    def pre(k):
        cnt = 0
        while side and cnt < 4:
            x = side.pop(0)
            if x is None: break
            a(x); cnt += 1
    onehot_chain([(z[k], f'quad_perm:[{n},{n},{n},{n}]', wt + 4 * i) for i, (k, n) in enumerate(GSTEPS)], pre=pre)
    while side:
        x = side.pop(0)
        if x: a(x)
    a(f'''
    v_lshlrev_b32 v{t2}, 5, v{vT[2]}
    s_lshl_b32 s{sT3}, s{sW}, 2
    v_add_u32 v{t2}, s{sT3}, v{t2}
    ds_write_b32 v{t2}, v{s1} offset:{L_ST}
    ''')
    write_d_rr(L_GP)
    stamp('g1')
    a(f's_cmp_gt_u32 s{sW}, 4\ns_cbranch_scc1 L_f')
    r = g; u = vACC
    for i in range(4): a(f'ds_read_b128 v[{u+4*i}:{u+4*i+3}], v{vZ} offset:{L_ST + 16*i}')
    lds_reduce16(L_GP, r)
    a('s_waitcnt lgkmcnt(4)')
    for e in range(4): a(f'v_add_f32 v{u+e}, v{u+e}, v{u+4+e}\nv_add_f32 v{u+8+e}, v{u+8+e}, v{u+12+e}')
    a(f'''
    v_add_f32 v{u}, v{u}, v{u+1}
    v_add_f32 v{u+8}, v{u+8}, v{u+9}
    v_add_f32 v{u+2}, v{u+2}, v{u+3}
    v_add_f32 v{u+10}, v{u+10}, v{u+11}
    v_add_f32 v{u}, v{u}, v{u+2}
    v_add_f32 v{u+8}, v{u+8}, v{u+10}
    s_waitcnt lgkmcnt(2)
    v_mul_f32 v{u}, {INV640:#x}, v{u}
    v_add_f32 v{r}, v{r}, v{r+4}
    v_mul_f32 v{u+8}, {INV640:#x}, v{u+8}
    v_add_f32 v{r+1}, v{r+1}, v{r+5}
    v_fma_f32 v{u+8}, -v{u}, v{u}, v{u+8}
    v_add_f32 v{r+2}, v{r+2}, v{r+6}
    v_max_f32 v{u+8}, 0, v{u+8}
    v_add_f32 v{r+3}, v{r+3}, v{r+7}
    v_cvt_pk_bf16_f32 v{u+8}, v{u+8}, v{u+8}
    s_waitcnt lgkmcnt(0)
    v_add_f32 v{r+8}, v{r+8}, v{r+12}
    v_lshlrev_b32 v{u+8}, 16, v{u+8}
    v_add_f32 v{r+9}, v{r+9}, v{r+13}
    v_add_f32 v{u+8}, {EPS:#x}, v{u+8}
    v_add_f32 v{r+10}, v{r+10}, v{r+14}
    v_cvt_pk_bf16_f32 v{u+8}, v{u+8}, v{u+8}
    v_add_f32 v{r+11}, v{r+11}, v{r+15}
    v_lshlrev_b32 v{u+8}, 16, v{u+8}
    v_add_f32 v{r}, v{r}, v{r+8}
    v_sqrt_f32 v{u+8}, v{u+8}
    v_add_f32 v{r+2}, v{r+2}, v{r+10}
    v_add_f32 v{r+1}, v{r+1}, v{r+9}
    v_add_f32 v{r+3}, v{r+3}, v{r+11}
    v_cvt_pk_bf16_f32 v{u+8}, v{u+8}, v{u+8}
    v_permlane32_swap_b32 v{r}, v{r+2}
    v_cvt_pk_bf16_f32 v{u}, v{u}, v{u}
    v_permlane32_swap_b32 v{r+1}, v{r+3}
    v_lshlrev_b32 v{u+8}, 16, v{u+8}
    v_add_f32 v{r}, v{r}, v{r+2}
    v_add_f32 v{r+1}, v{r+1}, v{r+3}
    v_rcp_f32 v{u+9}, v{u+8}
    v_lshlrev_b32 v{u}, 16, v{u}
    v_permlane16_swap_b32 v{r}, v{r+1}
    v_add_f32 v{r}, v{r}, v{r+1}
    v_fma_f32 v{r}, -v{u}, v{vCS}, v{r}
    v_mul_f32 v{r}, v{r}, v{u+9}
    ''')
    rbf(r, r)
    a(f'''
    v_mul_f32 v{r+1}, s{sC1}, v{r}
    v_exp_f32 v{r+1}, -v{r+1}
    v_add_f32 v{r+1}, 1.0, v{r+1}
    v_rcp_f32 v{r+2}, v{r+1}
    v_mul_f32 v{r+3}, v{r}, v{r+2}
    ''')
    rbf(r + 3, r + 3)
    a(f'''
    v_mul_f32_dpp v{r+3}, v{r}, v{r+3} row_ror:8 {DPPF}
    v_cvt_pk_bf16_f32 v{r+3}, v{r+3}, v{r+3}
    ''')
    onehot_chain([(r + 3, f'row_newbcast:{i}', wD + 4 * i) for i in range(8)])
    tagw([vD + i for i in range(4)])
    a(f'''
    s_mov_b32 exec_hi, 0
    buffer_store_dwordx4 v[{vD}:{vD+3}], v{vT[1]}, {WS_}, s{sT2} offen sc1
    s_mov_b64 exec, -1
    ''')
    stamp('g')
    a('s_branch L_fin')
    a(f'''
    L_f:
    s_cmp_lg_u32 s{sW}, 7
    s_cbranch_scc1 L_fin
    s_cmp_ge_u32 s{sFS}, 40
    s_cbranch_scc1 L_fin
    v_lshrrev_b32 v{vT[0]}, 2, v{vLANE}
    v_and_b32 v{vT[1]}, 3, v{vLANE}
    v_mul_u32_u24 v{vT[0]}, 2560, v{vT[0]}
    v_lshl_add_u32 v{vT[0]}, v{vT[1]}, 4, v{vT[0]}
    s_lshl_b32 s{sT3}, s{sFS}, 6
    s_add_u32 s{sT0}, s{sT3}, {P3:#x}
    s_add_u32 s{sT1}, s{sT0}, {16 * 2560}
    s_add_u32 s{sT2}, s{sT0}, {32 * 2560}
    s_add_u32 s{sOFF}, s{sT0}, {48 * 2560}
    v_lshl_add_u32 v{vT[1]}, v{vT[1]}, 2, v{vG}
    v_lshlrev_b32 v{vT[1]}, 2, v{vT[1]}
    v_add_u32 v{vT[1]}, s{sT3}, v{vT[1]}
    ds_read_b32 v{vT[2]}, v{vT[1]} offset:{L_HH}
    v_lshrrev_b32 v{vT[1]}, 1, v{vT[1]}
    ''')
    a(f'''
    s_waitcnt vmcnt(0)
    v_cmp_gt_u32 vcc, 24, v{vLANE}
    v_subrev_u32 v{vT[5]}, {16 * 2560}, v{vT[0]}
    v_cndmask_b32 v{vT[5]}, v{vT[5]}, v{vT[0]}, vcc
    v_add_u32 v{vT[5]}, {16 * 2560}, v{vT[5]}
    v_cndmask_b32 v{vT[3]}, 0, 1.0, vcc
    ''')
    a(f'''
    s_cmp_eq_u32 s{sFS}, 0
    s_cselect_b32 s{sT3}, {EPOCH}, {OOB:#x}
    v_mov_b32 v{vT[4]}, s{sTAG}
    s_mov_b64 exec, 1
    buffer_store_dword v{vT[4]}, v{vZ}, {WS_}, s{sT3} offen sc1
    s_mov_b64 exec, -1
    ''')
    def ld3(b):
        for i in range(3): a(f'buffer_load_dwordx4 v[{b+4*i}:{b+4*i+3}], v{vT[0]}, {WS_}, s{(sT0, sT1, sT2)[i]} offen sc1')
        a(f'buffer_load_dwordx4 v[{b+12}:{b+15}], v{vT[5]}, {WS_}, s{sT2} offen sc1')
    poll2(ld3, 16, g, 4, fast[2], thr[2], wide=False)
    stamp('h3')
    for e in range(4): a(f'v_add_f32 v{g+e}, v{g+e}, v{g+4+e}')
    for e in range(4): a(f'v_fmac_f32 v{g+8+e}, v{vT[3]}, v{g+12+e}')
    for e in range(4): a(f'v_add_f32 v{g+e}, v{g+e}, v{g+8+e}')
    a(f'''
    v_permlane32_swap_b32 v{g}, v{g+2}
    v_permlane32_swap_b32 v{g+1}, v{g+3}
    v_add_f32 v{g}, v{g}, v{g+2}
    v_add_f32 v{g+1}, v{g+1}, v{g+3}
    v_permlane16_swap_b32 v{g}, v{g+1}
    v_add_f32 v{g}, v{g}, v{g+1}
    v_add_f32_dpp v{g}, v{g}, v{g} row_ror:8 {DPPF}
    v_add_f32_dpp v{g}, v{g}, v{g} row_ror:4 {DPPF}
    ''')
    rbf(g, g)
    a(f'''
    s_waitcnt lgkmcnt(0)
    v_add_f32 v{g}, v{g}, v{vT[2]}
    v_cvt_pk_bf16_f32 v{g}, v{g}, v{g}
    s_mov_b32 exec_lo, 0x000f000f
    s_mov_b32 exec_hi, 0x000f000f
    buffer_store_short v{g}, v{vT[1]}, {OUT_}, 0 offen
    s_mov_b64 exec, -1
    L_fin:
    ''')
    if diagpad:
        pad, k, mult = diagpad
        a(f'''
        s_cmp_lg_u32 s{sW}, 7
        s_cbranch_scc1 L_end
        s_cmp_lg_u32 s{sROLE}, 2
        s_cbranch_scc1 L_end
        s_cmp_lg_u32 s{sFS}, 0
        s_cbranch_scc1 L_end
        v_readlane_b32 s{sT0}, v{vSTAMP}, 0
        v_readlane_b32 s{sT1}, v{vSTAMP}, {k}
        s_sub_u32 s{sT1}, s{sT1}, s{sT0}
        s_mul_i32 s{sT1}, s{sT1}, {mult}
        s_add_u32 s{sT1}, s{sT1}, {pad}
        L_diag:
        s_memrealtime s[96:97]
        s_waitcnt lgkmcnt(0)
        s_sub_u32 s{sT2}, s96, s{sT0}
        s_cmp_lt_u32 s{sT2}, s{sT1}
        s_cbranch_scc1 L_diag
        ''')
    elif stamps and dbgout:
        stamp('end')
        a(f'''
        s_cmp_lg_u32 s{sW}, 7
        s_cbranch_scc1 L_end
        s_cmp_lg_u32 s{sROLE}, 2
        s_cbranch_scc1 L_end
        s_cmp_gt_u32 s{sFS}, 1
        s_cbranch_scc1 L_end
        v_readlane_b32 s{sT0}, v{vSTAMP}, 0
        s_lshl_b32 s{sT1}, s{sFS}, 5
        v_lshlrev_b32 v{vT[0]}, 2, v{vLANE}
        v_add_u32 v{vT[0]}, s{sT1}, v{vT[0]}
        v_subrev_u32 v{vT[1]}, s{sT0}, v{vSTAMP}
        s_mov_b64 exec, 0xff
        global_store_dword v{vT[0]}, v{vT[1]}, s[36:37]
        ''')
    elif stamps:
        stamp('end')
        a(f'''
        s_cmp_lg_u32 s{sW}, {stampwave}
        s_cbranch_scc1 L_end
        s_add_u32 s24, s38, 0x10000000
        s_addc_u32 s25, s39, 0
        s_lshl_b32 s{sT0}, s2, 6
        v_lshlrev_b32 v{vT[0]}, 2, v{vLANE}
        v_add_u32 v{vT[0]}, s{sT0}, v{vT[0]}
        s_mov_b64 exec, 0x7fff
        global_store_dword v{vT[0]}, v{vSTAMP}, s[24:25]
        ''')
    a('L_end:\ns_endpgm')
    if rtab:
        tab = role_table()
        a('.p2align 6\n.type L_tab,@object\nL_tab:')
        for i in range(0, 256, 16): a('.byte ' + ', '.join(map(str, tab[i:i+16])))
        a('.size L_tab, 256')
    return build_file([f'; @launch grid=(256,1,1) block=(512,1,1) lds={lds}'], [(NAME + '_kernel', a.text(), V.high, 102)])

if __name__ == '__main__':
    import json
    out = sys.argv[1]
    kw = json.loads(sys.argv[2]) if len(sys.argv) > 2 else {}
    open(out, 'w').write(gen(**kw))
```

```python
import sys, struct
from asmlib import *

def f2u(x): return struct.unpack('<I', struct.pack('<f', x))[0]
LOG2E = f2u(1.4426950408889634)
SCALE = f2u(128 ** -0.5)
INV640 = f2u(1.0 / 640)
EPS = f2u(1e-5)
NEGINF = 0xff800000

EPOCH = 0x0
CTR = 0x1000
CTRS = 0x1100
QS = 0x40000
P1 = 0x80000
P2 = 0xC0000
P3 = 0xE0000
WS_END = P3 + 54 * 2560
OOB = 0x40000000
L_Q = 0; L_CNT = 256; L_M = 320; L_L = 352; L_F = 384; L_ST = 448; L_OP = 4096; L_ZP = 8192; L_GP = 12288; L_HH = 16384; L_WT = 20480

DPPF = 'row_mask:0xf bank_mask:0xf'

def role_table(seed=1):
    import random
    rnd = random.Random(seed)
    needG = [2] * 22 + [1] * 10
    needW = [2] * 22 + [4] * 6 + [3] * 4
    order = list(range(32)); rnd.shuffle(order)
    needG = [needG[order[h]] for h in range(32)]; needW = [needW[order[h]] for h in range(32)]
    while True:
        g = list(needG); w = list(needW); tab = [255] * 256; ok = True
        for x in range(8):
            fs = [2 * p + b for p in range(x, 27, 8) for b in range(2)]
            left = 8 - x
            hs = sorted(range(32), key=lambda h: (-(g[h] + w[h]), -g[h], rnd.random()))
            used = set()
            cg = [h for h in sorted(range(32), key=lambda h: (-g[h], -(g[h] + w[h]), rnd.random())) if g[h] > 0][:len(fs)]
            if len(cg) < len(fs): ok = False; break
            for h, f in zip(cg, fs): tab[8 * h + x] = f; g[h] -= 1; used.add(h)
            cw = [h for h in sorted(range(32), key=lambda h: (-(w[h] + g[h]), rnd.random())) if w[h] > 0 and h not in used][:10]
            if len(cw) < 10: ok = False; break
            for c, h in enumerate(cw): tab[8 * h + x] = 64 + c; w[h] -= 1
        if ok and not any(g) and not any(w): return tab

def gen(NE=28, NO=28, HROT=160, S=32, F=5, CU=1, FH=2, stamps=False, kvflags='nt', wqflags='nt', wflags='', lds=84000,
        spin=200000, stampwave=0, notail=False, now=False, mapping='all', gstop=0, wstop=0, gflags=None, dflags=None,
        vflags=None, dbgout=False, diagpad=None, p2nat=True, rtab=True, fast=(1, 1, 1), thr=(32, 48, 48), gap=1, gswap=True,
        boost=0, dearly=False, qsleep=4, sprio=2, wlate=8, glate=9, lgate=1, FH2=8, early=False, Fpat=None, pre=False, pred=False, FP=2, pflags='', kgate=True, ptest=None, skipw=False, skipg=False, gfull=False, eager=32, fgate=False, xorb=0):
    a = Asm()
    V = Alloc(1, 256)
    U = 4
    if gflags is None: gflags = wflags
    if vflags is None: vflags = kvflags
    if dflags is None: dflags = wflags
    if Fpat is None: Fpat = [F]
    F = max(Fpat)
    OP = 16 * (NE + NO)
    NCH = (1024 - OP) // CU
    NK = U * CU
    assert OP <= 1024 and HROT % 2 == 0
    NTMAX = max(5, (NE * U + 15) // 16)
    sW, sH, sIDX, sPAR, sS = 3, 4, 5, 6, 7
    K_, V_, WQ_, WS_, X_, WO_, WG_, WU_, WD_, OUT_ = [f's[{b}:{b+3}]' for b in (8, 12, 40, 44, 48, 52, 56, 60, 64, 68)]
    sOFF, sOFF0, sEX0, sT0, sT1, sT2, sT3 = 76, 77, 78, 80, 81, 82, 83
    sSLOT, sROLE, sGAM, sCS, sFS, sSPIN, sTAG, sTAG8 = 84, 85, 87, 88, 89, 91, 92, 93
    sC1, sC2 = 94, 95
    sROT, sCTR, sNXT, sLIM, sAOFF, sMSK8 = 72, 73, 74, 75, 86, 90
    sM1, sM0 = 's[16:17]', 's[18:19]'
    sVa, sVb = 's[20:21]', 's[22:23]'
    sLO8 = 's[26:27]'
    slist = stamps if isinstance(stamps, list) else []
    def stamp(name):
        if name in slist:
            a(f's_memrealtime s[96:97]\ns_waitcnt lgkmcnt(0)\nv_writelane_b32 v{vSTAMP}, s96, {1 + slist.index(name)}')
    q = []
    def vm(tag, text):
        a(text); q.append(tag)
    def wait(tag):
        idx = max(i for i, t in enumerate(q) if t == tag)
        n = len(q) - 1 - idx
        assert n <= 63, n
        a(f's_waitcnt vmcnt({n})')

    vSTAMP = V.get() if stamps else None
    vLANE = V.get(); vG = V.get(); vC = V.get(); vKV = V.get(); vKV2 = V.get()
    vT = [V.get() for _ in range(8)]
    vDA = V.get(); vXH = V.get(); vTAG = V.get(); vTK = V.get(); vM = V.get(); vL = V.get(); vZ = V.get()
    vMASK = V.get(4, 4)
    vA = [V.get(4, 4), V.get(4, 4)]
    vD = V.get(4, 4)
    vQ = V.get(4, 4)
    vSC = [V.get() for _ in range(NTMAX)]
    vACC = V.get(16, 4)
    gat = V.get(16, 4)
    ring = V.get(4 * S, 4)
    wqs = ring
    assert S >= 32
    pA, pB = ring + 96, ring + 112
    pS = [ring + 112, ring + 96, ring + 80]

    def allreduce(r, op, t):
        for k in (8, 4, 2, 1):
            a(f'{op}_dpp v{r}, v{r}, v{r} row_ror:{k} {DPPF}')
        for sw in ('v_permlane16_swap_b32', 'v_permlane32_swap_b32'):
            a(f'v_mov_b32 v{t}, v{r}\n{sw} v{r}, v{t}\n{op} v{r}, v{r}, v{t}')
    def allreduce2(r0, r1, op, t0, t1):
        for k in (8, 4, 2, 1):
            a(f'{op}_dpp v{r0}, v{r0}, v{r0} row_ror:{k} {DPPF}\n{op}_dpp v{r1}, v{r1}, v{r1} row_ror:{k} {DPPF}')
        for sw in ('v_permlane16_swap_b32', 'v_permlane32_swap_b32'):
            a(f'v_mov_b32 v{t0}, v{r0}\nv_mov_b32 v{t1}, v{r1}\n{sw} v{r0}, v{t0}\n{sw} v{r1}, v{t1}\n{op} v{r0}, v{r0}, v{t0}\n{op} v{r1}, v{r1}, v{t1}')
    def rbf(d, s):
        a(f'v_cvt_pk_bf16_f32 v{d}, v{s}, v{s}\nv_lshlrev_b32 v{d}, 16, v{d}')
    def ln_consts(vmean, vvar, vm_bf, vs_bf, vr):
        rbf(vs_bf, vvar)
        rbf(vm_bf, vmean)
        a(f'v_add_f32 v{vs_bf}, {EPS:#x}, v{vs_bf}')
        rbf(vs_bf, vs_bf)
        a(f'v_sqrt_f32 v{vs_bf}, v{vs_bf}')
        rbf(vs_bf, vs_bf)
        a(f'v_rcp_f32 v{vr}, v{vs_bf}')
    def ln_apply(xs, vm_bf, vs_bf, vr, ts):
        for x in xs: a(f'v_sub_f32 v{x}, v{x}, v{vm_bf}')
        for x in xs: a(f'v_cvt_pk_bf16_f32 v{x}, v{x}, v{x}')
        for x in xs: a(f'v_lshlrev_b32 v{x}, 16, v{x}')
        for x, t in zip(xs, ts): a(f'v_mul_f32 v{t}, v{x}, v{vr}')
        for x, t in zip(xs, ts): a(f'v_fma_f32 v{x}, -v{t}, v{vs_bf}, v{x}')
        for x, t in zip(xs, ts): a(f'v_fma_f32 v{x}, v{x}, v{vr}, v{t}')
        for x in xs: a(f'v_cvt_pk_bf16_f32 v{x}, v{x}, v{x}')
    def ands(pk, sel, k):
        A = vA[k & 1]
        for jj in range(4): a(f'v_and_b32_dpp v{A + jj}, v{pk}, v{vMASK + jj} {sel} {DPPF}')
    def mfma(data, k, first=False):
        A = vA[k & 1]
        c = '0' if first else f'v[{vD}:{vD+3}]'
        a(f'v_mfma_f32_16x16x32_bf16 v[{vD}:{vD+3}], v[{A}:{A+3}], v[{data}:{data+3}], {c}')
    def onehot_chain(items, pre=None):
        ands(items[0][0], items[0][1], 0)
        for k, (pk, sel, data) in enumerate(items):
            if k + 1 < len(items): ands(items[k+1][0], items[k+1][1], k + 1)
            if pre: pre(k)
            mfma(data, k, first=(k == 0))
    def tagw(regs, rnd=False):
        if rnd:
            for r in regs: a(f'v_add_u32 v{r}, 0x80, v{r}')
        for r in regs: a(f'v_and_or_b32 v{r}, v{r}, s{sMSK8}, v{vTAG}')
    def check(src, dst, n):
        t = vT[7]
        for i in range(n): a(f'v_xor_b32 v{dst+i}, s{sTAG8}, v{src+i}')
        rs = [dst + i for i in range(n)]
        a(f'v_or3_b32 v{t}, v{rs[0]}, v{rs[1]}, v{rs[2]}'); rs = rs[3:]
        while rs:
            if len(rs) >= 2: a(f'v_or3_b32 v{t}, v{t}, v{rs[0]}, v{rs[1]}'); rs = rs[2:]
            else: a(f'v_or_b32 v{t}, v{t}, v{rs[0]}'); rs = []
        a(f'v_and_b32 v{t}, 0xff, v{t}\nv_cmp_ne_u32 vcc, 0, v{t}')
    npoll = [0]
    def poll(loads, n, dst, nl, k, st, sl=0):
        L = f'L_poll{npoll[0]}'; npoll[0] += 1
        a(f's_mov_b32 s{sSPIN}, {spin}')
        for i in range(k - 1):
            loads(pS[i])
            if st: a(f's_sleep {st}')
        a(f'{L}:')
        for i in range(k):
            loads(pS[(i + k - 1) % k])
            a(f's_waitcnt vmcnt({nl * (k - 1)})')
            check(pS[i], dst, n)
            a(f's_cbranch_vccz {L}_done')
        if sl: a(f's_sleep {sl}')
        a(f's_sub_u32 s{sSPIN}, s{sSPIN}, 1\ns_cbranch_scc0 {L}\n{L}_done:')
    sPEND = 's[28:29]'
    def poll2(loads, n, dst, nl, k, th, first=True, wide=True):
        L = f'L_pp{npoll[0]}'; npoll[0] += 1
        b = pS[0]
        t = vT[7]
        widen = '\n'.join([f'v_or_b32_dpp v{t}, v{t}, v{t} {sel} {DPPF}' for sel in ['quad_perm:[1,0,3,2]', 'quad_perm:[2,3,0,1]'] + (['row_ror:8'] if wide else [])] + [f'v_cmp_ne_u32 vcc, 0, v{t}'])
        def masked():
            a(f's_mov_b64 exec, {sPEND}'); loads(b); a('s_mov_b64 exec, -1')
        a(f's_mov_b32 s{sSPIN}, {spin}')
        if first: a(f's_mov_b64 {sPEND}, -1')
        else: a(f's_branch {L}_e')
        a(f'{L}:')
        masked()
        a('s_waitcnt vmcnt(0)')
        check(b, dst, n)
        a(f'''
        s_cbranch_vccz {L}_done
        {L}_e:
        {widen}
        s_mov_b64 {sPEND}, vcc
        s_sub_u32 s{sSPIN}, s{sSPIN}, 1
        s_cbranch_scc1 {L}_done
        ''')
        if k <= 1:
            a(f's_branch {L}\n{L}_done:'); return
        a(f's_bcnt1_i32_b64 s{sOFF0}, vcc\ns_cmp_gt_u32 s{sOFF0}, {th}\ns_cbranch_scc1 {L}')
        for j in range(k - 1):
            masked()
            a(f's_sleep {gap * 2}')
        a(f'{L}_f:')
        masked()
        a(f's_waitcnt vmcnt({nl * (k - 1)})')
        check(b, dst, n)
        a(f'''
        s_cbranch_vccz {L}_done
        {widen}
        s_mov_b64 {sPEND}, vcc
        s_sub_u32 s{sSPIN}, s{sSPIN}, 1
        s_cbranch_scc0 {L}_f
        {L}_done:
        ''')
    def lds_reduce16(base, r):
        for i in range(4): a(f'ds_read_b128 v[{r + 4*i}:{r + 4*i + 3}], v{vRA} offset:{base + 256 * i}')
    def lds_reduce16b(r):
        a('s_waitcnt lgkmcnt(2)')
        for e in range(4): a(f'v_add_f32 v{r+e}, v{r+e}, v{r+4+e}')
        a('s_waitcnt lgkmcnt(0)')
        for e in range(4): a(f'v_add_f32 v{r+8+e}, v{r+8+e}, v{r+12+e}')
        for e in range(4): a(f'v_add_f32 v{r+e}, v{r+e}, v{r+8+e}')
        a(f'''
        v_permlane32_swap_b32 v{r}, v{r+2}
        v_permlane32_swap_b32 v{r+1}, v{r+3}
        v_add_f32 v{r}, v{r}, v{r+2}
        v_add_f32 v{r+1}, v{r+1}, v{r+3}
        v_permlane16_swap_b32 v{r}, v{r+1}
        v_add_f32 v{r}, v{r}, v{r+1}
        ''')
    def write_d_rr(base):
        a(f'''
        s_mov_b32 exec_lo, 0x00ff00ff
        s_mov_b32 exec_hi, 0xff00ff00
        ds_write_b128 v{vDA2}, v[{vD}:{vD+3}] offset:{base}
        s_mov_b64 exec, -1
        s_waitcnt lgkmcnt(0)
        s_barrier
        ''')
    def lds_add(off, rtn=None):
        a(f'v_mov_b32 v{vT[6]}, 1\ns_mov_b64 exec, 1')
        if rtn: a(f'ds_add_rtn_u32 v{vT[6]}, v{vZ}, v{vT[6]} offset:{off}')
        else: a(f'ds_add_u32 v{vZ}, v{vT[6]} offset:{off}')
        a('s_mov_b64 exec, -1')
    ngate = [0]
    def lds_gate(off, val):
        L = f'L_gate{ngate[0]}'; ngate[0] += 1
        a(f'''
        {L}:
        ds_read_b32 v{vT[6]}, v{vZ} offset:{off}
        s_waitcnt lgkmcnt(0)
        v_cmp_gt_u32 vcc, {val}, v{vT[6]}
        s_cbranch_vccz {L}_done
        s_sleep 2
        s_branch {L}
        {L}_done:
        ''')

    a(f'''
    s_cmp_ge_u32 s2, 256
    s_cbranch_scc1 L_end
    s_load_dwordx16 s[16:31], s[0:1], 0
    s_load_dwordx8 s[32:39], s[0:1], 64
    ''')
    if rtab:
        assert mapping == 'all'
        a(f'''
        s_getpc_b64 s[96:97]
        L_pc:
        s_add_u32 s96, s96, L_tab-L_pc
        s_addc_u32 s97, s97, 0
        s_and_b32 s{sT0}, s2, 0xfc
        s_load_dword s101, s[96:97], s{sT0}
        ''')
    if stamps: a(f's_memrealtime s[98:99]\nv_mov_b32 v{vSTAMP}, 0')
    a(f'''
    v_lshrrev_b32 v{vT[0]}, 6, v0
    v_and_b32 v{vLANE}, 63, v0
    v_readfirstlane_b32 s{sW}, v{vT[0]}
    v_lshrrev_b32 v{vG}, 4, v{vLANE}
    v_and_b32 v{vC}, 15, v{vLANE}
    v_lshlrev_b32 v{vKV}, 4, v{vLANE}
    v_mov_b32 v{vZ}, 0
    s_and_b32 s{sPAR}, s2, 1
    ''')
    if mapping == 'all':
        a(f's_lshr_b32 s{sH}, s2, 3\ns_and_b32 s{sS}, s2, 7')
    elif mapping == 'pair':
        a(f'''
        s_and_b32 s{sH}, s2, 6
        s_lshl_b32 s{sH}, s{sH}, 2
        s_lshr_b32 s{sT0}, s2, 5
        s_add_u32 s{sH}, s{sH}, s{sT0}
        s_lshr_b32 s{sS}, s2, 2
        s_and_b32 s{sS}, s{sS}, 6
        s_or_b32 s{sS}, s{sS}, s{sPAR}
        ''')
    else:
        a(f'''
        s_and_b32 s{sH}, s2, 2
        s_lshl_b32 s{sH}, s{sH}, 3
        s_lshr_b32 s{sT0}, s2, 4
        s_add_u32 s{sH}, s{sH}, s{sT0}
        s_lshr_b32 s{sS}, s2, 1
        s_and_b32 s{sS}, s{sS}, 6
        s_or_b32 s{sS}, s{sS}, s{sPAR}
        ''')
    a(f'''
    s_lshl_b32 s{sT1}, s{sH}, 8
    s_mul_i32 s{sT2}, s{sS}, {80 * 8192}
    s_add_u32 s{sT1}, s{sT1}, s{sT2}
    s_mov_b32 s42, {80 * 8192}
    s_mov_b32 s43, 0x20000
    s_mov_b32 s50, 1280
    s_mov_b32 s51, 0x20000
    s_mov_b32 s46, {WS_END}
    s_mov_b32 s47, 0x20000
    v_lshlrev_b32 v{vT[1]}, 13, v{vG}
    v_lshl_add_u32 v{vT[1]}, v{vC}, 4, v{vT[1]}
    v_lshlrev_b32 v{vT[2]}, 2, v{vLANE}
    v_lshl_add_u32 v{vT[3]}, v{vC}, 2, v{vG}
    v_lshlrev_b32 v{vT[3]}, 1, v{vT[3]}
    s_mul_i32 s{sT3}, s{sS}, 160
    s_lshr_b32 s{sIDX}, s{sS}, 1
    s_lshl_b32 s{sIDX}, s{sIDX}, 2
    s_and_b32 s{sT2}, s{sW}, 3
    s_add_u32 s{sIDX}, s{sIDX}, s{sT2}
    s_mul_i32 s{sROT}, s{sH}, {HROT}
    s_add_u32 s{sIDX}, s{sIDX}, s{sROT}
    s_lshl_b32 s{sOFF0}, s{sPAR}, 4
    s_add_u32 s{sOFF0}, s{sOFF0}, s{sIDX}
    s_lshl_b32 s{sOFF0}, s{sOFF0}, 12
    s_and_b32 s{sOFF0}, s{sOFF0}, 0x3fffff
    s_lshl_b32 s{sT0}, s{sH}, 22
    s_mul_i32 s{sCTR}, s{sH}, {CTRS}
    s_add_u32 s{sCTR}, s{sCTR}, {CTR}
    s_mov_b32 s10, 0x400000
    s_mov_b32 s11, 0x20000
    s_waitcnt lgkmcnt(0)
    s_mov_b32 s48, s16
    s_mov_b32 s49, s17
    s_add_u32 s40, s22, s{sT1}
    s_addc_u32 s41, s23, 0
    s_add_u32 s8, s18, s{sT0}
    s_addc_u32 s9, s19, 0
    s_mov_b32 s44, s38
    s_mov_b32 s45, s39
    s_load_dword s{sTAG}, s[38:39], {EPOCH}
    ''')
    if stamps: a(f'v_writelane_b32 v{vSTAMP}, s98, 0')
    vX = gat; vXS = gat + 5
    a(f'''
    s_cmp_lg_u32 s{sW}, 0
    s_cbranch_scc1 L_noq1
    s_cmp_eq_u32 s{sS}, 0
    s_cselect_b32 s{sT1}, s{sCTR}, {OOB:#x}
    s_mov_b64 exec, 1
    buffer_store_dword v{vZ}, v{vZ}, {WS_}, s{sT1} offen sc1
    s_mov_b64 exec, -1
    ''')
    for i in range(20):
        if i: a(f's_mov_b32 s{sT1}, {i * 32768}')
        vm(('wq', i), f'buffer_load_dwordx4 v[{wqs + 4*i}:{wqs + 4*i + 3}], v{vT[1]}, {WQ_}, {"0" if i == 0 else "s%d" % sT1} offen {wqflags}')
        if i == 3:
            for k in range(5): vm('x', f'buffer_load_dword v{vX + k}, v{vT[2]}, {X_}, 0 offen offset:{256 * k}')
            vm('x', f'buffer_load_ushort v{vXS}, v{vT[3]}, {X_}, s{sT3} offen')
            vm('x', f'buffer_load_ushort v{vXS + 1}, v{vT[3]}, {X_}, s{sT3} offen offset:128')
    a('L_noq1:')

    def issue_static(m, n, x, NX, track=True):
        k, i = divmod(n, U)
        so = sOFF
        if XP <= k < XP + NX: so = sEX0 + k - XP
        elif i == 0:
            if k == 0: a(f's_mov_b32 s{sOFF}, s{sOFF0}')
            else:
                a(f's_add_u32 s{sOFF}, s{sOFF}, {32 * 4096}\ns_and_b32 s{sOFF}, s{sOFF}, 0x3fffff')
                if xorb: a(f's_xor_b32 s{sOFF}, s{sOFF}, {xorb:#x}')
        r = ring + (x % S) * 4
        txt = f'buffer_load_dwordx4 v[{r}:{r+3}], v{vKV}, {K_ if m == "K" else V_}, s{so} offen offset:{i * 1024} {kvflags if m == "K" else vflags}'
        if track: vm(('r', x), txt)
        else: a(txt)
    XP = 12
    assert XP * U >= S and NO >= XP
    def lanemask(nvalid):
        nvalid = max(0, min(16, nvalid))
        m = (1 << nvalid) - 1
        return m | (m << 16)
    def common_setup():
        a(f'''
        s_add_u32 s12, s20, s{sT0}
        s_addc_u32 s13, s21, 0
        s_mov_b32 s14, 0x400000
        s_mov_b32 s15, 0x20000
        s_lshl_b32 s{sSLOT}, s{sH}, 3
        s_add_u32 s{sSLOT}, s{sSLOT}, s{sS}
        ''')
        if rtab: a(f'''
        s_and_b32 s{sGAM}, s2, 7
        s_and_b32 s{sT1}, s2, 3
        s_lshl_b32 s{sT1}, s{sT1}, 3
        s_lshr_b32 s{sFS}, s101, s{sT1}
        s_and_b32 s{sFS}, s{sFS}, 0xff
        s_mov_b32 s{sLIM}, {NCH}
        s_cmp_lt_u32 s{sFS}, 54
        s_cselect_b32 s{sROLE}, 2, 0
        s_cselect_b32 s{sLIM}, {max(0, NCH - gstop)}, s{sLIM}
        s_sub_u32 s{sCS}, s{sFS}, 64
        s_cmp_lt_u32 s{sCS}, 10
        s_cselect_b32 s{sROLE}, 1, s{sROLE}
        s_cselect_b32 s{sLIM}, {max(0, NCH - wstop)}, s{sLIM}
        ''')
        else: a(f'''
        s_and_b32 s{sGAM}, s2, 7
        s_lshr_b32 s{sT1}, s2, 3
        s_lshl_b32 s{sT2}, s{sGAM}, 2
        s_add_u32 s{sT1}, s{sT1}, s{sT2}
        s_and_b32 s{sT1}, s{sT1}, 31
        s_lshr_b32 s{sFS}, s{sT1}, 1
        s_lshl_b32 s{sFS}, s{sFS}, 3
        s_add_u32 s{sFS}, s{sFS}, s{sGAM}
        s_cmp_lt_u32 s{sFS}, 27
        s_cselect_b32 s{sROLE}, 2, 0
        s_mov_b32 s{sLIM}, {NCH}
        s_cselect_b32 s{sLIM}, {max(0, NCH - gstop)}, s{sLIM}
        s_lshl_b32 s{sFS}, s{sFS}, 1
        s_and_b32 s{sT2}, s{sT1}, 1
        s_add_u32 s{sFS}, s{sFS}, s{sT2}
        s_sub_u32 s{sCS}, s{sT1}, 8
        s_cmp_lt_u32 s{sCS}, 10
        s_cselect_b32 s{sROLE}, 1, s{sROLE}
        s_cselect_b32 s{sLIM}, {max(0, NCH - wstop)}, s{sLIM}
        ''')
        for b, p, n in ((52, 24, 4096 * 1280), (56, 28, 640 * 3456), (60, 30, 640 * 3456), (64, 32, 1728 * 1280), (68, 34, 1280)):
            a(f's_mov_b32 s{b}, s{p}\ns_mov_b32 s{b+1}, s{p+1}\ns_mov_b32 s{b+2}, {n}\ns_mov_b32 s{b+3}, 0x20000')
        a(f'''
        s_mov_b32 s16, 0xcccccccc
        s_mov_b32 s17, 0xcccccccc
        s_mov_b32 s18, 0xaaaaaaaa
        s_mov_b32 s19, 0xaaaaaaaa
        s_mov_b32 s26, {lanemask(NK):#x}
        s_mov_b32 s27, {lanemask(NK):#x}
        s_mov_b32 s{sC1}, {LOG2E:#x}
        s_mov_b32 s{sC2}, 0xffff0000
        s_mov_b32 s{sMSK8}, 0xffffff00
        v_add_u32 v{vKV2}, 4096, v{vKV}
        v_and_b32 v{vT[5]}, 1, v{vC}
        v_lshlrev_b32 v{vT[5]}, 4, v{vT[5]}
        v_mov_b32 v{vT[6]}, 0xffff
        v_lshlrev_b32 v{vT[5]}, v{vT[5]}, v{vT[6]}
        v_bfe_u32 v{vT[6]}, v{vC}, 1, 2
        ''')
        for jj in range(4):
            a(f'v_cmp_eq_u32 vcc, {jj}, v{vT[6]}\nv_cndmask_b32 v{vMASK + jj}, 0, v{vT[5]}, vcc')
        a(f'''
        v_lshlrev_b32 v{vDA}, 5, v{vC}
        v_lshl_add_u32 v{vDA}, v{vG}, 4, v{vDA}
        s_waitcnt lgkmcnt(0)
        s_add_u32 s{sTAG}, s{sTAG}, 1
        s_and_b32 s{sTAG8}, s{sTAG}, 0xff
        v_mov_b32 v{vTAG}, s{sTAG8}
        ''')
    a(f's_cmp_lt_u32 s{sW}, 4\ns_cbranch_scc1 L_q')
    if sprio: a(f's_setprio {sprio}')
    for x in range(F): issue_static('K', x, x, 0, track=False)
    a('L_q:')
    if early:
        a(f's_cmp_lg_u32 s{sW}, 1\ns_cbranch_scc1 L_noinit')
        for o in (0, 4, 8, 12, 16, 20): a(f'ds_write_b32 v{vZ}, v{vZ} offset:{L_CNT + o}')
        a('s_waitcnt lgkmcnt(0)\nL_noinit:\ns_barrier')
    common_setup()
    a(f's_cmp_lt_u32 s{sW}, 4\ns_cbranch_scc1 L_helper')
    for x in range(F, S):
        a(f's_waitcnt vmcnt({Fpat[x % len(Fpat)] - 1})')
        issue_static('K', x, x, 0, track=False)
    if early: lds_gate(L_CNT + 16, 1)
    else: a('s_barrier')
    a('s_branch L_qread\nL_helper:')
    a(f's_cmp_eq_u32 s{sW}, 0\ns_cbranch_scc1 L_q2')
    def g_rowbase(dst, k, t):
        tab = []
        for gg in range(4):
            b5, b4 = gg >> 1, gg & 1
            v = 5 * b5 + (2 * k + b4 if k < 2 else 4)
            tab.append(16 * (v >> 1) + (v & 1) + (4 * b4 if k == 2 else 0))
        packed = sum(x << (8 * i) for i, x in enumerate(tab))
        a(f'''
        s_mov_b32 s{sT2}, {packed:#x}
        v_lshlrev_b32 v{t}, 3, v{vG}
        v_bfe_u32 v{dst}, s{sT2}, v{t}, 8
        v_and_b32 v{t}, 8, v{vLANE}
        v_add_u32 v{dst}, v{dst}, v{t}
        ''')
    GSTEPS = [(k, n) for k in range(2) for n in range(4)] + [(2, 0), (2, 1)]
    def w_addr(t0, t1):
        a(f'''
        v_lshrrev_b32 v{t0}, 1, v{vG}
        v_lshlrev_b32 v{t0}, 5, v{t0}
        v_bfe_u32 v{t1}, v{vLANE}, 3, 1
        v_lshl_add_u32 v{t0}, v{t1}, 4, v{t0}
        v_and_b32 v{t1}, 1, v{vG}
        v_lshl_add_u32 v{t0}, v{t1}, 1, v{t0}
        v_mul_u32_u24 v{t0}, 1280, v{t0}
        v_and_b32 v{t1}, 7, v{vLANE}
        v_lshl_add_u32 v{t0}, v{t1}, 4, v{t0}
        ''')
    wt = ring
    def dma():
        L = 'L_dma'
        if now:
            lds_add(L_CNT + 12); return
        a(f'''
        s_cmp_eq_u32 s{sROLE}, {7 if skipg else 2}
        s_cbranch_scc1 {L}_g
        s_cmp_eq_u32 s{sROLE}, {7 if skipw else 1}
        s_cbranch_scc0 {L}_done
        ''')
        w_addr(vT[4], vT[1])
        a(f'''
        s_lshl_b32 s{sT0}, s{sGAM}, 9
        s_lshl_b32 s{sT1}, s{sW}, 6
        s_add_u32 s{sT0}, s{sT0}, s{sT1}
        s_mul_i32 s{sT0}, s{sT0}, 1280
        s_lshl_b32 s{sT1}, s{sCS}, 7
        s_add_u32 s{sT0}, s{sT0}, s{sT1}
        s_mul_i32 s{sT3}, s{sW}, {10 * 1024}
        s_add_u32 s{sT3}, s{sT3}, {L_WT}
        ''')
        assert wlate <= 8 and glate <= 10
        for cnt in range(16):
            half, n, k = 1 - cnt // 8, (cnt % 8) // 2, cnt % 2
            if cnt == 8:
                a('s_waitcnt vmcnt(0)'); lds_add(L_CNT + 12)
            if cnt == 16 - wlate: lds_gate(L_CNT, lgate)
            a(f's_add_u32 s{sT1}, s{sT0}, {(half * 256 + 4 * n + k) * 1280}')
            fh = FH if cnt < 16 - wlate else FH2
            if half:
                a(f's_add_u32 m0, s{sT3}, {(4 * k + n) * 1024}\ns_waitcnt vmcnt({fh - 1})')
                a(f'buffer_load_dwordx4 v{vT[4]}, {WO_}, s{sT1} offen {wflags} lds')
            else:
                r = wt + 4 * (4 * k + n)
                a(f's_waitcnt vmcnt({fh - 1})\nbuffer_load_dwordx4 v[{r}:{r+3}], v{vT[4]}, {WO_}, s{sT1} offen {wflags}')
        a(f's_branch {L}_done\n{L}_g:')
        if gfull: a(f's_bitcmp1_b32 s{sFS}, 0\ns_cbranch_scc1 {L}_done')
        a(f'v_and_b32 v{vT[5]}, 3, v{vLANE}')
        for k in range(3):
            g_rowbase(vT[k], k, vT[4])
            a(f'v_mul_u32_u24 v{vT[k]}, 3456, v{vT[k]}\nv_lshl_add_u32 v{vT[k]}, v{vT[5]}, 4, v{vT[k]}')
        a(f'''
        s_mul_i32 s{sT0}, s{sW}, {80 * 3456}
        s_lshl_b32 s{sT1}, s{sFS}, 6
        s_add_u32 s{sT0}, s{sT0}, s{sT1}
        s_mul_i32 s{sT3}, s{sW}, {10 * 1024}
        s_add_u32 s{sT3}, s{sT3}, {L_WT}
        ''')
        for cnt in range(20):
            half, i = 1 - cnt // 10, cnt % 10
            k, n = GSTEPS[i]
            if cnt == 10:
                a('s_waitcnt vmcnt(0)'); lds_add(L_CNT + 12)
            if cnt == 20 - glate:
                a('s_mov_b64 exec, -1')
                lds_gate(L_CNT, lgate)
            fh = FH if cnt < 20 - glate else FH2
            a(f's_add_u32 s{sT1}, s{sT0}, {(320 * half + 2 * n) * 3456}')
            if half: a(f's_add_u32 m0, s{sT3}, {i * 1024}')
            r = wt + 4 * i
            for msk, srd in (('0x0f0f0f0f', WG_), ('0xf0f0f0f0', WU_)):
                a(f's_mov_b32 exec_lo, {msk}\ns_mov_b32 exec_hi, {msk}\ns_waitcnt vmcnt({fh - 1})')
                if half: a(f'buffer_load_dwordx4 v{vT[k]}, {srd}, s{sT1} offen {gflags} lds')
                else: a(f'buffer_load_dwordx4 v[{r}:{r+3}], v{vT[k]}, {srd}, s{sT1} offen {gflags}')
        a(f's_mov_b64 exec, -1\n{L}_done:')
    if not early: a('s_barrier')
    a('s_branch L_hdma\nL_q2:')
    if not early: a(f'ds_write_b32 v{vZ}, v{vZ} offset:{L_CNT}\nds_write_b32 v{vZ}, v{vZ} offset:{L_CNT+4}\nds_write_b32 v{vZ}, v{vZ} offset:{L_CNT+8}\nds_write_b32 v{vZ}, v{vZ} offset:{L_CNT+12}\nds_write_b32 v{vZ}, v{vZ} offset:{L_CNT+20}')
    wait('x')
    xs = vACC
    for i in range(5):
        a(f'v_lshlrev_b32 v{xs + 2*i}, 16, v{vX + i}\nv_and_b32 v{xs + 2*i + 1}, s{sC2}, v{vX + i}')
    sm = vT[0]
    a(f'v_add_f32 v{sm}, v{xs}, v{xs+1}')
    for i in range(2, 10): a(f'v_add_f32 v{sm}, v{sm}, v{xs + i}')
    allreduce(sm, 'v_add_f32', vT[2])
    a(f'v_mul_f32 v{sm}, {INV640:#x}, v{sm}')
    vv = vT[3]
    for i in range(10): a(f'v_sub_f32 v{xs + i}, v{xs + i}, v{sm}')
    a(f'v_mul_f32 v{vv}, v{xs}, v{xs}')
    for i in range(1, 10): a(f'v_fmac_f32 v{vv}, v{xs + i}, v{xs + i}')
    allreduce(vv, 'v_add_f32', vT[2])
    a(f'v_mul_f32 v{vv}, {INV640:#x}, v{vv}')
    ln_consts(sm, vv, vT[4], vT[5], vT[6])
    for i in range(2): a(f'v_lshlrev_b32 v{vXS + i}, 16, v{vXS + i}')
    ln_apply([vXS, vXS + 1], vT[4], vT[5], vT[6], [vT[1], vT[2]])
    stamp('ln')
    onehot_chain([(vXS + i // 16, f'row_newbcast:{i % 16}', wqs + 4 * i) for i in range(20)],
                 pre=lambda k: wait(('wq', k + 1)) if k % 2 == 0 else None)
    g = gat
    a(f's_lshl_b32 s{sT0}, s{sSLOT}, 9\ns_add_u32 s{sT0}, s{sT0}, {QS:#x}')
    tagw([vD + i for i in range(4)], rnd=True)
    a(f'''
    s_mov_b32 exec_hi, 0
    buffer_store_dwordx4 v[{vD}:{vD+3}], v{vDA}, {WS_}, s{sT0} offen sc1
    s_mov_b64 exec, -1
    ''')
    stamp('qpub')
    a(f'''
    s_lshl_b32 s{sT0}, s{sH}, 12
    s_add_u32 s{sT0}, s{sT0}, {QS:#x}
    s_mov_b32 s{sSPIN}, {spin}
    L_qpoll:
    ''')
    for i in range(4):
        a(f'buffer_load_dwordx4 v[{pA+4*i}:{pA+4*i+3}], v{vKV}, {WS_}, s{sT0} offen offset:{i * 1024} sc1')
    a('s_waitcnt vmcnt(0)')
    check(pA, g, 16)
    a(f'''
    s_cbranch_vccz L_qpoll_done
    s_sleep {qsleep}
    s_sub_u32 s{sSPIN}, s{sSPIN}, 1
    s_cbranch_scc0 L_qpoll
    L_qpoll_done:
    ''')
    stamp('qgot')
    for e in range(4): a(f'v_add_f32 v{g+e}, v{g+e}, v{g+4+e}\nv_add_f32 v{g+8+e}, v{g+8+e}, v{g+12+e}')
    for e in range(4): a(f'v_add_f32 v{g+e}, v{g+e}, v{g+8+e}')
    a(f'''
    v_and_b32 v{vT[0]}, 31, v{vLANE}
    v_lshrrev_b32 v{vT[1]}, 5, v{vLANE}
    v_permlane32_swap_b32 v{g}, v{g+2}
    v_permlane32_swap_b32 v{g+1}, v{g+3}
    v_lshl_add_u32 v{vT[0]}, v{vT[0]}, 1, v{vT[1]}
    v_add_f32 v{g}, v{g}, v{g+2}
    v_add_f32 v{g+1}, v{g+1}, v{g+3}
    v_lshlrev_b32 v{vT[0]}, 2, v{vT[0]}
    v_cvt_pk_bf16_f32 v{g}, v{g}, v{g+1}
    ds_write_b32 v{vT[0]}, v{g} offset:{L_Q}
    ''')
    if early: lds_add(L_CNT + 16)
    else: a('s_waitcnt lgkmcnt(0)\ns_barrier')
    a('L_hdma:')
    if ptest == 'ws':
        for b in (52, 56, 60): a(f's_add_u32 s{b}, s38, {0x1000000 * (b - 48):#x}\ns_addc_u32 s{b+1}, s39, 0')
    if (pre and not now) or ptest:
        a(f'''
        s_lshl_b32 s{sT0}, s2, 2
        s_add_u32 s{sT0}, s{sT0}, s{sW}
        s_lshl_b32 s{sT0}, s{sT0}, 10
        ''')
        j = 0
        for srd, n in ((WG_, 3), (WU_, 3), (WO_, 5)) + (((WD_, 3),) if pred else ()):
            for i in range(n):
                a(f's_add_u32 s{sT1}, s{sT0}, {i << 20}\ns_waitcnt vmcnt({FP - 1})')
                a(f'buffer_load_dwordx4 v[{gat + 4 * (j % 4)}:{gat + 4 * (j % 4) + 3}], v{vKV}, {srd}, s{sT1} offen {pflags}')
                j += 1
        stamp('pre')
        a(f's_cmp_eq_u32 s{sROLE}, 0\ns_cbranch_scc1 L_fin')
        if kgate: lds_gate(L_CNT + 20, 1)
    dma()
    stamp('dma')
    a('s_branch L_pub_done\nL_qread:')
    a(f'''
    v_lshlrev_b32 v{vT[0]}, 4, v{vC}
    ds_read_b128 v[{vQ}:{vQ+3}], v{vT[0]} offset:{L_Q}
    s_and_b32 s{sT0}, s{sW}, 3
    s_lshl_b32 s{sT0}, s{sT0}, 9
    v_add_u32 v{vDA}, s{sT0}, v{vDA}
    s_waitcnt lgkmcnt(0)
    ''')
    stamp('q')

    def reduce_tile(s, n, valid):
        A = [vACC + i if i < n else None for i in range(16)]
        B = []
        for jj in range(8):
            x, y = A[jj], A[jj + 8]
            if x is None: B.append(None); continue
            if y is None: a(f'v_add_f32_dpp v{x}, v{x}, v{x} row_ror:8 {DPPF}')
            else: a(f'v_add_f32_dpp v{x}, v{x}, v{x} row_ror:8 row_mask:0xf bank_mask:0x3')
            B.append(x)
        for jj in range(8):
            x, y = A[jj], A[jj + 8]
            if x is not None and y is not None:
                a(f'v_add_f32_dpp v{x}, v{y}, v{y} row_ror:8 row_mask:0xf bank_mask:0xc')
        C = []
        for jj in range(4):
            x = B[jj]
            d = vACC + 8 + jj
            a(f'v_add_f32_dpp v{d}, v{x}, v{x} row_shl:4 row_mask:0xf bank_mask:0x5')
            C.append(d)
        for jj in range(4):
            x, y = B[jj], B[jj + 4]
            z = y if y is not None else x
            a(f'v_add_f32_dpp v{C[jj]}, v{z}, v{z} row_shr:4 row_mask:0xf bank_mask:0xa')
        for jj in range(4): a(f'v_add_f32_dpp v{C[jj]}, v{C[jj]}, v{C[jj]} quad_perm:[2,3,0,1] {DPPF}')
        a(f'v_cndmask_b32 v{C[0]}, v{C[0]}, v{C[2]}, {sM1}\nv_cndmask_b32 v{C[1]}, v{C[1]}, v{C[3]}, {sM1}')
        for jj in range(2): a(f'v_add_f32_dpp v{C[jj]}, v{C[jj]}, v{C[jj]} quad_perm:[1,0,3,2] {DPPF}')
        a(f'v_cndmask_b32 v{s}, v{C[0]}, v{C[1]}, {sM0}')
        rbf(s, s)
        a(f'v_mul_f32 v{s}, {SCALE:#x}, v{s}')
        rbf(s, s)
        if valid:
            a(f'v_mov_b32 v{C[0]}, {NEGINF:#x}\nv_cndmask_b32 v{s}, v{C[0]}, v{s}, {valid}')
    def dots(r0, r1, a0):
        for jj in range(4):
            a(f'v_dot2_f32_bf16 v{a0}, v{r0 + jj}, v{vQ + jj}, {"0" if jj == 0 else "v%d" % a0}')
            a(f'v_dot2_f32_bf16 v{a0+1}, v{r1 + jj}, v{vQ + jj}, {"0" if jj == 0 else "v%d" % (a0+1)}')
    def claim():
        a(f'v_mov_b32 v{vTK}, 1\ns_mov_b64 exec, 1')
        vm('A', f'buffer_atomic_add v{vTK}, v{vZ}, {WS_}, s{sAOFF} offen sc0 sc1')
        a('s_mov_b64 exec, -1')
    def ticket():
        a(f'''
        v_readfirstlane_b32 s{sT0}, v{vTK}
        s_cmp_eq_u32 s{sAOFF}, s{sCTR}
        s_cselect_b32 s{sT0}, s{sT0}, {NCH}
        s_cmp_lt_u32 s{sT0}, s{sLIM}
        s_cselect_b32 s{sAOFF}, s{sCTR}, {OOB:#x}
        s_lshl_b32 s{sNXT}, s{sT0}, {CU - 1}
        s_add_u32 s{sNXT}, s{sNXT}, s{sROT}
        s_add_u32 s{sNXT}, s{sNXT}, {OP}
        s_lshl_b32 s{sNXT}, s{sNXT}, 12
        s_and_b32 s{sNXT}, s{sNXT}, 0x3fffff
        s_cmp_lt_u32 s{sT0}, {NCH}
        s_cselect_b32 s{sNXT}, s{sNXT}, {OOB:#x}
        ''')
    def write_ml():
        a(f'''
        s_and_b32 s{sT0}, s{sW}, 3
        s_lshl_b32 s{sT0}, s{sT0}, 2
        v_mov_b32 v{vT[3]}, s{sT0}
        ds_write_b32 v{vT[3]}, v{vM} offset:{L_M}
        ds_write_b32 v{vT[3]}, v{vL} offset:{L_L}
        ''')

    nml = [0]
    def ml_final(always_store=False):
        L = f'L_ml{nml[0]}'; nml[0] += 1
        mq = gat
        a(f'''
        v_mov_b32 v{vT[6]}, 1
        s_mov_b64 exec, 1
        ds_add_rtn_u32 v{vT[6]}, v{vZ}, v{vT[6]} offset:{L_CNT + 8}
        s_mov_b64 exec, -1
        v_and_b32 v{vT[5]}, 3, v{vLANE}
        v_lshlrev_b32 v{vT[5]}, 2, v{vT[5]}
        s_mov_b32 s{sT1}, {OOB:#x}
        s_waitcnt lgkmcnt(0)
        v_readfirstlane_b32 s{sT0}, v{vT[6]}
        s_cmp_lg_u32 s{sT0}, 3
        s_cbranch_scc1 {L}
        ds_read_b32 v{vT[4]}, v{vT[5]} offset:{L_M}
        ds_read_b32 v{mq+1}, v{vT[5]} offset:{L_L}
        v_mov_b32 v{mq+2}, v{vTAG}
        v_mov_b32 v{mq+3}, v{vTAG}
        s_lshl_b32 s{sT1}, s{sSLOT}, 10
        s_add_u32 s{sT1}, s{sT1}, {P1 + 512:#x}
        s_waitcnt lgkmcnt(0)
        v_max_f32_dpp v{mq}, v{vT[4]}, v{vT[4]} quad_perm:[1,0,3,2] {DPPF}
        v_max_f32_dpp v{mq}, v{mq}, v{mq} quad_perm:[2,3,0,1] {DPPF}
        v_sub_f32 v{vT[4]}, v{vT[4]}, v{mq}
        v_mul_f32 v{vT[4]}, s{sC1}, v{vT[4]}
        v_exp_f32 v{vT[4]}, v{vT[4]}
        v_mul_f32 v{mq+1}, v{mq+1}, v{vT[4]}
        ds_write_b32 v{vT[5]}, v{vT[4]} offset:{L_F}
        v_add_f32_dpp v{mq+1}, v{mq+1}, v{mq+1} quad_perm:[1,0,3,2] {DPPF}
        v_add_f32_dpp v{mq+1}, v{mq+1}, v{mq+1} quad_perm:[2,3,0,1] {DPPF}
        ''')
        tagw([mq, mq + 1])
        st = f'buffer_store_dwordx4 v[{mq}:{mq+3}], v{vZ}, {WS_}, s{sT1} offen sc1'
        if always_store:
            a(f'{L}:\ns_mov_b64 exec, 1'); vm('mls', st); a('s_mov_b64 exec, -1')
        else:
            a(f's_mov_b64 exec, 1\n{st}\ns_mov_b64 exec, -1\n{L}:')
    def stream():
        dyn = NCH > 0
        NL = NE * U
        NT = (NL + 15) // 16
        N = 2 * NL
        assert NE - NO <= 2
        for e in range(NE - NO):
            a(f'''
            s_add_u32 s{sEX0 + e}, s{sIDX}, {NO * 32 + e * 16}
            s_lshl_b32 s{sEX0 + e}, s{sEX0 + e}, 12
            s_and_b32 s{sEX0 + e}, s{sEX0 + e}, 0x3fffff
            s_cmp_eq_u32 s{sPAR}, 0
            s_cselect_b32 s{sEX0 + e}, s{sEX0 + e}, {OOB:#x}
            ''')
        sVAL = {}
        free = [sVa, sVb]
        for t in range(NT):
            me = sum(1 << c for c in range(16) if 16 * t + c < NL)
            mo = sum(1 << c for c in range(16) if 16 * t + c < NL and not (4 * XP <= 16 * t + c < 4 * XP + 4 * (NE - NO)))
            if me == 0xffff and mo == 0xffff: continue
            sp = free.pop(0); lo = int(sp[2:].split(':')[0])
            sVAL[t] = sp
            a(f's_mov_b32 s{lo}, {me * 0x10001:#x}\ns_mov_b32 s{lo+1}, {mo * 0x10001:#x}\ns_cmp_eq_u32 s{sPAR}, 0\ns_cselect_b32 s{lo}, s{lo}, s{lo+1}\ns_mov_b32 s{lo+1}, s{lo}')
        q.clear()
        for x in range(S): q.append(('r', x))
        done = [S - F]
        def wait_n(n):
            if len(q) - done[0] > n:
                a(f's_waitcnt vmcnt({n})'); done[0] = len(q) - n
        def wait_t(tag):
            idx = max(i for i, t in enumerate(q) if t == tag)
            wait_n(len(q) - 1 - idx)
        assert 4 * NK <= S
        dKb = [[ring + ((N + 2 * NK * b + i) % S) * 4 for i in range(NK)] for b in range(2)]
        dVb = [[ring + ((N + 2 * NK * b + NK + i) % S) * 4 for i in range(NK)] for b in range(2)]
        def dload(m, i, b=0):
            r = (dKb if m == 'K' else dVb)[b][i]
            vm(('d' + m, i), f'buffer_load_dwordx4 v[{r}:{r+3}], v{vKV if i < 4 else vKV2}, {K_ if m == "K" else V_}, s{sNXT} offen offset:{(i % 4) * 1024} {kvflags if m == "K" else vflags}')
        NTOT = N + (2 * NK if dyn else 0)
        if dyn: a(f's_mov_b32 s{sAOFF}, s{sCTR}')
        st = dict(i=S)
        def issue_next(paced=True):
            x = st['i']
            if paced: wait_n(Fpat[x % len(Fpat)] - 1)
            if x < N:
                issue_static('K' if x < NL else 'V', x % NL, x, NE - NO)
                if dyn and x == N - F - 2: claim()
                if not dyn and x == N - 1: lds_add(L_CNT)
            else:
                if x == N:
                    wait_t('A')
                    ticket()
                    a(f's_cbranch_scc1 L_t0ok')
                    lds_add(L_CNT)
                    ml_final()
                    a('L_t0ok:')
                i = x - N
                dload('K' if i < NK else 'V', i % NK)
                if i == NK - 1: claim()
            st['i'] += 1
        def softmax():
            a(f'v_max_f32 v{vM}, v{vSC[0]}, v{vSC[1]}')
            for t in range(2, NT): a(f'v_max_f32 v{vM}, v{vM}, v{vSC[t]}')
            allreduce(vM, 'v_max_f32', vT[1])
            for t in range(NT): a(f'v_sub_f32 v{vSC[t]}, v{vSC[t]}, v{vM}')
            for t in range(NT): a(f'v_mul_f32 v{vSC[t]}, s{sC1}, v{vSC[t]}')
            for t in range(NT): a(f'v_exp_f32 v{vSC[t]}, v{vSC[t]}')
            for t in range(NT): a(f'v_cvt_pk_bf16_f32 v{vSC[t]}, v{vSC[t]}, v{vSC[t]}')
            issue_next()
            a(f'v_lshlrev_b32 v{vL}, 16, v{vSC[0]}')
            for t in range(1, NT): a(f'v_lshlrev_b32 v{vT[3]}, 16, v{vSC[t]}\nv_add_f32 v{vL}, v{vL}, v{vT[3]}')
            allreduce(vL, 'v_add_f32', vT[1])
            write_ml()
            if not dyn: ml_final()
            stamp('k')
            ands(vSC[0], 'row_newbcast:0', 0)
        c = 0
        while c < N:
            if st['i'] < NTOT and st['i'] - c < S: issue_next()
            budget = 4
            while c < N and budget > 0:
                step = 2 if c < NL else 1
                if st['i'] < NTOT and st['i'] - c < F + step: break
                if c < NL:
                    wait_t(('r', c + 1))
                    dots(ring + (c % S) * 4, ring + ((c + 1) % S) * 4, vACC + c % 16)
                    if (c + 2) % 16 == 0 or c + 2 == NL:
                        if st['i'] - (c + 2) < S and boost: issue_next(paced=False)
                        t = c // 16
                        reduce_tile(vSC[t], c + 2 - 16 * t, sVAL.get(t))
                        if t == 3: lds_add(L_CNT + 20)
                        budget = 0
                    if c + 2 == NL:
                        issue_next()
                        softmax()
                else:
                    n = c - NL
                    if n + 1 < NL: ands(vSC[(n+1) // 16], f'row_newbcast:{(n+1) % 16}', n + 1)
                    wait_t(('r', c))
                    mfma(ring + (c % S) * 4, n, first=(n == 0))
                c += step; budget -= step
        if not dyn: return
        while st['i'] < NTOT: issue_next(paced=False)
        stamp('s')
        a(f's_cmp_eq_u32 s{sNXT}, {OOB:#x}\ns_cbranch_scc0 L_dyn0\ns_waitcnt vmcnt(0)\ns_branch L_dyn_done')
        def body(mode, b):
            more = mode != 'last'
            dK, dV = dKb[b], dVb[b]
            q.clear()
            for i in range(NK): q.append(('dV', i))
            if more:
                for i in range(NK): dload('K', i, 1 - b)
                claim()
            if mode == 'eager':
                for i in range(NK): dload('V', i, 1 - b)
            for i in range(0, NK, 2):
                dots(dK[i], dK[i+1], vACC + i)
            s = vSC[0]
            reduce_tile(s, NK, sLO8)
            mn = vT[0]
            a(f'v_max_f32 v{mn}, v{s}, v{vM}')
            allreduce(mn, 'v_max_f32', vT[1])
            a(f'''
            v_sub_f32 v{s}, v{s}, v{mn}
            v_sub_f32 v{vT[2]}, v{vM}, v{mn}
            v_mul_f32 v{s}, s{sC1}, v{s}
            v_mul_f32 v{vT[2]}, s{sC1}, v{vT[2]}
            v_exp_f32 v{s}, v{s}
            v_exp_f32 v{vT[2]}, v{vT[2]}
            v_mov_b32 v{vM}, v{mn}
            v_cvt_pk_bf16_f32 v{s}, v{s}, v{s}
            ''')
            for e in range(4): a(f'v_mul_f32 v{vD+e}, v{vD+e}, v{vT[2]}')
            def lsum():
                a(f'v_lshlrev_b32 v{vT[3]}, 16, v{s}')
                allreduce(vT[3], 'v_add_f32', vT[1])
                a(f'v_fma_f32 v{vL}, v{vL}, v{vT[2]}, v{vT[3]}')
            if not more:
                lsum()
                write_ml()
                ml_final(always_store=True)
            ands(s, 'row_newbcast:0', 0)
            for i in range(NK):
                if i + 1 < NK: ands(s, f'row_newbcast:{i+1}', i + 1)
                a(f's_waitcnt vmcnt({len(q) - 1 - i})')
                if mode == 'norm': dload('V', i, 1 - b)
                mfma(dV[i], i)
            if more: lsum()
        for b in range(2):
            a(f'L_dyn{b}:\ns_waitcnt vmcnt({NK})')
            ticket()
            a(f's_cbranch_scc0 L_dyn_last{b}')
            if eager:
                a(f's_cmp_ge_u32 s{sT0}, {max(0, NCH - eager)}\ns_cbranch_scc1 L_dyn_eager{b}')
            body('norm', b)
            if b == 1: a('s_branch L_dyn0')
        for b in range(2):
            if eager:
                a(f'L_dyn_eager{b}:')
                body('eager', b)
                a(f's_branch L_dyn{1 - b}')
        for b in range(2):
            a(f'L_dyn_last{b}:')
            lds_add(L_CNT)
            body('last', b)
            if b == 0: a('s_branch L_dyn_done')
        a('L_dyn_done:')
    stream()
    a('L_sdone:')
    a(f'''
    v_lshrrev_b32 v{vT[0]}, 5, v{vLANE}          ; half
    v_and_b32 v{vT[1]}, 31, v{vLANE}
    v_lshlrev_b32 v{vT[2]}, 3, v{vT[0]}
    v_lshlrev_b32 v{vT[3]}, 10, v{vT[0]}
    v_lshl_add_u32 v{vT[3]}, v{vT[1]}, 4, v{vT[3]}
    v_mov_b32 v{vT[6]}, 1
    s_mov_b32 exec_hi, 0
    ds_write_b128 v{vDA}, v[{vD}:{vD+3}] offset:{L_OP}
    s_mov_b64 exec, 1
    ds_add_rtn_u32 v{vT[6]}, v{vZ}, v{vT[6]} offset:{L_CNT + 4}
    s_mov_b64 exec, -1
    v_lshlrev_b32 v{vT[4]}, 4, v{vT[1]}
    v_lshl_add_u32 v{vT[4]}, v{vT[0]}, 3, v{vT[4]}
    s_lshl_b32 s{sT1}, s{sSLOT}, 10
    s_add_u32 s{sT1}, s{sT1}, {P1:#x}
    s_waitcnt lgkmcnt(0)
    v_readfirstlane_b32 s{sT0}, v{vT[6]}
    ''')
    stamp('v')
    t = vACC
    mm = vA[0]
    a(f'''
    s_cmp_lg_u32 s{sT0}, 3
    s_cbranch_scc1 L_pub_done
    s_setprio 3
    ds_read_b64 v[{mm}:{mm+1}], v{vT[2]} offset:{L_F}
    ''')
    for i in range(2): a(f'ds_read_b128 v[{g + 4*i}:{g + 4*i + 3}], v{vT[3]} offset:{L_OP + 512 * i}')
    a(f'v_mov_b32 v{vT[6]}, 1\ns_waitcnt lgkmcnt(1)')
    for e in range(4): a(f'v_mul_f32 v{t+e}, v{mm}, v{g + e}')
    a('s_waitcnt lgkmcnt(0)')
    for e in range(4): a(f'v_fmac_f32 v{t+e}, v{mm+1}, v{g + 4 + e}')
    a(f'''
    v_permlane32_swap_b32 v{t}, v{t+2}
    v_permlane32_swap_b32 v{t+1}, v{t+3}
    v_add_f32 v{t}, v{t}, v{t+2}
    v_add_f32 v{t+1}, v{t+1}, v{t+3}
    ''')
    tagw([t, t + 1])
    a(f'''
    buffer_store_dwordx2 v[{t}:{t+1}], v{vT[4]}, {WS_}, s{sT1} offen sc1
    s_mov_b64 exec, 1
    ds_add_u32 v{vZ}, v{vT[6]} offset:{L_CNT + 4}
    s_mov_b64 exec, -1
    s_setprio 0
    ''')
    if 'pub' in slist:
        a(f'''
        s_memrealtime s[96:97]
        s_add_u32 s24, s38, 0x10000000
        s_addc_u32 s25, s39, 0
        s_lshl_b32 s{sT2}, s2, 6
        s_add_u32 s{sT2}, s{sT2}, {4 * 15}
        v_mov_b32 v{vT[5]}, s{sT2}
        s_waitcnt lgkmcnt(0)
        v_mov_b32 v{vT[6]}, s96
        s_mov_b64 exec, 1
        global_store_dword v{vT[5]}, v{vT[6]}, s[24:25]
        s_mov_b64 exec, -1
        ''')
    a('L_pub_done:')
    if notail: a('s_branch L_fin')
    a(f's_cmp_eq_u32 s{sROLE}, 0\ns_cbranch_scc1 L_fin')
    vDA2 = vDA; vRA = vM
    wt = ring
    a(f'''
    v_bfe_u32 v{vT[0]}, v{vLANE}, 3, 1               ; rr
    v_and_b32 v{vT[1]}, 7, v{vLANE}                  ; cc
    v_and_b32 v{vT[2]}, 1, v{vG}                     ; b4
    v_lshrrev_b32 v{vT[3]}, 1, v{vG}                 ; b5
    s_lshl_b32 s{sT3}, s{sW}, 9
    v_lshlrev_b32 v{vDA2}, 8, v{vT[0]}
    v_lshl_add_u32 v{vDA2}, v{vT[1]}, 5, v{vDA2}
    v_lshl_add_u32 v{vDA2}, v{vT[2]}, 4, v{vDA2}
    v_add_u32 v{vDA2}, s{sT3}, v{vDA2}
    v_lshlrev_b32 v{vRA}, 10, v{vG}
    v_lshl_add_u32 v{vRA}, v{vC}, 4, v{vRA}
    s_cmp_eq_u32 s{sROLE}, 2
    s_cbranch_scc1 L_g
    ''')
    nf = [0]
    def fetch(n):
        L = f'L_fetch{nf[0]}'; nf[0] += 1
        a(f's_cmp_lt_u32 s{sW}, 4\ns_cbranch_scc1 {L}')
        lds_gate(L_CNT + 12, 4)
        a(f's_sub_u32 s{sT3}, s{sW}, 4\ns_mul_i32 s{sT3}, s{sT3}, {10 * 1024}\nv_add_u32 v{vL}, s{sT3}, v{vKV}')
        for i in range(n): a(f'ds_read_b128 v[{wt + 4*i}:{wt + 4*i + 3}], v{vL} offset:{L_WT + 1024 * i}')
        a(f'{L}:')
    fetch(8)
    a(f'''
    v_bfe_u32 v{vT[4]}, v{vLANE}, 2, 1
    v_lshl_add_u32 v{vT[4]}, v{vG}, 1, v{vT[4]}      ; s
    v_lshlrev_b32 v{vT[4]}, 10, v{vT[4]}
    v_and_b32 v{vT[5]}, 3, v{vLANE}
    v_lshl_add_u32 v{vT[5]}, v{vT[0]}, 2, v{vT[5]}   ; chunk
    v_lshl_add_u32 v{vT[5]}, v{vT[5]}, 4, v{vT[4]}
    s_lshl_b32 s{sT0}, s{sGAM}, 2
    s_lshr_b32 s{sT1}, s{sW}, 1
    s_add_u32 s{sT0}, s{sT0}, s{sT1}
    s_lshl_b32 s{sT0}, s{sT0}, 13
    s_add_u32 s{sT0}, s{sT0}, {P1:#x}
    s_and_b32 s{sT1}, s{sW}, 1
    s_lshl_b32 s{sT1}, s{sT1}, 8
    s_add_u32 s{sT1}, s{sT1}, s{sT0}
    ''')
    if p2nat:
        a(f'''
        s_mul_i32 s{sT2}, s{sGAM}, 2560
        s_lshl_b32 s{sT3}, s{sCS}, 8
        s_add_u32 s{sT2}, s{sT2}, s{sT3}
        s_add_u32 s{sT2}, s{sT2}, {P2:#x}
        v_lshl_add_u32 v{vT[0]}, v{vC}, 2, v{vG}
        v_lshlrev_b32 v{vT[0]}, 2, v{vT[0]}
        ''')
    else:
        a(f'''
        s_lshl_b32 s{sT2}, s{sCS}, 11
        s_lshl_b32 s{sT3}, s{sGAM}, 6
        s_add_u32 s{sT2}, s{sT2}, s{sT3}
        s_add_u32 s{sT2}, s{sT2}, {P2:#x}
        v_and_b32 v{vT[0]}, 3, v{vC}
        v_lshl_add_u32 v{vT[0]}, v{vT[0]}, 2, v{vG}
        v_lshlrev_b32 v{vT[0]}, 2, v{vT[0]}
        v_lshrrev_b32 v{vT[1]}, 2, v{vC}
        v_lshl_add_u32 v{vT[0]}, v{vT[1]}, 9, v{vT[0]}
        ''')
    lds_gate(L_CNT + 8, 4)
    def ld1(b):
        a(f'buffer_load_dwordx4 v[{b}:{b+3}], v{vT[5]}, {WS_}, s{sT1} offen sc1')
        a(f'buffer_load_dwordx4 v[{b+4}:{b+7}], v{vT[5]}, {WS_}, s{sT1} offen offset:128 sc1')
    def ld1m(b):
        a(f'buffer_load_dwordx4 v[{b+8}:{b+11}], v{vT[4]}, {WS_}, s{sT0} offen offset:512 sc1')
        ld1(b)
    poll2(ld1m, 12, g, 3, fast[0], thr[0])
    stamp('ml')
    mS, lS = g + 8, g + 9
    M = vT[2]; tt = vT[3]
    a(f'''
    v_max_f32_dpp v{M}, v{mS}, v{mS} row_half_mirror {DPPF}
    v_mov_b32 v{tt}, v{M}
    v_permlane16_swap_b32 v{M}, v{tt}
    v_max_f32 v{M}, v{M}, v{tt}
    v_mov_b32 v{tt}, v{M}
    v_permlane32_swap_b32 v{M}, v{tt}
    v_max_f32 v{M}, v{M}, v{tt}
    v_sub_f32 v{mS}, v{mS}, v{M}
    v_mul_f32 v{mS}, s{sC1}, v{mS}
    v_exp_f32 v{mS}, v{mS}
    v_mul_f32 v{lS}, v{lS}, v{mS}
    v_add_f32_dpp v{lS}, v{lS}, v{lS} row_half_mirror {DPPF}
    v_mov_b32 v{tt}, v{lS}
    v_permlane16_swap_b32 v{lS}, v{tt}
    v_add_f32 v{lS}, v{lS}, v{tt}
    v_mov_b32 v{tt}, v{lS}
    v_permlane32_swap_b32 v{lS}, v{tt}
    v_add_f32 v{lS}, v{lS}, v{tt}
    v_rcp_f32 v{tt}, v{lS}
    v_mul_f32 v{mS}, v{mS}, v{tt}
    ''')
    stamp('h1')
    for i in range(8): a(f'v_mul_f32 v{g+i}, v{g+i}, v{mS}')
    for e in range(4): a(f'v_permlane32_swap_b32 v{g+e}, v{g+4+e}')
    for e in range(4): a(f'v_add_f32 v{g+e}, v{g+e}, v{g+4+e}')
    a(f'''
    v_permlane16_swap_b32 v{g}, v{g+2}
    v_permlane16_swap_b32 v{g+1}, v{g+3}
    v_add_f32 v{g}, v{g}, v{g+2}
    v_add_f32 v{g+1}, v{g+1}, v{g+3}
    v_add_f32_dpp v{g+2}, v{g}, v{g} row_shl:4 row_mask:0xf bank_mask:0x5
    v_add_f32_dpp v{g+3}, v{g+1}, v{g+1} row_shl:4 row_mask:0xf bank_mask:0x5
    v_add_f32_dpp v{g+2}, v{g}, v{g} row_shr:4 row_mask:0xf bank_mask:0xa
    v_add_f32_dpp v{g+3}, v{g+1}, v{g+1} row_shr:4 row_mask:0xf bank_mask:0xa
    v_cvt_pk_bf16_f32 v{g+2}, v{g+2}, v{g+2}
    v_cvt_pk_bf16_f32 v{g+3}, v{g+3}, v{g+3}
    ''')
    onehot_chain([(g + 2 + i // 4, f'quad_perm:[{i%4},{i%4},{i%4},{i%4}]', wt + 4 * i) for i in range(8)])
    write_d_rr(L_ZP)
    a(f's_cmp_lg_u32 s{sW}, 0\ns_cbranch_scc1 L_fin')
    lds_reduce16(L_ZP, g)
    lds_reduce16b(g)
    tagw([g])
    a(f'buffer_store_dword v{g}, v{vT[0]}, {WS_}, s{sT2} offen sc1')
    stamp('w')
    a('s_branch L_fin')
    wD = ring + 40
    vHA = [vQ, vQ + 1, vQ + 2]; vPA = vQ + 3; vXv = [vSC[0], vSC[1], vSC[2]]; vCS = vSC[3]; vWA = vSC[4]
    a('L_g:')
    a(f's_mul_i32 s{sT3}, s{sW}, 80\nv_and_b32 v{vT[5]}, 3, v{vLANE}')
    for k in range(3):
        g_rowbase(vHA[k], k, vT[4])
        if k < 2: a(f'v_lshl_add_u32 v{vHA[k]}, v{vT[5]}, 1, v{vHA[k]}')
        else:
            a(f'''
            v_lshl_add_u32 v{vHA[k]}, v{vT[5]}, 1, v{vHA[k]}
            v_lshrrev_b32 v{vT[4]}, 1, v{vT[5]}
            v_and_b32 v{vT[4]}, v{vT[4]}, v{vT[2]}
            v_lshlrev_b32 v{vT[4]}, 3, v{vT[4]}
            v_sub_u32 v{vHA[k]}, v{vHA[k]}, v{vT[4]}
            ''')
        a(f'v_add_u32 v{vHA[k]}, s{sT3}, v{vHA[k]}\nv_lshlrev_b32 v{vHA[k]}, 1, v{vHA[k]}')
        a(f'buffer_load_ushort v{vXv[k]}, v{vHA[k]}, {X_}, 0 offen')
        a(f'v_lshlrev_b32 v{vHA[k]}, 1, v{vHA[k]}')
    a(f'''
    v_mul_u32_u24 v{vWA}, 1280, v{vG}
    v_lshl_add_u32 v{vWA}, v{vC}, 4, v{vWA}
    v_bfe_u32 v{vPA}, v{vLANE}, 2, 1
    v_lshl_add_u32 v{vPA}, v{vG}, 1, v{vPA}
    v_mul_u32_u24 v{vPA}, {2560 if p2nat else 64}, v{vPA}
    v_lshl_add_u32 v{vT[4]}, v{vT[0]}, 2, v{vT[5]}
    v_lshl_add_u32 v{vPA}, v{vT[4]}, 3, v{vPA}
    ''')
    fetch(10)
    if not dearly: lds_gate(L_CNT + 4, 5)
    else: a('s_waitcnt lgkmcnt(0)')
    a(f'''
    s_mul_i32 s{sT0}, s{sFS}, {32 * 1280}
    s_lshl_b32 s{sT2}, s{sW}, 8
    s_add_u32 s{sT0}, s{sT0}, s{sT2}
    s_cmp_gt_u32 s{sW}, 4
    s_cbranch_scc1 L_g_nod
    ''')
    if not now:
        for i in range(8):
            if i: a(f's_add_u32 s{sT0}, s{sT0}, {4 * 1280}')
            a(f'buffer_load_dwordx4 v[{wD+4*i}:{wD+4*i+3}], v{vWA}, {WD_}, s{sT0} offen {dflags}')
    a(f's_waitcnt vmcnt({0 if now else 8})\nL_g_nod:\nv_mov_b32 v{g}, 0x3f803f80')
    onehot_chain([(g, 'quad_perm:[0,0,0,0]', wt + 4 * i) for i in range(10)])
    write_d_rr(L_ZP)
    lds_reduce16(L_ZP, g)
    lds_reduce16b(g)
    a(f'''
    v_mov_b32 v{vCS}, v{g}
    s_mul_i32 s{sT0}, s{sW}, {320 if p2nat else 2560}
    s_add_u32 s{sT0}, s{sT0}, {P2:#x}
    s_lshl_b32 s{sT3}, s{sW}, 3
    v_mov_b32 v{vT[0]}, s{sT3}
    s_mul_i32 s{sT2}, s{sFS}, 2560
    s_lshl_b32 s{sT1}, s{sW}, 9
    s_add_u32 s{sT2}, s{sT2}, s{sT1}
    s_add_u32 s{sT2}, s{sT2}, {P3:#x}
    v_lshlrev_b32 v{vT[1]}, 5, v{vC}
    v_lshl_add_u32 v{vT[1]}, v{vG}, 4, v{vT[1]}
    s_waitcnt vmcnt(0)
    ''')
    for k in range(3): a(f'v_lshlrev_b32 v{vXv[k]}, 16, v{vXv[k]}')
    stamp('gw')
    def ld2(b):
        for i in range(5): a(f'buffer_load_dwordx2 v[{b+2*i}:{b+2*i+1}], v{vPA}, {WS_}, s{sT0} offen offset:{(64 if p2nat else 512)*i} sc1')
    poll2(ld2, 10, g, 5, fast[1], thr[1])
    stamp('h2')
    for i in range(5): a(f'v_permlane32_swap_b32 v{g+i}, v{g+5+i}')
    for i in range(5): a(f'v_add_f32 v{g+i}, v{g+i}, v{g+5+i}')
    z = [g + 10, g + 11, g + 12]
    a(f'''
    v_mov_b32 v{g+5}, v{g+4}
    v_permlane16_swap_b32 v{g}, v{g+1}
    v_permlane16_swap_b32 v{g+2}, v{g+3}
    v_permlane16_swap_b32 v{g+4}, v{g+5}
    v_add_f32 v{g}, v{g}, v{g+1}
    v_add_f32 v{g+2}, v{g+2}, v{g+3}
    v_add_f32 v{g+4}, v{g+4}, v{g+5}
    ''')
    for k in range(3): a(f'v_add_f32_dpp v{z[k]}, v{g+2*k}, v{g+2*k} row_shl:4 row_mask:0xf bank_mask:0x5')
    for k in range(3): a(f'v_add_f32_dpp v{z[k]}, v{g+2*k}, v{g+2*k} row_shr:4 row_mask:0xf bank_mask:0xa')
    for k in range(2): a(f'v_cvt_pk_bf16_f32 v{z[k]}, v{z[k]}, v{z[k]}')
    a(f'v_mov_b32_dpp v{z[2]}, v{z[2]} quad_perm:[2,3,0,1] row_mask:0xa bank_mask:0xf')
    for k in range(2): a(f'v_lshlrev_b32 v{z[k]}, 16, v{z[k]}')
    a(f'v_cvt_pk_bf16_f32 v{z[2]}, v{z[2]}, v{z[2]}')
    for k in range(2): a(f'v_add_f32 v{z[k]}, v{z[k]}, v{vXv[k]}')
    a(f'v_lshlrev_b32 v{z[2]}, 16, v{z[2]}')
    for k in range(2): a(f'v_cvt_pk_bf16_f32 v{z[k]}, v{z[k]}, v{z[k]}')
    a(f'v_add_f32 v{z[2]}, v{z[2]}, v{vXv[2]}\nv_cvt_pk_bf16_f32 v{z[2]}, v{z[2]}, v{z[2]}')
    hh = [g, g + 1, g + 2]; s1, s2, t1, t2 = g + 4, g + 5, g + 6, g + 7
    side = []
    for k in range(3): side.append(f'v_lshlrev_b32 v{hh[k]}, 16, v{z[k]}')
    side += [f'v_add_f32 v{s1}, v{hh[0]}, v{hh[1]}', f'v_mul_f32 v{s2}, v{hh[0]}, v{hh[0]}', f'v_mul_f32 v{t1}, 0.5, v{hh[2]}',
             f'v_fmac_f32 v{s2}, v{hh[1]}, v{hh[1]}', f'v_add_f32 v{s1}, v{s1}, v{t1}', f'v_fmac_f32 v{s2}, v{t1}, v{hh[2]}']
    for k in range(3): side.append(f'ds_write_b32 v{vHA[k]}, v{hh[k]} offset:{L_HH}')
    for sel in ('quad_perm:[1,0,3,2]', 'quad_perm:[2,3,0,1]', 'row_ror:8'):
        side += [f'v_add_f32_dpp v{s1}, v{s1}, v{s1} {sel} {DPPF}', f'v_add_f32_dpp v{s2}, v{s2}, v{s2} {sel} {DPPF}', None]
    side += [f'v_permlane16_swap_b32 v{s1}, v{s2}', f'v_add_f32 v{s1}, v{s1}, v{s2}', f'v_mov_b32 v{t1}, v{s1}', None,
             f'v_permlane32_swap_b32 v{s1}, v{t1}', f'v_add_f32 v{s1}, v{s1}, v{t1}']
    def pre(k):
        cnt = 0
        while side and cnt < 4:
            x = side.pop(0)
            if x is None: break
            a(x); cnt += 1
    onehot_chain([(z[k], f'quad_perm:[{n},{n},{n},{n}]', wt + 4 * i) for i, (k, n) in enumerate(GSTEPS)], pre=pre)
    while side:
        x = side.pop(0)
        if x: a(x)
    a(f'''
    v_lshlrev_b32 v{t2}, 5, v{vT[2]}
    s_lshl_b32 s{sT3}, s{sW}, 2
    v_add_u32 v{t2}, s{sT3}, v{t2}
    ds_write_b32 v{t2}, v{s1} offset:{L_ST}
    ''')
    write_d_rr(L_GP)
    stamp('g1')
    a(f's_cmp_gt_u32 s{sW}, 4\ns_cbranch_scc1 L_f')
    r = g; u = vACC
    for i in range(4): a(f'ds_read_b128 v[{u+4*i}:{u+4*i+3}], v{vZ} offset:{L_ST + 16*i}')
    lds_reduce16(L_GP, r)
    a('s_waitcnt lgkmcnt(4)')
    for e in range(4): a(f'v_add_f32 v{u+e}, v{u+e}, v{u+4+e}\nv_add_f32 v{u+8+e}, v{u+8+e}, v{u+12+e}')
    a(f'''
    v_add_f32 v{u}, v{u}, v{u+1}
    v_add_f32 v{u+8}, v{u+8}, v{u+9}
    v_add_f32 v{u+2}, v{u+2}, v{u+3}
    v_add_f32 v{u+10}, v{u+10}, v{u+11}
    v_add_f32 v{u}, v{u}, v{u+2}
    v_add_f32 v{u+8}, v{u+8}, v{u+10}
    s_waitcnt lgkmcnt(2)
    v_mul_f32 v{u}, {INV640:#x}, v{u}
    v_add_f32 v{r}, v{r}, v{r+4}
    v_mul_f32 v{u+8}, {INV640:#x}, v{u+8}
    v_add_f32 v{r+1}, v{r+1}, v{r+5}
    v_fma_f32 v{u+8}, -v{u}, v{u}, v{u+8}
    v_add_f32 v{r+2}, v{r+2}, v{r+6}
    v_max_f32 v{u+8}, 0, v{u+8}
    v_add_f32 v{r+3}, v{r+3}, v{r+7}
    v_cvt_pk_bf16_f32 v{u+8}, v{u+8}, v{u+8}
    s_waitcnt lgkmcnt(0)
    v_add_f32 v{r+8}, v{r+8}, v{r+12}
    v_lshlrev_b32 v{u+8}, 16, v{u+8}
    v_add_f32 v{r+9}, v{r+9}, v{r+13}
    v_add_f32 v{u+8}, {EPS:#x}, v{u+8}
    v_add_f32 v{r+10}, v{r+10}, v{r+14}
    v_cvt_pk_bf16_f32 v{u+8}, v{u+8}, v{u+8}
    v_add_f32 v{r+11}, v{r+11}, v{r+15}
    v_lshlrev_b32 v{u+8}, 16, v{u+8}
    v_add_f32 v{r}, v{r}, v{r+8}
    v_sqrt_f32 v{u+8}, v{u+8}
    v_add_f32 v{r+2}, v{r+2}, v{r+10}
    v_add_f32 v{r+1}, v{r+1}, v{r+9}
    v_add_f32 v{r+3}, v{r+3}, v{r+11}
    v_cvt_pk_bf16_f32 v{u+8}, v{u+8}, v{u+8}
    v_permlane32_swap_b32 v{r}, v{r+2}
    v_cvt_pk_bf16_f32 v{u}, v{u}, v{u}
    v_permlane32_swap_b32 v{r+1}, v{r+3}
    v_lshlrev_b32 v{u+8}, 16, v{u+8}
    v_add_f32 v{r}, v{r}, v{r+2}
    v_add_f32 v{r+1}, v{r+1}, v{r+3}
    v_rcp_f32 v{u+9}, v{u+8}
    v_lshlrev_b32 v{u}, 16, v{u}
    v_permlane16_swap_b32 v{r}, v{r+1}
    v_add_f32 v{r}, v{r}, v{r+1}
    v_fma_f32 v{r}, -v{u}, v{vCS}, v{r}
    v_mul_f32 v{r}, v{r}, v{u+9}
    ''')
    rbf(r, r)
    a(f'''
    v_mul_f32 v{r+1}, s{sC1}, v{r}
    v_exp_f32 v{r+1}, -v{r+1}
    v_add_f32 v{r+1}, 1.0, v{r+1}
    v_rcp_f32 v{r+2}, v{r+1}
    v_mul_f32 v{r+3}, v{r}, v{r+2}
    ''')
    rbf(r + 3, r + 3)
    a(f'''
    v_mul_f32_dpp v{r+3}, v{r}, v{r+3} row_ror:8 {DPPF}
    v_cvt_pk_bf16_f32 v{r+3}, v{r+3}, v{r+3}
    ''')
    onehot_chain([(r + 3, f'row_newbcast:{i}', wD + 4 * i) for i in range(8)])
    tagw([vD + i for i in range(4)])
    a(f'''
    s_mov_b32 exec_hi, 0
    buffer_store_dwordx4 v[{vD}:{vD+3}], v{vT[1]}, {WS_}, s{sT2} offen sc1
    s_mov_b64 exec, -1
    ''')
    if fgate: lds_add(L_CNT + 20)
    stamp('g')
    a('s_branch L_fin')
    a(f'''
    L_f:
    s_cmp_lg_u32 s{sW}, 7
    s_cbranch_scc1 L_fin
    s_cmp_ge_u32 s{sFS}, 40
    s_cbranch_scc1 L_fin
    v_lshrrev_b32 v{vT[0]}, 2, v{vLANE}
    v_and_b32 v{vT[1]}, 3, v{vLANE}
    v_mul_u32_u24 v{vT[0]}, 2560, v{vT[0]}
    v_lshl_add_u32 v{vT[0]}, v{vT[1]}, 4, v{vT[0]}
    s_lshl_b32 s{sT3}, s{sFS}, 6
    s_add_u32 s{sT0}, s{sT3}, {P3:#x}
    s_add_u32 s{sT1}, s{sT0}, {16 * 2560}
    s_add_u32 s{sT2}, s{sT0}, {32 * 2560}
    s_add_u32 s{sOFF}, s{sT0}, {48 * 2560}
    v_lshl_add_u32 v{vT[1]}, v{vT[1]}, 2, v{vG}
    v_lshlrev_b32 v{vT[1]}, 2, v{vT[1]}
    v_add_u32 v{vT[1]}, s{sT3}, v{vT[1]}
    ds_read_b32 v{vT[2]}, v{vT[1]} offset:{L_HH}
    v_lshrrev_b32 v{vT[1]}, 1, v{vT[1]}
    ''')
    a(f'''
    s_waitcnt vmcnt(0)
    v_cmp_gt_u32 vcc, 24, v{vLANE}
    v_subrev_u32 v{vT[5]}, {16 * 2560}, v{vT[0]}
    v_cndmask_b32 v{vT[5]}, v{vT[5]}, v{vT[0]}, vcc
    v_add_u32 v{vT[5]}, {16 * 2560}, v{vT[5]}
    v_cndmask_b32 v{vT[3]}, 0, 1.0, vcc
    ''')
    a(f'''
    s_cmp_eq_u32 s{sFS}, 0
    s_cselect_b32 s{sT3}, {EPOCH}, {OOB:#x}
    v_mov_b32 v{vT[4]}, s{sTAG}
    s_mov_b64 exec, 1
    buffer_store_dword v{vT[4]}, v{vZ}, {WS_}, s{sT3} offen sc1
    s_mov_b64 exec, -1
    ''')
    def ld3(b):
        for i in range(3): a(f'buffer_load_dwordx4 v[{b+4*i}:{b+4*i+3}], v{vT[0]}, {WS_}, s{(sT0, sT1, sT2)[i]} offen sc1')
        a(f'buffer_load_dwordx4 v[{b+12}:{b+15}], v{vT[5]}, {WS_}, s{sT2} offen sc1')
    if fgate:
        lds_gate(L_CNT + 20, 4 + 5)
        if fgate > 1: a(f's_sleep {fgate}')
    poll2(ld3, 16, g, 4, fast[2], thr[2], wide=False)
    stamp('h3')
    for e in range(4): a(f'v_add_f32 v{g+e}, v{g+e}, v{g+4+e}')
    for e in range(4): a(f'v_fmac_f32 v{g+8+e}, v{vT[3]}, v{g+12+e}')
    for e in range(4): a(f'v_add_f32 v{g+e}, v{g+e}, v{g+8+e}')
    a(f'''
    v_permlane32_swap_b32 v{g}, v{g+2}
    v_permlane32_swap_b32 v{g+1}, v{g+3}
    v_add_f32 v{g}, v{g}, v{g+2}
    v_add_f32 v{g+1}, v{g+1}, v{g+3}
    v_permlane16_swap_b32 v{g}, v{g+1}
    v_add_f32 v{g}, v{g}, v{g+1}
    v_add_f32_dpp v{g}, v{g}, v{g} row_ror:8 {DPPF}
    v_add_f32_dpp v{g}, v{g}, v{g} row_ror:4 {DPPF}
    ''')
    rbf(g, g)
    a(f'''
    s_waitcnt lgkmcnt(0)
    v_add_f32 v{g}, v{g}, v{vT[2]}
    v_cvt_pk_bf16_f32 v{g}, v{g}, v{g}
    s_mov_b32 exec_lo, 0x000f000f
    s_mov_b32 exec_hi, 0x000f000f
    buffer_store_short v{g}, v{vT[1]}, {OUT_}, 0 offen
    s_mov_b64 exec, -1
    L_fin:
    ''')
    if diagpad:
        pad, ka, k, mult = diagpad
        a(f'''
        s_cmp_lg_u32 s{sW}, 7
        s_cbranch_scc1 L_end
        s_cmp_lg_u32 s{sROLE}, 2
        s_cbranch_scc1 L_end
        s_cmp_lg_u32 s{sFS}, 0
        s_cbranch_scc1 L_end
        v_readlane_b32 s{sT0}, v{vSTAMP}, 0
        v_readlane_b32 s{sT1}, v{vSTAMP}, {k}
        v_readlane_b32 s{sT2}, v{vSTAMP}, {ka}
        s_sub_u32 s{sT1}, s{sT1}, s{sT2}
        s_mul_i32 s{sT1}, s{sT1}, {mult}
        s_add_u32 s{sT1}, s{sT1}, {pad}
        L_diag:
        s_memrealtime s[96:97]
        s_waitcnt lgkmcnt(0)
        s_sub_u32 s{sT2}, s96, s{sT0}
        s_cmp_lt_u32 s{sT2}, s{sT1}
        s_cbranch_scc1 L_diag
        ''')
    elif stamps and dbgout:
        stamp('end')
        a(f'''
        s_cmp_lg_u32 s{sW}, 7
        s_cbranch_scc1 L_end
        s_cmp_lg_u32 s{sROLE}, 2
        s_cbranch_scc1 L_end
        s_cmp_gt_u32 s{sFS}, 1
        s_cbranch_scc1 L_end
        v_readlane_b32 s{sT0}, v{vSTAMP}, 0
        s_lshl_b32 s{sT1}, s{sFS}, 5
        v_lshlrev_b32 v{vT[0]}, 2, v{vLANE}
        v_add_u32 v{vT[0]}, s{sT1}, v{vT[0]}
        v_subrev_u32 v{vT[1]}, s{sT0}, v{vSTAMP}
        s_mov_b64 exec, 0xff
        global_store_dword v{vT[0]}, v{vT[1]}, s[36:37]
        ''')
    elif stamps:
        stamp('end')
        a(f'''
        s_cmp_lg_u32 s{sW}, {stampwave}
        s_cbranch_scc1 L_end
        s_add_u32 s24, s38, 0x10000000
        s_addc_u32 s25, s39, 0
        s_lshl_b32 s{sT0}, s2, 6
        v_lshlrev_b32 v{vT[0]}, 2, v{vLANE}
        v_add_u32 v{vT[0]}, s{sT0}, v{vT[0]}
        s_mov_b64 exec, 0x7fff
        global_store_dword v{vT[0]}, v{vSTAMP}, s[24:25]
        ''')
    a('L_end:\ns_endpgm')
    if rtab:
        tab = role_table()
        a('.p2align 6\n.type L_tab,@object\nL_tab:')
        for i in range(0, 256, 16): a('.byte ' + ', '.join(map(str, tab[i:i+16])))
        a('.size L_tab, 256')
    return build_file([f'; @launch grid=(256,1,1) block=(512,1,1) lds={lds}'], [(NAME + '_kernel', a.text(), V.high, 102)])

if __name__ == '__main__':
    import json
    out = sys.argv[1]
    kw = json.loads(sys.argv[2]) if len(sys.argv) > 2 else {}
    open(out, 'w').write(gen(**kw))
```

```python
import sys, struct
from asmlib import *

def f2u(x): return struct.unpack('<I', struct.pack('<f', x))[0]
LOG2E = f2u(1.4426950408889634)
SCALE = f2u(128 ** -0.5)
INV640 = f2u(1.0 / 640)
EPS = f2u(1e-5)
NEGINF = 0xff800000

EPOCH = 0x0
CTR = 0x1000
CTRS = 0x1100
QS = 0x40000
P1 = 0x80000
P2 = 0xC0000
P3 = 0xE0000
WS_END = P3 + 54 * 2560
OOB = 0x40000000
L_Q = 0; L_CNT = 256; L_M = 320; L_L = 352; L_F = 384; L_ST = 448; L_OP = 4096; L_ZP = 8192; L_GP = 12288; L_HH = 16384; L_WT = 20480

DPPF = 'row_mask:0xf bank_mask:0xf'

def role_table(seed=1):
    import random
    rnd = random.Random(seed)
    needG = [2] * 22 + [1] * 10
    needW = [2] * 22 + [4] * 6 + [3] * 4
    order = list(range(32)); rnd.shuffle(order)
    needG = [needG[order[h]] for h in range(32)]; needW = [needW[order[h]] for h in range(32)]
    while True:
        g = list(needG); w = list(needW); tab = [255] * 256; ok = True
        for x in range(8):
            fs = [2 * p + b for p in range(x, 27, 8) for b in range(2)]
            left = 8 - x
            hs = sorted(range(32), key=lambda h: (-(g[h] + w[h]), -g[h], rnd.random()))
            used = set()
            cg = [h for h in sorted(range(32), key=lambda h: (-g[h], -(g[h] + w[h]), rnd.random())) if g[h] > 0][:len(fs)]
            if len(cg) < len(fs): ok = False; break
            for h, f in zip(cg, fs): tab[8 * h + x] = f; g[h] -= 1; used.add(h)
            cw = [h for h in sorted(range(32), key=lambda h: (-(w[h] + g[h]), rnd.random())) if w[h] > 0 and h not in used][:10]
            if len(cw) < 10: ok = False; break
            for c, h in enumerate(cw): tab[8 * h + x] = 64 + c; w[h] -= 1
        if ok and not any(g) and not any(w): return tab

def gen(NE=28, NO=28, HROT=32, S=32, F=5, CU=1, FH=2, stamps=False, kvflags='nt', wqflags='nt', wflags='', lds=84000,
        spin=200000, stampwave=0, notail=False, now=False, mapping='all', gstop=0, wstop=0, gflags=None, dflags=None,
        vflags=None, dbgout=False, diagpad=None, p2nat=True, rtab=True, fast=(1, 1, 1), thr=(32, 48, 48), gap=1, gswap=True,
        boost=0, dearly=False, qsleep=4, sprio=2, wlate=8, glate=9, lgate=1, FH2=8, early=False, Fpat=None, pre=False, pred=False, FP=2, pflags='', kgate=True, ptest=None, skipw=False, skipg=False, gfull=False, eager=32, fgate=False, xorb=0, F0=None, gm=0, NP=1, FD=0, vph=False, xmap=False, tprio=True, hx=(2, 17), b21=True, exact=True):
    a = Asm()
    V = Alloc(1, 256)
    U = 4
    if gflags is None: gflags = wflags
    if vflags is None: vflags = kvflags
    if dflags is None: dflags = wflags
    if Fpat is None: Fpat = [F]
    F = max(Fpat)
    OP = (16 * (NE + NO)) << gm
    MSK = (0x400000 << gm) - 1
    NCH = ((1024 << gm) - OP) // CU
    NCH //= NP
    NK = U * CU
    assert OP <= (1024 << gm) and HROT % 2 == 0
    NTMAX = max(5, (NE * U + 15) // 16)
    sW, sH, sIDX, sPAR, sS = 3, 4, 5, 6, 7
    K_, V_, WQ_, WS_, X_, WO_, WG_, WU_, WD_, OUT_ = [f's[{b}:{b+3}]' for b in (8, 12, 40, 44, 48, 52, 56, 60, 64, 68)]
    sOFF, sOFF0, sEX0, sT0, sT1, sT2, sT3 = 76, 77, 78, 80, 81, 82, 83
    sSLOT, sROLE, sGAM, sCS, sFS, sSPIN, sTAG, sTAG8 = 84, 85, 87, 88, 89, 91, 92, 93
    sC1, sC2 = 94, 95
    sROT, sCTR, sNXT, sLIM, sAOFF, sMSK8 = 72, 73, 74, 75, 86, 90
    sM1, sM0 = 's[16:17]', 's[18:19]'
    sVa, sVb = 's[20:21]', 's[22:23]'
    sLO8 = 's[26:27]'
    slist = stamps if isinstance(stamps, list) else []
    def stamp(name):
        if name in slist:
            a(f's_memrealtime s[96:97]\ns_waitcnt lgkmcnt(0)\nv_writelane_b32 v{vSTAMP}, s96, {1 + slist.index(name)}')
    q = []
    def vm(tag, text):
        a(text); q.append(tag)
    def wait(tag):
        idx = max(i for i, t in enumerate(q) if t == tag)
        n = len(q) - 1 - idx
        assert n <= 63, n
        a(f's_waitcnt vmcnt({n})')

    vSTAMP = V.get() if stamps else None
    vLANE = V.get(); vG = V.get(); vC = V.get(); vKV = V.get(); vKV2 = V.get()
    vT = [V.get() for _ in range(8)]
    vDA = V.get(); vXH = V.get(); vTAG = V.get(); vTK = V.get(); vM = V.get(); vL = V.get(); vZ = V.get()
    vMASK = V.get(4, 4)
    vA = [V.get(4, 4), V.get(4, 4)]
    vD = V.get(4, 4)
    vQ = V.get(4, 4)
    vSC = [V.get() for _ in range(NTMAX)]
    vACC = V.get(16, 4)
    gat = V.get(16, 4)
    ring = V.get(4 * S, 4)
    wqs = ring
    assert S >= 32
    pA, pB = ring + 96, ring + 112
    pS = [ring + 112, ring + 96, ring + 80]

    def allreduce(r, op, t):
        for k in (8, 4, 2, 1):
            a(f'{op}_dpp v{r}, v{r}, v{r} row_ror:{k} {DPPF}')
        for sw in ('v_permlane16_swap_b32', 'v_permlane32_swap_b32'):
            a(f'v_mov_b32 v{t}, v{r}\n{sw} v{r}, v{t}\n{op} v{r}, v{r}, v{t}')
    def allreduce2(r0, r1, op, t0, t1):
        for k in (8, 4, 2, 1):
            a(f'{op}_dpp v{r0}, v{r0}, v{r0} row_ror:{k} {DPPF}\n{op}_dpp v{r1}, v{r1}, v{r1} row_ror:{k} {DPPF}')
        for sw in ('v_permlane16_swap_b32', 'v_permlane32_swap_b32'):
            a(f'v_mov_b32 v{t0}, v{r0}\nv_mov_b32 v{t1}, v{r1}\n{sw} v{r0}, v{t0}\n{sw} v{r1}, v{t1}\n{op} v{r0}, v{r0}, v{t0}\n{op} v{r1}, v{r1}, v{t1}')
    def rbf(d, s):
        a(f'v_cvt_pk_bf16_f32 v{d}, v{s}, v{s}\nv_lshlrev_b32 v{d}, 16, v{d}')
    def ln_consts(vmean, vvar, vm_bf, vs_bf, vr):
        rbf(vs_bf, vvar)
        rbf(vm_bf, vmean)
        a(f'v_add_f32 v{vs_bf}, {EPS:#x}, v{vs_bf}')
        rbf(vs_bf, vs_bf)
        a(f'v_sqrt_f32 v{vs_bf}, v{vs_bf}')
        rbf(vs_bf, vs_bf)
        a(f'v_rcp_f32 v{vr}, v{vs_bf}')
    def ln_apply(xs, vm_bf, vs_bf, vr, ts):
        for x in xs: a(f'v_sub_f32 v{x}, v{x}, v{vm_bf}')
        for x in xs: a(f'v_cvt_pk_bf16_f32 v{x}, v{x}, v{x}')
        for x in xs: a(f'v_lshlrev_b32 v{x}, 16, v{x}')
        for x, t in zip(xs, ts): a(f'v_mul_f32 v{t}, v{x}, v{vr}')
        for x, t in zip(xs, ts): a(f'v_fma_f32 v{x}, -v{t}, v{vs_bf}, v{x}')
        for x, t in zip(xs, ts): a(f'v_fma_f32 v{x}, v{x}, v{vr}, v{t}')
        for x in xs: a(f'v_cvt_pk_bf16_f32 v{x}, v{x}, v{x}')
    def ands(pk, sel, k):
        A = vA[k & 1]
        for jj in range(4): a(f'v_and_b32_dpp v{A + jj}, v{pk}, v{vMASK + jj} {sel} {DPPF}')
    def mfma(data, k, first=False):
        A = vA[k & 1]
        c = '0' if first else f'v[{vD}:{vD+3}]'
        a(f'v_mfma_f32_16x16x32_bf16 v[{vD}:{vD+3}], v[{A}:{A+3}], v[{data}:{data+3}], {c}')
    def onehot_chain(items, pre=None):
        ands(items[0][0], items[0][1], 0)
        for k, (pk, sel, data) in enumerate(items):
            if k + 1 < len(items): ands(items[k+1][0], items[k+1][1], k + 1)
            if pre: pre(k)
            mfma(data, k, first=(k == 0))
    def tagw(regs, rnd=False):
        if rnd:
            for r in regs: a(f'v_add_u32 v{r}, 0x80, v{r}')
        for r in regs: a(f'v_and_or_b32 v{r}, v{r}, s{sMSK8}, v{vTAG}')
    def check(src, dst, n):
        t = vT[7]
        for i in range(n): a(f'v_xor_b32 v{dst+i}, s{sTAG8}, v{src+i}')
        rs = [dst + i for i in range(n)]
        a(f'v_or3_b32 v{t}, v{rs[0]}, v{rs[1]}, v{rs[2]}'); rs = rs[3:]
        while rs:
            if len(rs) >= 2: a(f'v_or3_b32 v{t}, v{t}, v{rs[0]}, v{rs[1]}'); rs = rs[2:]
            else: a(f'v_or_b32 v{t}, v{t}, v{rs[0]}'); rs = []
        a(f'v_and_b32 v{t}, 0xff, v{t}\nv_cmp_ne_u32 vcc, 0, v{t}')
    npoll = [0]
    def poll(loads, n, dst, nl, k, st, sl=0):
        L = f'L_poll{npoll[0]}'; npoll[0] += 1
        a(f's_mov_b32 s{sSPIN}, {spin}')
        for i in range(k - 1):
            loads(pS[i])
            if st: a(f's_sleep {st}')
        a(f'{L}:')
        for i in range(k):
            loads(pS[(i + k - 1) % k])
            a(f's_waitcnt vmcnt({nl * (k - 1)})')
            check(pS[i], dst, n)
            a(f's_cbranch_vccz {L}_done')
        if sl: a(f's_sleep {sl}')
        a(f's_sub_u32 s{sSPIN}, s{sSPIN}, 1\ns_cbranch_scc0 {L}\n{L}_done:')
    sPEND = 's[28:29]'
    def poll2(loads, n, dst, nl, k, th, first=True, wide=True):
        L = f'L_pp{npoll[0]}'; npoll[0] += 1
        b = pS[0]
        t = vT[7]
        widen = '\n'.join([f'v_or_b32_dpp v{t}, v{t}, v{t} {sel} {DPPF}' for sel in ['quad_perm:[1,0,3,2]', 'quad_perm:[2,3,0,1]'] + (['row_ror:8'] if wide else [])] + [f'v_cmp_ne_u32 vcc, 0, v{t}'])
        def masked():
            a(f's_mov_b64 exec, {sPEND}'); loads(b); a('s_mov_b64 exec, -1')
        a(f's_mov_b32 s{sSPIN}, {spin}')
        if first: a(f's_mov_b64 {sPEND}, -1')
        else: a(f's_branch {L}_e')
        a(f'{L}:')
        masked()
        a('s_waitcnt vmcnt(0)')
        check(b, dst, n)
        a(f'''
        s_cbranch_vccz {L}_done
        {L}_e:
        {widen}
        s_mov_b64 {sPEND}, vcc
        s_sub_u32 s{sSPIN}, s{sSPIN}, 1
        s_cbranch_scc1 {L}_done
        ''')
        if k <= 1:
            a(f's_branch {L}\n{L}_done:'); return
        a(f's_bcnt1_i32_b64 s{sOFF0}, vcc\ns_cmp_gt_u32 s{sOFF0}, {th}\ns_cbranch_scc1 {L}')
        for j in range(k - 1):
            masked()
            a(f's_sleep {gap * 2}')
        a(f'{L}_f:')
        masked()
        a(f's_waitcnt vmcnt({nl * (k - 1)})')
        check(b, dst, n)
        a(f'''
        s_cbranch_vccz {L}_done
        {widen}
        s_mov_b64 {sPEND}, vcc
        s_sub_u32 s{sSPIN}, s{sSPIN}, 1
        s_cbranch_scc0 {L}_f
        {L}_done:
        ''')
    def lds_reduce16(base, r):
        for i in range(4): a(f'ds_read_b128 v[{r + 4*i}:{r + 4*i + 3}], v{vRA} offset:{base + 256 * i}')
    def lds_reduce16b(r):
        a('s_waitcnt lgkmcnt(2)')
        for e in range(4): a(f'v_add_f32 v{r+e}, v{r+e}, v{r+4+e}')
        a('s_waitcnt lgkmcnt(0)')
        for e in range(4): a(f'v_add_f32 v{r+8+e}, v{r+8+e}, v{r+12+e}')
        for e in range(4): a(f'v_add_f32 v{r+e}, v{r+e}, v{r+8+e}')
        a(f'''
        v_permlane32_swap_b32 v{r}, v{r+2}
        v_permlane32_swap_b32 v{r+1}, v{r+3}
        v_add_f32 v{r}, v{r}, v{r+2}
        v_add_f32 v{r+1}, v{r+1}, v{r+3}
        v_permlane16_swap_b32 v{r}, v{r+1}
        v_add_f32 v{r}, v{r}, v{r+1}
        ''')
    def write_d_rr(base):
        a(f'''
        s_mov_b32 exec_lo, 0x00ff00ff
        s_mov_b32 exec_hi, 0xff00ff00
        ds_write_b128 v{vDA2}, v[{vD}:{vD+3}] offset:{base}
        s_mov_b64 exec, -1
        s_waitcnt lgkmcnt(0)
        s_barrier
        ''')
    def lds_add(off, rtn=None):
        a(f's_mov_b64 exec, 1\nv_mov_b32 v{vT[6]}, 1')
        if rtn: a(f'ds_add_rtn_u32 v{vT[6]}, v{vZ}, v{vT[6]} offset:{off}')
        else: a(f'ds_add_u32 v{vZ}, v{vT[6]} offset:{off}')
        a('s_mov_b64 exec, -1')
    ngate = [0]
    def lds_gate(off, val):
        L = f'L_gate{ngate[0]}'; ngate[0] += 1
        a(f'''
        s_mov_b32 s{sSPIN}, {spin * 40}
        {L}:
        ds_read_b32 v{vT[6]}, v{vZ} offset:{off}
        s_waitcnt lgkmcnt(0)
        v_cmp_gt_u32 vcc, {val}, v{vT[6]}
        s_cbranch_vccz {L}_done
        s_sleep 2
        s_sub_u32 s{sSPIN}, s{sSPIN}, 1
        s_cbranch_scc0 {L}
        {L}_done:
        ''')

    assert mapping == 'all' and rtab
    a(f'''
    s_load_dwordx8 s[16:23], s[0:1], 0
    ''')
    if stamps: a(f's_memrealtime s[98:99]')
    a(f'''
    v_lshrrev_b32 v{vT[0]}, 6, v0
    v_and_b32 v{vLANE}, 63, v0
    s_cmp_ge_u32 s2, 256
    v_readfirstlane_b32 s{sW}, v{vT[0]}
    s_cbranch_scc1 L_end
    {'s_and_b32 s4, s2, 7' if xmap else ''}
    {'s_lshr_b32 s2, s2, 3' if xmap else ''}
    {'s_lshl_b32 s4, s4, 5' if xmap else ''}
    {'s_add_u32 s2, s2, s4' if xmap else ''}
    s_lshr_b32 s{sH}, s2, 3
    s_and_b32 s{sS}, s2, 7
    v_lshlrev_b32 v{vKV}, 4, v{vLANE}
    s_lshr_b32 s{sT2}, s{sH}, {gm}
    s_lshl_b32 s{sT0}, s{sT2}, {22 + gm}
    s_cmp_lt_u32 s{sW}, 4
    s_cbranch_scc1 L_pro_h
    s_and_b32 s{sPAR}, s2, 1
    s_and_b32 s{sIDX}, s2, {(8 << gm) - 2}
    s_lshl_b32 s{sIDX}, s{sIDX}, 1
    s_add_u32 s{sIDX}, s{sIDX}, s{sW}
    s_mul_i32 s{sROT}, s{sT2}, {HROT << gm}
    s_add_u32 s{sIDX}, s{sIDX}, s{sROT}
    s_sub_u32 s{sIDX}, s{sIDX}, 4
    s_lshl_b32 s{sOFF0}, s{sPAR}, {4 + gm}
    s_add_u32 s{sOFF0}, s{sOFF0}, s{sIDX}
    s_lshl_b32 s{sOFF0}, s{sOFF0}, 12
    s_and_b32 s{sOFF0}, s{sOFF0}, {MSK:#x}
    s_lshr_b32 s79, s{sH}, 2
    s_and_b32 s78, s{sH}, 3
    s_lshl_b32 s78, s78, 2
    s_xor_b32 s79, s79, s78
    s_lshl_b32 s79, s79, 17
    s_mov_b32 s10, {MSK + 1:#x}
    s_mov_b32 s11, 0x20000
    s_waitcnt lgkmcnt(0)
    s_add_u32 s8, s18, s{sT0}
    s_addc_u32 s9, s19, 0
    ''')
    vX = gat; vXS = gat + 5

    sHX, sOFX = 79, 78
    def xform(dst, src):
        if b21:
            te = sPAR
            a(f'''
            s_bfe_u32 s{te}, s{src}, {(1 << 16) | 17:#x}
            s_lshl_b32 s{te}, s{te}, 21
            s_xor_b32 s{te}, s{te}, s{sHX}
            s_and_b32 s{sIDX}, s{src}, 0x1ffff
            s_xor_b32 s{te}, s{te}, s{sIDX}
            s_lshr_b32 s{sIDX}, s{src}, 18
            s_lshl_b32 s{sIDX}, s{sIDX}, 17
            s_xor_b32 s{dst}, s{te}, s{sIDX}
            ''')
        else: a(f's_xor_b32 s{dst}, s{src}, s{sHX}')
    def issue_static(m, n, x, NX, track=True):
        k, i = divmod(n, U)
        so = sOFF
        if XP <= k < XP + NX: so = sEX0 + k - XP
        elif i == 0:
            if k == 0: a(f's_mov_b32 s{sOFF}, s{sOFF0}')
            else:
                a(f's_add_u32 s{sOFF}, s{sOFF}, ' + f'{(32 * 4096) << gm}' + f'\ns_and_b32 s{sOFF}, s{sOFF}, {MSK:#x}')
            if hx: xform(sOFX, sOFF)
        if hx: so = sOFX
        r = ring + (x % S) * 4
        txt = f'buffer_load_dwordx4 v[{r}:{r+3}], v{vKV}, {K_ if m == "K" else V_}, s{so} offen offset:{i * 1024} {kvflags if m == "K" else vflags}'
        if track: vm(('r', x), txt)
        else: a(txt)
    XP = 12
    assert XP * U >= S and NO >= XP
    def lanemask(nvalid):
        nvalid = max(0, min(16, nvalid))
        m = (1 << nvalid) - 1
        return m | (m << 16)
    def setupA(tg):
        a(f'''
        s_load_dwordx16 s[24:39], s[0:1], 32
        s_getpc_b64 s[96:97]
        L_pc{tg}:
        s_add_u32 s96, s96, L_tab-L_pc{tg}
        s_addc_u32 s97, s97, 0
        s_and_b32 s{sT1}, s2, 0xfc
        s_load_dword s101, s[96:97], s{sT1}
        v_lshrrev_b32 v{vG}, 4, v{vLANE}
        v_and_b32 v{vC}, 15, v{vLANE}
        v_mov_b32 v{vZ}, 0
        s_andn2_b32 s{sCTR}, s{sH}, {(1 << gm) - 1}
        s_mul_i32 s{sCTR}, s{sCTR}, {CTRS}
        s_add_u32 s{sCTR}, s{sCTR}, {CTR}
        s_mov_b32 s{sC1}, {LOG2E:#x}
        s_mov_b32 s{sC2}, 0xffff0000
        s_mov_b32 s{sMSK8}, 0xffffff00
        s_mov_b32 s{sSLOT}, s2
        v_add_u32 v{vKV2}, 4096, v{vKV}
        v_and_b32 v{vT[5]}, 1, v{vC}
        v_lshlrev_b32 v{vT[5]}, 4, v{vT[5]}
        v_mov_b32 v{vT[6]}, 0xffff
        v_lshlrev_b32 v{vT[5]}, v{vT[5]}, v{vT[6]}
        v_bfe_u32 v{vT[6]}, v{vC}, 1, 2
        ''')
        for jj in range(4):
            a(f'v_cmp_eq_u32 vcc, {jj}, v{vT[6]}\nv_cndmask_b32 v{vMASK + jj}, 0, v{vT[5]}, vcc')
        a(f'v_lshlrev_b32 v{vDA}, 5, v{vC}\nv_lshl_add_u32 v{vDA}, v{vG}, 4, v{vDA}')
    def setupB():
        a(f'''
        s_waitcnt lgkmcnt(0)
        s_load_dword s{sTAG}, s[38:39], {EPOCH}
        s_add_u32 s12, s20, s{sT0}
        s_addc_u32 s13, s21, 0
        s_mov_b32 s14, {MSK + 1:#x}
        s_mov_b32 s15, 0x20000
        s_and_b32 s{sGAM}, s2, 7
        s_and_b32 s{sT1}, s2, 3
        s_lshl_b32 s{sT1}, s{sT1}, 3
        s_lshr_b32 s{sFS}, s101, s{sT1}
        s_and_b32 s{sFS}, s{sFS}, 0xff
        s_mov_b32 s{sLIM}, {NCH}
        s_cmp_lt_u32 s{sFS}, 54
        s_cselect_b32 s{sROLE}, 2, 0
        s_cselect_b32 s{sLIM}, {max(0, NCH - gstop)}, s{sLIM}
        s_sub_u32 s{sCS}, s{sFS}, 64
        s_cmp_lt_u32 s{sCS}, 10
        s_cselect_b32 s{sROLE}, 1, s{sROLE}
        s_cselect_b32 s{sLIM}, {max(0, NCH - wstop)}, s{sLIM}
        ''')
        if stamps: a(f'v_mov_b32 v{vSTAMP}, 0\nv_writelane_b32 v{vSTAMP}, s98, 0')
        for b, p, n in ((44, 38, WS_END), (48, 16, 1280), (52, 24, 4096 * 1280), (56, 28, 640 * 3456), (60, 30, 640 * 3456), (64, 32, 1728 * 1280), (68, 34, 1280)):
            a(f's_mov_b32 s{b}, s{p}\ns_mov_b32 s{b+1}, s{p+1}\ns_mov_b32 s{b+2}, {n}\ns_mov_b32 s{b+3}, 0x20000')
        a(f'''
        s_mov_b32 s16, 0xcccccccc
        s_mov_b32 s17, 0xcccccccc
        s_mov_b32 s18, 0xaaaaaaaa
        s_mov_b32 s19, 0xaaaaaaaa
        s_mov_b32 s26, {lanemask(NK):#x}
        s_mov_b32 s27, {lanemask(NK):#x}
        ''')
    def setupC():
        a(f'''
        s_waitcnt lgkmcnt(0)
        s_add_u32 s{sTAG}, s{sTAG}, 1
        s_and_b32 s{sTAG8}, s{sTAG}, 0xff
        v_mov_b32 v{vTAG}, s{sTAG8}
        ''')
    if F0 is None: F0 = F
    for x in range(F0): issue_static('K', x, x, 0, track=False)
    if sprio: a(f's_setprio {sprio}')
    setupA('s')
    for x in range(F0, S):
        a(f's_waitcnt vmcnt({Fpat[x % len(Fpat)] - 1})')
        issue_static('K', x, x, 0, track=False)
        if x == F0 + F - 1: setupB()
        if x == F0 + 2 * F - 1: setupC()
        if x > F0 + F: stamp(f'x{x}')
    a(f'''
    s_barrier
    s_branch L_qread
    L_pro_h:
    v_lshrrev_b32 v{vG}, 4, v{vLANE}
    v_and_b32 v{vC}, 15, v{vLANE}
    s_cmp_lg_u32 s{sW}, 0
    s_cbranch_scc1 L_q
    s_lshl_b32 s{sT1}, s{sH}, 8
    s_mul_i32 s{sT2}, s{sS}, {80 * 8192}
    s_add_u32 s{sT1}, s{sT1}, s{sT2}
    s_mov_b32 s42, {80 * 8192}
    s_mov_b32 s43, 0x20000
    s_mov_b32 s50, 1280
    s_mov_b32 s51, 0x20000
    v_lshlrev_b32 v{vT[1]}, 13, v{vG}
    v_lshl_add_u32 v{vT[1]}, v{vC}, 4, v{vT[1]}
    v_lshlrev_b32 v{vT[2]}, 2, v{vLANE}
    v_lshl_add_u32 v{vT[3]}, v{vC}, 2, v{vG}
    v_lshlrev_b32 v{vT[3]}, 1, v{vT[3]}
    s_mul_i32 s{sT3}, s{sS}, 160
    s_waitcnt lgkmcnt(0)
    s_mov_b32 s48, s16
    s_mov_b32 s49, s17
    s_add_u32 s40, s22, s{sT1}
    s_addc_u32 s41, s23, 0
    ''')
    for k in range(5): vm('x', f'buffer_load_dword v{vX + k}, v{vT[2]}, {X_}, 0 offen offset:{256 * k}')
    vm('x', f'buffer_load_ushort v{vXS}, v{vT[3]}, {X_}, s{sT3} offen')
    vm('x', f'buffer_load_ushort v{vXS + 1}, v{vT[3]}, {X_}, s{sT3} offen offset:128')
    for i in range(20):
        if i: a(f's_mov_b32 s{sT1}, {i * 32768}')
        vm(('wq', i), f'buffer_load_dwordx4 v[{wqs + 4*i}:{wqs + 4*i + 3}], v{vT[1]}, {WQ_}, {"0" if i == 0 else "s%d" % sT1} offen {wqflags}')
    a('L_q:')
    setupA('h'); setupB(); setupC()
    a(f's_cmp_eq_u32 s{sW}, 0\ns_cbranch_scc1 L_q2')
    def g_rowbase(dst, k, t):
        tab = []
        for gg in range(4):
            b5, b4 = gg >> 1, gg & 1
            v = 5 * b5 + (2 * k + b4 if k < 2 else 4)
            tab.append(16 * (v >> 1) + (v & 1) + (4 * b4 if k == 2 else 0))
        packed = sum(x << (8 * i) for i, x in enumerate(tab))
        a(f'''
        s_mov_b32 s{sT2}, {packed:#x}
        v_lshlrev_b32 v{t}, 3, v{vG}
        v_bfe_u32 v{dst}, s{sT2}, v{t}, 8
        v_and_b32 v{t}, 8, v{vLANE}
        v_add_u32 v{dst}, v{dst}, v{t}
        ''')
    GSTEPS = [(k, n) for k in range(2) for n in range(4)] + [(2, 0), (2, 1)]
    def w_addr(t0, t1):
        a(f'''
        v_lshrrev_b32 v{t0}, 1, v{vG}
        v_lshlrev_b32 v{t0}, 5, v{t0}
        v_bfe_u32 v{t1}, v{vLANE}, 3, 1
        v_lshl_add_u32 v{t0}, v{t1}, 4, v{t0}
        v_and_b32 v{t1}, 1, v{vG}
        v_lshl_add_u32 v{t0}, v{t1}, 1, v{t0}
        v_mul_u32_u24 v{t0}, 1280, v{t0}
        v_and_b32 v{t1}, 7, v{vLANE}
        v_lshl_add_u32 v{t0}, v{t1}, 4, v{t0}
        ''')
    wt = ring
    def dma():
        L = 'L_dma'
        if now:
            lds_add(L_CNT + 12); return
        a(f'''
        s_cmp_eq_u32 s{sROLE}, {7 if skipg else 2}
        s_cbranch_scc1 {L}_g
        s_cmp_eq_u32 s{sROLE}, {7 if skipw else 1}
        s_cbranch_scc0 {L}_done
        ''')
        w_addr(vT[4], vT[1])
        a(f'''
        s_lshl_b32 s{sT0}, s{sGAM}, 9
        s_lshl_b32 s{sT1}, s{sW}, 6
        s_add_u32 s{sT0}, s{sT0}, s{sT1}
        s_mul_i32 s{sT0}, s{sT0}, 1280
        s_lshl_b32 s{sT1}, s{sCS}, 7
        s_add_u32 s{sT0}, s{sT0}, s{sT1}
        s_mul_i32 s{sT3}, s{sW}, {10 * 1024}
        s_add_u32 s{sT3}, s{sT3}, {L_WT}
        ''')
        assert wlate <= 8 and glate <= 10
        for cnt in range(16):
            half, n, k = 1 - cnt // 8, (cnt % 8) // 2, cnt % 2
            if cnt == 8:
                a('s_waitcnt vmcnt(0)'); lds_add(L_CNT + 12)
            if cnt == 16 - wlate: lds_gate(L_CNT, lgate)
            a(f's_add_u32 s{sT1}, s{sT0}, {(half * 256 + 4 * n + k) * 1280}')
            fh = FH if cnt < 16 - wlate else FH2
            if half:
                a(f's_add_u32 m0, s{sT3}, {(4 * k + n) * 1024}\ns_waitcnt vmcnt({fh - 1})')
                a(f'buffer_load_dwordx4 v{vT[4]}, {WO_}, s{sT1} offen {wflags} lds')
            else:
                r = wt + 4 * (4 * k + n)
                a(f's_waitcnt vmcnt({fh - 1})\nbuffer_load_dwordx4 v[{r}:{r+3}], v{vT[4]}, {WO_}, s{sT1} offen {wflags}')
        a(f's_branch {L}_done\n{L}_g:')
        if gfull: a(f's_bitcmp1_b32 s{sFS}, 0\ns_cbranch_scc1 {L}_done')
        a(f'v_and_b32 v{vT[5]}, 3, v{vLANE}')
        for k in range(3):
            g_rowbase(vT[k], k, vT[4])
            a(f'v_mul_u32_u24 v{vT[k]}, 3456, v{vT[k]}\nv_lshl_add_u32 v{vT[k]}, v{vT[5]}, 4, v{vT[k]}')
        a(f'''
        s_mul_i32 s{sT0}, s{sW}, {80 * 3456}
        s_lshl_b32 s{sT1}, s{sFS}, 6
        s_add_u32 s{sT0}, s{sT0}, s{sT1}
        s_mul_i32 s{sT3}, s{sW}, {10 * 1024}
        s_add_u32 s{sT3}, s{sT3}, {L_WT}
        ''')
        for cnt in range(20):
            half, i = 1 - cnt // 10, cnt % 10
            k, n = GSTEPS[i]
            if cnt == 10:
                a('s_waitcnt vmcnt(0)'); lds_add(L_CNT + 12)
            if cnt == 20 - glate:
                a('s_mov_b64 exec, -1')
                lds_gate(L_CNT, lgate)
            fh = FH if cnt < 20 - glate else FH2
            a(f's_add_u32 s{sT1}, s{sT0}, {(320 * half + 2 * n) * 3456}')
            if half: a(f's_add_u32 m0, s{sT3}, {i * 1024}')
            r = wt + 4 * i
            for msk, srd in (('0x0f0f0f0f', WG_), ('0xf0f0f0f0', WU_)):
                a(f's_mov_b32 exec_lo, {msk}\ns_mov_b32 exec_hi, {msk}\ns_waitcnt vmcnt({fh - 1})')
                if half: a(f'buffer_load_dwordx4 v{vT[k]}, {srd}, s{sT1} offen {gflags} lds')
                else: a(f'buffer_load_dwordx4 v[{r}:{r+3}], v{vT[k]}, {srd}, s{sT1} offen {gflags}')
        a(f's_mov_b64 exec, -1\n{L}_done:')
    if not early: a('s_barrier')
    a('s_branch L_hdma\nL_q2:')
    if not early: a(f'ds_write_b32 v{vZ}, v{vZ} offset:{L_CNT}\nds_write_b32 v{vZ}, v{vZ} offset:{L_CNT+4}\nds_write_b32 v{vZ}, v{vZ} offset:{L_CNT+8}\nds_write_b32 v{vZ}, v{vZ} offset:{L_CNT+12}\nds_write_b32 v{vZ}, v{vZ} offset:{L_CNT+20}')
    a(f'''
    s_cmp_eq_u32 s{sS}, 0
    s_cselect_b32 s{sT1}, s{sCTR}, {OOB:#x}
    v_lshlrev_b32 v{vT[4]}, 10, v{vLANE}
    s_mov_b64 exec, {(1 << NP) - 1}
    ''')
    vm('ctr', f'buffer_store_dword v{vZ}, v{vT[4]}, {WS_}, s{sT1} offen sc1')
    a('s_mov_b64 exec, -1')
    wait('x')
    xs = vACC
    for i in range(5):
        a(f'v_lshlrev_b32 v{xs + 2*i}, 16, v{vX + i}\nv_and_b32 v{xs + 2*i + 1}, s{sC2}, v{vX + i}')
    sm = vT[0]
    a(f'v_add_f32 v{sm}, v{xs}, v{xs+1}')
    for i in range(2, 10): a(f'v_add_f32 v{sm}, v{sm}, v{xs + i}')
    allreduce(sm, 'v_add_f32', vT[2])
    a(f'v_mul_f32 v{sm}, {INV640:#x}, v{sm}')
    vv = vT[3]
    for i in range(10): a(f'v_sub_f32 v{xs + i}, v{xs + i}, v{sm}')
    a(f'v_mul_f32 v{vv}, v{xs}, v{xs}')
    for i in range(1, 10): a(f'v_fmac_f32 v{vv}, v{xs + i}, v{xs + i}')
    allreduce(vv, 'v_add_f32', vT[2])
    a(f'v_mul_f32 v{vv}, {INV640:#x}, v{vv}')
    ln_consts(sm, vv, vT[4], vT[5], vT[6])
    for i in range(2): a(f'v_lshlrev_b32 v{vXS + i}, 16, v{vXS + i}')
    ln_apply([vXS, vXS + 1], vT[4], vT[5], vT[6], [vT[1], vT[2]])
    stamp('ln')
    onehot_chain([(vXS + i // 16, f'row_newbcast:{i % 16}', wqs + 4 * i) for i in range(20)],
                 pre=lambda k: wait(('wq', k + 1)) if k % 2 == 0 else None)
    g = gat
    a(f's_lshl_b32 s{sT0}, s{sSLOT}, 9\ns_add_u32 s{sT0}, s{sT0}, {QS:#x}')
    tagw([vD + i for i in range(4)], rnd=True)
    a(f'''
    s_waitcnt vmcnt(0)
    s_mov_b32 exec_hi, 0
    buffer_store_dwordx4 v[{vD}:{vD+3}], v{vDA}, {WS_}, s{sT0} offen sc1
    s_mov_b64 exec, -1
    ''')
    stamp('qpub')
    a(f'''
    s_lshl_b32 s{sT0}, s{sH}, 12
    s_add_u32 s{sT0}, s{sT0}, {QS:#x}
    s_mov_b32 s{sSPIN}, {spin}
    L_qpoll:
    ''')
    for i in range(4):
        a(f'buffer_load_dwordx4 v[{pA+4*i}:{pA+4*i+3}], v{vKV}, {WS_}, s{sT0} offen offset:{i * 1024} sc1')
    a('s_waitcnt vmcnt(0)')
    check(pA, g, 16)
    a(f'''
    s_cbranch_vccz L_qpoll_done
    s_sleep {qsleep}
    s_sub_u32 s{sSPIN}, s{sSPIN}, 1
    s_cbranch_scc0 L_qpoll
    L_qpoll_done:
    ''')
    stamp('qgot')
    for e in range(4): a(f'v_add_f32 v{g+e}, v{g+e}, v{g+4+e}\nv_add_f32 v{g+8+e}, v{g+8+e}, v{g+12+e}')
    for e in range(4): a(f'v_add_f32 v{g+e}, v{g+e}, v{g+8+e}')
    a(f'''
    v_and_b32 v{vT[0]}, 31, v{vLANE}
    v_lshrrev_b32 v{vT[1]}, 5, v{vLANE}
    v_permlane32_swap_b32 v{g}, v{g+2}
    v_permlane32_swap_b32 v{g+1}, v{g+3}
    v_lshl_add_u32 v{vT[0]}, v{vT[0]}, 1, v{vT[1]}
    v_add_f32 v{g}, v{g}, v{g+2}
    v_add_f32 v{g+1}, v{g+1}, v{g+3}
    v_lshlrev_b32 v{vT[0]}, 2, v{vT[0]}
    v_cvt_pk_bf16_f32 v{g}, v{g}, v{g+1}
    ds_write_b32 v{vT[0]}, v{g} offset:{L_Q}
    ''')
    if early: lds_add(L_CNT + 16)
    else: a('s_waitcnt lgkmcnt(0)\ns_barrier')
    a('L_hdma:')
    if ptest == 'ws':
        for b in (52, 56, 60): a(f's_add_u32 s{b}, s38, {0x1000000 * (b - 48):#x}\ns_addc_u32 s{b+1}, s39, 0')
    if (pre and not now) or ptest:
        a(f'''
        s_lshl_b32 s{sT0}, s2, 2
        s_add_u32 s{sT0}, s{sT0}, s{sW}
        s_lshl_b32 s{sT0}, s{sT0}, 10
        ''')
        j = 0
        for srd, n in ((WG_, 3), (WU_, 3), (WO_, 5)) + (((WD_, 3),) if pred else ()):
            for i in range(n):
                a(f's_add_u32 s{sT1}, s{sT0}, {i << 20}\ns_waitcnt vmcnt({FP - 1})')
                a(f'buffer_load_dwordx4 v[{gat + 4 * (j % 4)}:{gat + 4 * (j % 4) + 3}], v{vKV}, {srd}, s{sT1} offen {pflags}')
                j += 1
        stamp('pre')
        a(f's_cmp_eq_u32 s{sROLE}, 0\ns_cbranch_scc1 L_fin')
        if kgate: lds_gate(L_CNT + 20, 1)
    if vph: lds_gate(L_CNT + 20, 3)
    dma()
    stamp('dma')
    a('s_branch L_pub_done\nL_qread:')
    a(f'''
    v_lshlrev_b32 v{vT[0]}, 4, v{vC}
    ds_read_b128 v[{vQ}:{vQ+3}], v{vT[0]} offset:{L_Q}
    s_and_b32 s{sT0}, s{sW}, 3
    s_lshl_b32 s{sT0}, s{sT0}, 9
    v_add_u32 v{vDA}, s{sT0}, v{vDA}
    s_waitcnt lgkmcnt(0)
    ''')
    stamp('q')

    def reduce_tile(s, n, valid):
        A = [vACC + i if i < n else None for i in range(16)]
        B = []
        for jj in range(8):
            x, y = A[jj], A[jj + 8]
            if x is None: B.append(None); continue
            if y is None: a(f'v_add_f32_dpp v{x}, v{x}, v{x} row_ror:8 {DPPF}')
            else: a(f'v_add_f32_dpp v{x}, v{x}, v{x} row_ror:8 row_mask:0xf bank_mask:0x3')
            B.append(x)
        for jj in range(8):
            x, y = A[jj], A[jj + 8]
            if x is not None and y is not None:
                a(f'v_add_f32_dpp v{x}, v{y}, v{y} row_ror:8 row_mask:0xf bank_mask:0xc')
        C = []
        for jj in range(4):
            x = B[jj]
            d = vACC + 8 + jj
            a(f'v_add_f32_dpp v{d}, v{x}, v{x} row_shl:4 row_mask:0xf bank_mask:0x5')
            C.append(d)
        for jj in range(4):
            x, y = B[jj], B[jj + 4]
            z = y if y is not None else x
            a(f'v_add_f32_dpp v{C[jj]}, v{z}, v{z} row_shr:4 row_mask:0xf bank_mask:0xa')
        for jj in range(4): a(f'v_add_f32_dpp v{C[jj]}, v{C[jj]}, v{C[jj]} quad_perm:[2,3,0,1] {DPPF}')
        a(f'v_cndmask_b32 v{C[0]}, v{C[0]}, v{C[2]}, {sM1}\nv_cndmask_b32 v{C[1]}, v{C[1]}, v{C[3]}, {sM1}')
        for jj in range(2): a(f'v_add_f32_dpp v{C[jj]}, v{C[jj]}, v{C[jj]} quad_perm:[1,0,3,2] {DPPF}')
        a(f'v_cndmask_b32 v{s}, v{C[0]}, v{C[1]}, {sM0}')
        rbf(s, s)
        a(f'v_mul_f32 v{s}, {SCALE:#x}, v{s}')
        rbf(s, s)
        if valid:
            a(f'v_mov_b32 v{C[0]}, {NEGINF:#x}\nv_cndmask_b32 v{s}, v{C[0]}, v{s}, {valid}')
    def dots(r0, r1, a0):
        for jj in range(4):
            a(f'v_dot2_f32_bf16 v{a0}, v{r0 + jj}, v{vQ + jj}, {"0" if jj == 0 else "v%d" % a0}')
            a(f'v_dot2_f32_bf16 v{a0+1}, v{r1 + jj}, v{vQ + jj}, {"0" if jj == 0 else "v%d" % (a0+1)}')
    def claim():
        a(f'v_mov_b32 v{vTK}, 1\ns_mov_b64 exec, 1')
        vm('A', f'buffer_atomic_add v{vTK}, v{vZ}, {WS_}, s{sAOFF} offen sc0 sc1')
        a('s_mov_b64 exec, -1')
    def ticket():
        a(f'''
        v_readfirstlane_b32 s{sT0}, v{vTK}
        s_cmp_eq_u32 s{sAOFF}, s{sCTR}
        s_cselect_b32 s{sT0}, s{sT0}, {NCH}
        s_sub_u32 s100, s100, 1
        s_cselect_b32 s{sT0}, {NCH}, s{sT0}
        s_cmp_lt_u32 s{sT0}, s{sLIM}
        s_cselect_b32 s{sAOFF}, s{sCTR}, {OOB:#x}
        s_mul_i32 s{sNXT}, s{sT0}, {CU * NP}
        s_add_u32 s{sNXT}, s{sNXT}, s{sROT}
        s_add_u32 s{sNXT}, s{sNXT}, {OP}
        s_lshl_b32 s{sNXT}, s{sNXT}, 12
        s_and_b32 s{sNXT}, s{sNXT}, {MSK:#x}
        ''')
        if hx: xform(sNXT, sNXT)
        a(f'''
        s_cmp_lt_u32 s{sT0}, {NCH}
        s_cselect_b32 s{sNXT}, s{sNXT}, {OOB:#x}
        ''')
    def write_ml():
        a(f'''
        s_and_b32 s{sT0}, s{sW}, 3
        s_lshl_b32 s{sT0}, s{sT0}, 2
        v_mov_b32 v{vT[3]}, s{sT0}
        ds_write_b32 v{vT[3]}, v{vM} offset:{L_M}
        ds_write_b32 v{vT[3]}, v{vL} offset:{L_L}
        ''')

    nml = [0]
    def ml_final(always_store=False):
        L = f'L_ml{nml[0]}'; nml[0] += 1
        mq = gat
        a(f'''
        v_mov_b32 v{vT[6]}, 1
        s_mov_b64 exec, 1
        ds_add_rtn_u32 v{vT[6]}, v{vZ}, v{vT[6]} offset:{L_CNT + 8}
        s_mov_b64 exec, -1
        v_and_b32 v{vT[5]}, 3, v{vLANE}
        v_lshlrev_b32 v{vT[5]}, 2, v{vT[5]}
        s_mov_b32 s{sT1}, {OOB:#x}
        s_waitcnt lgkmcnt(0)
        v_readfirstlane_b32 s{sT0}, v{vT[6]}
        s_cmp_lg_u32 s{sT0}, 3
        s_cbranch_scc1 {L}
        ds_read_b32 v{vT[4]}, v{vT[5]} offset:{L_M}
        ds_read_b32 v{mq+1}, v{vT[5]} offset:{L_L}
        v_mov_b32 v{mq+2}, v{vTAG}
        v_mov_b32 v{mq+3}, v{vTAG}
        s_lshl_b32 s{sT1}, s{sSLOT}, 10
        s_add_u32 s{sT1}, s{sT1}, {P1 + 512:#x}
        s_waitcnt lgkmcnt(0)
        v_max_f32_dpp v{mq}, v{vT[4]}, v{vT[4]} quad_perm:[1,0,3,2] {DPPF}
        v_max_f32_dpp v{mq}, v{mq}, v{mq} quad_perm:[2,3,0,1] {DPPF}
        v_sub_f32 v{vT[4]}, v{vT[4]}, v{mq}
        v_mul_f32 v{vT[4]}, s{sC1}, v{vT[4]}
        v_exp_f32 v{vT[4]}, v{vT[4]}
        v_mul_f32 v{mq+1}, v{mq+1}, v{vT[4]}
        ds_write_b32 v{vT[5]}, v{vT[4]} offset:{L_F}
        v_add_f32_dpp v{mq+1}, v{mq+1}, v{mq+1} quad_perm:[1,0,3,2] {DPPF}
        v_add_f32_dpp v{mq+1}, v{mq+1}, v{mq+1} quad_perm:[2,3,0,1] {DPPF}
        ''')
        tagw([mq, mq + 1])
        st = f'buffer_store_dwordx4 v[{mq}:{mq+3}], v{vZ}, {WS_}, s{sT1} offen sc1'
        if always_store:
            a(f'{L}:\ns_mov_b64 exec, 1'); vm('mls', st); a('s_mov_b64 exec, -1')
        else:
            a(f's_mov_b64 exec, 1\n{st}\ns_mov_b64 exec, -1\n{L}:')
    def stream():
        dyn = NCH > 0
        NL = NE * U
        NT = (NL + 15) // 16
        N = 2 * NL
        assert NE - NO <= 2
        for e in range(NE - NO):
            a(f'''
            s_add_u32 s{sEX0 + e}, s{sIDX}, {NO * 32 + e * 16}
            s_lshl_b32 s{sEX0 + e}, s{sEX0 + e}, 12
            s_and_b32 s{sEX0 + e}, s{sEX0 + e}, {MSK:#x}
            s_cmp_eq_u32 s{sPAR}, 0
            s_cselect_b32 s{sEX0 + e}, s{sEX0 + e}, {OOB:#x}
            ''')
        sVAL = {}
        free = [sVa, sVb]
        for t in range(NT):
            me = sum(1 << c for c in range(16) if 16 * t + c < NL)
            mo = sum(1 << c for c in range(16) if 16 * t + c < NL and not (4 * XP <= 16 * t + c < 4 * XP + 4 * (NE - NO)))
            if me == 0xffff and mo == 0xffff: continue
            sp = free.pop(0); lo = int(sp[2:].split(':')[0])
            sVAL[t] = sp
            a(f's_mov_b32 s{lo}, {me * 0x10001:#x}\ns_mov_b32 s{lo+1}, {mo * 0x10001:#x}\ns_cmp_eq_u32 s{sPAR}, 0\ns_cselect_b32 s{lo}, s{lo}, s{lo+1}\ns_mov_b32 s{lo+1}, s{lo}')
        q.clear()
        for x in range(S): q.append(('r', x))
        done = [S - F]
        def wait_n(n):
            if len(q) - done[0] > n:
                a(f's_waitcnt vmcnt({n})'); done[0] = len(q) - n
        def wait_t(tag):
            idx = max(i for i, t in enumerate(q) if t == tag)
            wait_n(len(q) - 1 - idx)
        assert 4 * NK <= S
        dKb = [[ring + ((N + 2 * NK * b + i) % S) * 4 for i in range(NK)] for b in range(2)]
        dVb = [[ring + ((N + 2 * NK * b + NK + i) % S) * 4 for i in range(NK)] for b in range(2)]
        def dload(m, i, b=0):
            r = (dKb if m == 'K' else dVb)[b][i]
            vm(('d' + m, i), f'buffer_load_dwordx4 v[{r}:{r+3}], v{vKV if i < 4 else vKV2}, {K_ if m == "K" else V_}, s{sNXT} offen offset:{(i % 4) * 1024} {kvflags if m == "K" else vflags}')
        NTOT = N + (((FD if FD else 2 * NK)) if dyn else 0)
        PA = (2 * NK - FD - 1) if FD else NK - 1
        if dyn:
            a(f'''
            s_and_b32 s{sT0}, s{sW}, {NP - 1}
            s_mul_i32 s{sT1}, s{sT0}, {CU}
            s_add_u32 s{sROT}, s{sROT}, s{sT1}
            s_lshl_b32 s{sT0}, s{sT0}, 10
            s_add_u32 s{sCTR}, s{sCTR}, s{sT0}
            s_mov_b32 s{sAOFF}, s{sCTR}
            s_mov_b32 s100, {NCH + 1}
            ''')
        st = dict(i=S)
        def issue_next(paced=True):
            x = st['i']
            if paced: wait_n(Fpat[x % len(Fpat)] - 1)
            if x < N:
                issue_static('K' if x < NL else 'V', x % NL, x, NE - NO)
                if dyn and x == N - F - 2: claim()
                if not dyn and x == N - 1: lds_add(L_CNT)
            else:
                if x == N:
                    wait_t('A')
                    ticket()
                    a(f's_cbranch_scc1 L_t0ok')
                    lds_add(L_CNT)
                    ml_final()
                    a('L_t0ok:')
                i = x - N
                dload('K' if i < NK else 'V', i % NK)
                if i == PA: claim()
            st['i'] += 1
        def softmax():
            a(f'v_max_f32 v{vM}, v{vSC[0]}, v{vSC[1]}')
            for t in range(2, NT): a(f'v_max_f32 v{vM}, v{vM}, v{vSC[t]}')
            allreduce(vM, 'v_max_f32', vT[1])
            for t in range(NT): a(f'v_sub_f32 v{vSC[t]}, v{vSC[t]}, v{vM}')
            for t in range(NT): a(f'v_mul_f32 v{vSC[t]}, s{sC1}, v{vSC[t]}')
            for t in range(NT): a(f'v_exp_f32 v{vSC[t]}, v{vSC[t]}')
            for t in range(NT): a(f'v_cvt_pk_bf16_f32 v{vSC[t]}, v{vSC[t]}, v{vSC[t]}')
            issue_next()
            a(f'v_lshlrev_b32 v{vL}, 16, v{vSC[0]}')
            for t in range(1, NT): a(f'v_lshlrev_b32 v{vT[3]}, 16, v{vSC[t]}\nv_add_f32 v{vL}, v{vL}, v{vT[3]}')
            allreduce(vL, 'v_add_f32', vT[1])
            write_ml()
            if not dyn: ml_final()
            stamp('k')
            ands(vSC[0], 'row_newbcast:0', 0)
        c = 0
        while c < N:
            if st['i'] < NTOT and st['i'] - c < S: issue_next()
            budget = 4
            while c < N and budget > 0:
                step = 2 if c < NL else 1
                if st['i'] < NTOT and st['i'] - c < F + step: break
                if c < NL:
                    wait_t(('r', c + 1))
                    dots(ring + (c % S) * 4, ring + ((c + 1) % S) * 4, vACC + c % 16)
                    if (c + 2) % 16 == 0 or c + 2 == NL:
                        if st['i'] - (c + 2) < S and boost: issue_next(paced=False)
                        t = c // 16
                        reduce_tile(vSC[t], c + 2 - 16 * t, sVAL.get(t))
                        if t == (NT - 1 if vph else 3): lds_add(L_CNT + 20)
                        budget = 0
                    if c + 2 == NL:
                        issue_next()
                        softmax()
                else:
                    n = c - NL
                    if n + 1 < NL: ands(vSC[(n+1) // 16], f'row_newbcast:{(n+1) % 16}', n + 1)
                    wait_t(('r', c))
                    mfma(ring + (c % S) * 4, n, first=(n == 0))
                c += step; budget -= step
        if not dyn: return
        while st['i'] < NTOT: issue_next(paced=False)
        stamp('s')
        a(f's_cmp_eq_u32 s{sNXT}, {OOB:#x}\ns_cbranch_scc0 L_dyn0\ns_waitcnt vmcnt(0)\ns_branch L_dyn_done')
        def body(mode, b):
            more = mode != 'last'
            dK, dV = dKb[b], dVb[b]
            q.clear()
            for i in range(NK): q.append(('dV', i))
            if more:
                for i in range(NK): dload('K', i, 1 - b)
                claim()
            if mode == 'eager':
                for i in range(NK): dload('V', i, 1 - b)
            for i in range(0, NK, 2):
                dots(dK[i], dK[i+1], vACC + i)
            s = vSC[0]
            reduce_tile(s, NK, sLO8)
            mn = vT[0]
            a(f'v_max_f32 v{mn}, v{s}, v{vM}')
            allreduce(mn, 'v_max_f32', vT[1])
            a(f'''
            v_sub_f32 v{s}, v{s}, v{mn}
            v_sub_f32 v{vT[2]}, v{vM}, v{mn}
            v_mul_f32 v{s}, s{sC1}, v{s}
            v_mul_f32 v{vT[2]}, s{sC1}, v{vT[2]}
            v_exp_f32 v{s}, v{s}
            v_exp_f32 v{vT[2]}, v{vT[2]}
            v_mov_b32 v{vM}, v{mn}
            v_cvt_pk_bf16_f32 v{s}, v{s}, v{s}
            ''')
            for e in range(4): a(f'v_mul_f32 v{vD+e}, v{vD+e}, v{vT[2]}')
            def lsum():
                a(f'v_lshlrev_b32 v{vT[3]}, 16, v{s}')
                allreduce(vT[3], 'v_add_f32', vT[1])
                a(f'v_fma_f32 v{vL}, v{vL}, v{vT[2]}, v{vT[3]}')
            if not more:
                lsum()
                write_ml()
                ml_final(always_store=True)
            ands(s, 'row_newbcast:0', 0)
            for i in range(NK):
                if i + 1 < NK: ands(s, f'row_newbcast:{i+1}', i + 1)
                a(f's_waitcnt vmcnt({len(q) - 1 - i})')
                if mode == 'norm': dload('V', i, 1 - b)
                mfma(dV[i], i)
            if more: lsum()
        if FD:
            NP8 = 2 * NK
            assert NK == 4 and 0 <= PA < FD and NP8 - FD >= 2
            def pos(p): return ('K', p) if p < NK else ('V', p - NK)
            def smooth(b, p0, last, final=True):
                dK, dV = dKb[b], dVb[b]
                s = vSC[0]; mn = vT[0]
                def lsum():
                    a(f'v_lshlrev_b32 v{vT[3]}, 16, v{s}')
                    allreduce(vT[3], 'v_add_f32', vT[1])
                    a(f'v_fma_f32 v{vL}, v{vL}, v{vT[2]}, v{vT[3]}')
                def pump(p):
                    idx = q.index(('c', p))
                    if not (last and p == p0): a(f's_waitcnt vmcnt({len(q) - 1 - idx})')
                    if last: return
                    t = p + FD
                    if t < NP8:
                        m, i = pos(t); dload(m, i, b); q[-1] = ('c', t)
                    else:
                        if t == NP8:
                            ticket()
                            a(f's_cbranch_scc0 L_dyn_last{b}')
                            if eager: a(f's_cmp_ge_u32 s{sT0}, {max(0, NCH - eager)}\ns_cbranch_scc1 L_sw{b}')
                            snap[b] = list(q)
                        m, i = pos(t - NP8); dload(m, i, 1 - b); q[-1] = ('n', t - NP8)
                        if t - NP8 == PA: claim()
                for p in range(p0, NP8):
                    if p == 4:
                        if not last: pump(4)
                        a(f'v_max_f32 v{mn}, v{s}, v{vM}')
                        allreduce(mn, 'v_max_f32', vT[1])
                        a(f'''
                        v_sub_f32 v{s}, v{s}, v{mn}
                        v_sub_f32 v{vT[2]}, v{vM}, v{mn}
                        v_mul_f32 v{s}, s{sC1}, v{s}
                        v_mul_f32 v{vT[2]}, s{sC1}, v{vT[2]}
                        v_exp_f32 v{s}, v{s}
                        v_exp_f32 v{vT[2]}, v{vT[2]}
                        v_mov_b32 v{vM}, v{mn}
                        v_cvt_pk_bf16_f32 v{s}, v{s}, v{s}
                        ''')
                        for e in range(4): a(f'v_mul_f32 v{vD+e}, v{vD+e}, v{vT[2]}')
                        if last and final:
                            lsum(); write_ml(); ml_final(always_store=True)
                        ands(s, 'row_newbcast:0', 0)
                        ands(s, 'row_newbcast:1', 1)
                        if last: pump(4)
                        mfma(dV[0], 0)
                        continue
                    if p > 4 and p + 1 < NP8: ands(s, f'row_newbcast:{p - 3}', p - 3)
                    pump(p)
                    if p == 1: dots(dK[0], dK[1], vACC)
                    if p == 3:
                        dots(dK[2], dK[3], vACC + 2)
                        reduce_tile(s, NK, sLO8)
                    if p > 4: mfma(dV[p - 4], p - 4)
                if not (last and final): lsum()
            snap = {}
            for b in range(2):
                a(f'L_dyn{b}:')
                q.clear()
                for p in range(FD):
                    q.append(('c', p))
                    if p == PA: q.append('A')
                smooth(b, 0, False)
                if b == 1: a('s_branch L_dyn0')
            if eager:
                for b in range(2):
                    a(f'L_sw{b}:')
                    q.clear(); q.extend(snap[b])
                    for i in range(NK): dload('K', i, 1 - b)
                    claim()
                    for i in range(NK): dload('V', i, 1 - b)
                    smooth(b, NP8 - FD, True, final=False)
                    a(f's_branch L_e{1 - b}')
                for b in range(2):
                    a(f'L_e{b}:\ns_waitcnt vmcnt({NK})')
                    ticket()
                    a(f's_cbranch_scc0 L_el{b}')
                    body('eager', b)
                    if b == 1: a('s_branch L_e0')
                for b in range(2):
                    a(f'L_el{b}:')
                    lds_add(L_CNT)
                    body('last', b)
                    a('s_branch L_dyn_done')
            for b in range(2):
                a(f'L_dyn_last{b}:')
                q.clear(); q.extend(snap[b])
                lds_add(L_CNT)
                smooth(b, NP8 - FD, True)
                if b == 0: a('s_branch L_dyn_done')
            a('L_dyn_done:')
            return
        for b in range(2):
            a(f'L_dyn{b}:\ns_waitcnt vmcnt({NK})')
            ticket()
            a(f's_cbranch_scc0 L_dyn_last{b}')
            if eager:
                a(f's_cmp_ge_u32 s{sT0}, {max(0, NCH - eager)}\ns_cbranch_scc1 L_dyn_eager{b}')
            body('norm', b)
            if b == 1: a('s_branch L_dyn0')
        for b in range(2):
            if eager:
                a(f'L_dyn_eager{b}:')
                body('eager', b)
                a(f's_branch L_dyn{1 - b}')
        for b in range(2):
            a(f'L_dyn_last{b}:')
            lds_add(L_CNT)
            body('last', b)
            if b == 0: a('s_branch L_dyn_done')
        a('L_dyn_done:')
    stream()
    a('L_sdone:')
    a(f'''
    v_lshrrev_b32 v{vT[0]}, 5, v{vLANE}          ; half
    v_and_b32 v{vT[1]}, 31, v{vLANE}
    v_lshlrev_b32 v{vT[2]}, 3, v{vT[0]}
    v_lshlrev_b32 v{vT[3]}, 10, v{vT[0]}
    v_lshl_add_u32 v{vT[3]}, v{vT[1]}, 4, v{vT[3]}
    v_mov_b32 v{vT[6]}, 1
    s_mov_b32 exec_hi, 0
    ds_write_b128 v{vDA}, v[{vD}:{vD+3}] offset:{L_OP}
    s_mov_b64 exec, 1
    ds_add_rtn_u32 v{vT[6]}, v{vZ}, v{vT[6]} offset:{L_CNT + 4}
    s_mov_b64 exec, -1
    v_lshlrev_b32 v{vT[4]}, 4, v{vT[1]}
    v_lshl_add_u32 v{vT[4]}, v{vT[0]}, 3, v{vT[4]}
    s_lshl_b32 s{sT1}, s{sSLOT}, 10
    s_add_u32 s{sT1}, s{sT1}, {P1:#x}
    s_waitcnt lgkmcnt(0)
    v_readfirstlane_b32 s{sT0}, v{vT[6]}
    ''')
    stamp('v')
    t = vACC
    mm = vA[0]
    a(f'''
    s_cmp_lg_u32 s{sT0}, 3
    s_cbranch_scc1 L_pub_done
    s_setprio 3
    ds_read_b64 v[{mm}:{mm+1}], v{vT[2]} offset:{L_F}
    ''')
    for i in range(2): a(f'ds_read_b128 v[{g + 4*i}:{g + 4*i + 3}], v{vT[3]} offset:{L_OP + 512 * i}')
    a(f'v_mov_b32 v{vT[6]}, 1\ns_waitcnt lgkmcnt(1)')
    for e in range(4): a(f'v_mul_f32 v{t+e}, v{mm}, v{g + e}')
    a('s_waitcnt lgkmcnt(0)')
    for e in range(4): a(f'v_fmac_f32 v{t+e}, v{mm+1}, v{g + 4 + e}')
    a(f'''
    v_permlane32_swap_b32 v{t}, v{t+2}
    v_permlane32_swap_b32 v{t+1}, v{t+3}
    v_add_f32 v{t}, v{t}, v{t+2}
    v_add_f32 v{t+1}, v{t+1}, v{t+3}
    ''')
    tagw([t, t + 1])
    a(f'''
    buffer_store_dwordx2 v[{t}:{t+1}], v{vT[4]}, {WS_}, s{sT1} offen sc1
    s_mov_b64 exec, 1
    ds_add_u32 v{vZ}, v{vT[6]} offset:{L_CNT + 4}
    s_mov_b64 exec, -1
    s_setprio 0
    ''')
    if 'pub' in slist:
        a(f'''
        s_memrealtime s[96:97]
        s_add_u32 s24, s38, 0x10000000
        s_addc_u32 s25, s39, 0
        s_lshl_b32 s{sT2}, s2, 6
        s_add_u32 s{sT2}, s{sT2}, {4 * 15}
        v_mov_b32 v{vT[5]}, s{sT2}
        s_waitcnt lgkmcnt(0)
        v_mov_b32 v{vT[6]}, s96
        s_mov_b64 exec, 1
        global_store_dword v{vT[5]}, v{vT[6]}, s[24:25]
        s_mov_b64 exec, -1
        ''')
    a('L_pub_done:')
    if tprio: a('s_setprio 0')
    if notail: a('s_branch L_fin')
    a(f's_cmp_eq_u32 s{sROLE}, 0\ns_cbranch_scc1 L_fin')
    vDA2 = vDA; vRA = vM
    wt = ring
    a(f'''
    v_bfe_u32 v{vT[0]}, v{vLANE}, 3, 1               ; rr
    v_and_b32 v{vT[1]}, 7, v{vLANE}                  ; cc
    v_and_b32 v{vT[2]}, 1, v{vG}                     ; b4
    v_lshrrev_b32 v{vT[3]}, 1, v{vG}                 ; b5
    s_lshl_b32 s{sT3}, s{sW}, 9
    v_lshlrev_b32 v{vDA2}, 8, v{vT[0]}
    v_lshl_add_u32 v{vDA2}, v{vT[1]}, 5, v{vDA2}
    v_lshl_add_u32 v{vDA2}, v{vT[2]}, 4, v{vDA2}
    v_add_u32 v{vDA2}, s{sT3}, v{vDA2}
    v_lshlrev_b32 v{vRA}, 10, v{vG}
    v_lshl_add_u32 v{vRA}, v{vC}, 4, v{vRA}
    s_cmp_eq_u32 s{sROLE}, 2
    s_cbranch_scc1 L_g
    ''')
    nf = [0]
    def fetch(n):
        L = f'L_fetch{nf[0]}'; nf[0] += 1
        a(f's_cmp_lt_u32 s{sW}, 4\ns_cbranch_scc1 {L}')
        lds_gate(L_CNT + 12, 4)
        a(f's_sub_u32 s{sT3}, s{sW}, 4\ns_mul_i32 s{sT3}, s{sT3}, {10 * 1024}\nv_add_u32 v{vL}, s{sT3}, v{vKV}')
        for i in range(n): a(f'ds_read_b128 v[{wt + 4*i}:{wt + 4*i + 3}], v{vL} offset:{L_WT + 1024 * i}')
        a(f'{L}:')
    fetch(8)
    a(f'''
    v_bfe_u32 v{vT[4]}, v{vLANE}, 2, 1
    v_lshl_add_u32 v{vT[4]}, v{vG}, 1, v{vT[4]}      ; s
    v_lshlrev_b32 v{vT[4]}, 10, v{vT[4]}
    v_and_b32 v{vT[5]}, 3, v{vLANE}
    v_lshl_add_u32 v{vT[5]}, v{vT[0]}, 2, v{vT[5]}   ; chunk
    v_lshl_add_u32 v{vT[5]}, v{vT[5]}, 4, v{vT[4]}
    s_lshl_b32 s{sT0}, s{sGAM}, 2
    s_lshr_b32 s{sT1}, s{sW}, 1
    s_add_u32 s{sT0}, s{sT0}, s{sT1}
    s_lshl_b32 s{sT0}, s{sT0}, 13
    s_add_u32 s{sT0}, s{sT0}, {P1:#x}
    s_and_b32 s{sT1}, s{sW}, 1
    s_lshl_b32 s{sT1}, s{sT1}, 8
    s_add_u32 s{sT1}, s{sT1}, s{sT0}
    ''')
    if p2nat:
        a(f'''
        s_mul_i32 s{sT2}, s{sGAM}, 2560
        s_lshl_b32 s{sT3}, s{sCS}, 8
        s_add_u32 s{sT2}, s{sT2}, s{sT3}
        s_add_u32 s{sT2}, s{sT2}, {P2:#x}
        v_lshl_add_u32 v{vT[0]}, v{vC}, 2, v{vG}
        v_lshlrev_b32 v{vT[0]}, 2, v{vT[0]}
        ''')
    else:
        a(f'''
        s_lshl_b32 s{sT2}, s{sCS}, 11
        s_lshl_b32 s{sT3}, s{sGAM}, 6
        s_add_u32 s{sT2}, s{sT2}, s{sT3}
        s_add_u32 s{sT2}, s{sT2}, {P2:#x}
        v_and_b32 v{vT[0]}, 3, v{vC}
        v_lshl_add_u32 v{vT[0]}, v{vT[0]}, 2, v{vG}
        v_lshlrev_b32 v{vT[0]}, 2, v{vT[0]}
        v_lshrrev_b32 v{vT[1]}, 2, v{vC}
        v_lshl_add_u32 v{vT[0]}, v{vT[1]}, 9, v{vT[0]}
        ''')
    lds_gate(L_CNT + 8, 4)
    def ld1(b):
        a(f'buffer_load_dwordx4 v[{b}:{b+3}], v{vT[5]}, {WS_}, s{sT1} offen sc1')
        a(f'buffer_load_dwordx4 v[{b+4}:{b+7}], v{vT[5]}, {WS_}, s{sT1} offen offset:128 sc1')
    b0 = pS[0]
    a(f's_mov_b32 s{sSPIN}, {spin}\nL_pml:')
    a(f'buffer_load_dwordx4 v[{b0+8}:{b0+11}], v{vT[4]}, {WS_}, s{sT0} offen offset:512 sc1')
    ld1(b0)
    a('s_waitcnt vmcnt(2)')
    check(b0 + 8, g + 8, 4)
    a(f's_cbranch_vccz L_pml_done\ns_sub_u32 s{sSPIN}, s{sSPIN}, 1\ns_cbranch_scc0 L_pml\nL_pml_done:')
    ld1(pS[1])
    stamp('ml')
    mS, lS = g + 8, g + 9
    M = vT[2]; tt = vT[3]
    a(f'''
    v_max_f32_dpp v{M}, v{mS}, v{mS} row_half_mirror {DPPF}
    v_mov_b32 v{tt}, v{M}
    v_permlane16_swap_b32 v{M}, v{tt}
    v_max_f32 v{M}, v{M}, v{tt}
    v_mov_b32 v{tt}, v{M}
    v_permlane32_swap_b32 v{M}, v{tt}
    v_max_f32 v{M}, v{M}, v{tt}
    v_sub_f32 v{mS}, v{mS}, v{M}
    v_mul_f32 v{mS}, s{sC1}, v{mS}
    v_exp_f32 v{mS}, v{mS}
    v_mul_f32 v{lS}, v{lS}, v{mS}
    v_add_f32_dpp v{lS}, v{lS}, v{lS} row_half_mirror {DPPF}
    v_mov_b32 v{tt}, v{lS}
    v_permlane16_swap_b32 v{lS}, v{tt}
    v_add_f32 v{lS}, v{lS}, v{tt}
    v_mov_b32 v{tt}, v{lS}
    v_permlane32_swap_b32 v{lS}, v{tt}
    v_add_f32 v{lS}, v{lS}, v{tt}
    v_rcp_f32 v{tt}, v{lS}
    v_mul_f32 v{mS}, v{mS}, v{tt}
    ''')
    a('s_waitcnt vmcnt(2)')
    check(b0, g, 8)
    a('s_cbranch_vccz L_po_done\ns_waitcnt vmcnt(0)')
    check(pS[1], g, 8)
    a('s_cbranch_vccz L_po_done')
    poll2(ld1, 8, g, 2, 1, 0)
    a('L_po_done:')
    if tprio: a('s_setprio 2')
    stamp('h1')
    for i in range(8): a(f'v_mul_f32 v{g+i}, v{g+i}, v{mS}')
    for e in range(4): a(f'v_permlane32_swap_b32 v{g+e}, v{g+4+e}')
    for e in range(4): a(f'v_add_f32 v{g+e}, v{g+e}, v{g+4+e}')
    a(f'''
    v_permlane16_swap_b32 v{g}, v{g+2}
    v_permlane16_swap_b32 v{g+1}, v{g+3}
    v_add_f32 v{g}, v{g}, v{g+2}
    v_add_f32 v{g+1}, v{g+1}, v{g+3}
    v_add_f32_dpp v{g+2}, v{g}, v{g} row_shl:4 row_mask:0xf bank_mask:0x5
    v_add_f32_dpp v{g+3}, v{g+1}, v{g+1} row_shl:4 row_mask:0xf bank_mask:0x5
    v_add_f32_dpp v{g+2}, v{g}, v{g} row_shr:4 row_mask:0xf bank_mask:0xa
    v_add_f32_dpp v{g+3}, v{g+1}, v{g+1} row_shr:4 row_mask:0xf bank_mask:0xa
    v_cvt_pk_bf16_f32 v{g+2}, v{g+2}, v{g+2}
    v_cvt_pk_bf16_f32 v{g+3}, v{g+3}, v{g+3}
    ''')
    onehot_chain([(g + 2 + i // 4, f'quad_perm:[{i%4},{i%4},{i%4},{i%4}]', wt + 4 * i) for i in range(8)])
    write_d_rr(L_ZP)
    a(f's_cmp_lg_u32 s{sW}, 0\ns_cbranch_scc1 L_fin')
    lds_reduce16(L_ZP, g)
    lds_reduce16b(g)
    tagw([g])
    a(f'buffer_store_dword v{g}, v{vT[0]}, {WS_}, s{sT2} offen sc1')
    stamp('w')
    a('s_branch L_fin')
    wD = ring + 40
    vHA = [vQ, vQ + 1, vQ + 2]; vPA = vQ + 3; vXv = [vSC[0], vSC[1], vSC[2]]; vCS = vSC[3]; vWA = vSC[4]
    a('L_g:')
    a(f's_mul_i32 s{sT3}, s{sW}, 80\nv_and_b32 v{vT[5]}, 3, v{vLANE}')
    for k in range(3):
        g_rowbase(vHA[k], k, vT[4])
        if k < 2: a(f'v_lshl_add_u32 v{vHA[k]}, v{vT[5]}, 1, v{vHA[k]}')
        else:
            a(f'''
            v_lshl_add_u32 v{vHA[k]}, v{vT[5]}, 1, v{vHA[k]}
            v_lshrrev_b32 v{vT[4]}, 1, v{vT[5]}
            v_and_b32 v{vT[4]}, v{vT[4]}, v{vT[2]}
            v_lshlrev_b32 v{vT[4]}, 3, v{vT[4]}
            v_sub_u32 v{vHA[k]}, v{vHA[k]}, v{vT[4]}
            ''')
        a(f'v_add_u32 v{vHA[k]}, s{sT3}, v{vHA[k]}\nv_lshlrev_b32 v{vHA[k]}, 1, v{vHA[k]}')
        a(f'buffer_load_ushort v{vXv[k]}, v{vHA[k]}, {X_}, 0 offen')
        a(f'v_lshlrev_b32 v{vHA[k]}, 1, v{vHA[k]}')
    a(f'''
    v_mul_u32_u24 v{vWA}, 1280, v{vG}
    v_lshl_add_u32 v{vWA}, v{vC}, 4, v{vWA}
    v_bfe_u32 v{vPA}, v{vLANE}, 2, 1
    v_lshl_add_u32 v{vPA}, v{vG}, 1, v{vPA}
    v_mul_u32_u24 v{vPA}, {2560 if p2nat else 64}, v{vPA}
    v_lshl_add_u32 v{vT[4]}, v{vT[0]}, 2, v{vT[5]}
    v_lshl_add_u32 v{vPA}, v{vT[4]}, 3, v{vPA}
    ''')
    fetch(10)
    if not dearly: lds_gate(L_CNT + 4, 5)
    else: a('s_waitcnt lgkmcnt(0)')
    a(f'''
    s_mul_i32 s{sT0}, s{sFS}, {32 * 1280}
    s_lshl_b32 s{sT2}, s{sW}, 8
    s_add_u32 s{sT0}, s{sT0}, s{sT2}
    s_cmp_gt_u32 s{sW}, 4
    s_cbranch_scc1 L_g_nod
    ''')
    if not now:
        for i in range(8):
            if i: a(f's_add_u32 s{sT0}, s{sT0}, {4 * 1280}')
            a(f'buffer_load_dwordx4 v[{wD+4*i}:{wD+4*i+3}], v{vWA}, {WD_}, s{sT0} offen {dflags}')
    a(f's_waitcnt vmcnt({0 if now else 8})\nL_g_nod:\nv_mov_b32 v{g}, 0x3f803f80')
    onehot_chain([(g, 'quad_perm:[0,0,0,0]', wt + 4 * i) for i in range(10)])
    write_d_rr(L_ZP)
    lds_reduce16(L_ZP, g)
    lds_reduce16b(g)
    a(f'''
    v_mov_b32 v{vCS}, v{g}
    s_mul_i32 s{sT0}, s{sW}, {320 if p2nat else 2560}
    s_add_u32 s{sT0}, s{sT0}, {P2:#x}
    s_lshl_b32 s{sT3}, s{sW}, 3
    v_mov_b32 v{vT[0]}, s{sT3}
    s_mul_i32 s{sT2}, s{sFS}, 2560
    s_lshl_b32 s{sT1}, s{sW}, 9
    s_add_u32 s{sT2}, s{sT2}, s{sT1}
    s_add_u32 s{sT2}, s{sT2}, {P3:#x}
    v_lshlrev_b32 v{vT[1]}, 5, v{vC}
    v_lshl_add_u32 v{vT[1]}, v{vG}, 4, v{vT[1]}
    s_waitcnt vmcnt(0)
    ''')
    for k in range(3): a(f'v_lshlrev_b32 v{vXv[k]}, 16, v{vXv[k]}')
    stamp('gw')
    def ld2(b):
        for i in range(5): a(f'buffer_load_dwordx2 v[{b+2*i}:{b+2*i+1}], v{vPA}, {WS_}, s{sT0} offen offset:{(64 if p2nat else 512)*i} sc1')
    poll2(ld2, 10, g, 5, fast[1], thr[1])
    if tprio: a('s_setprio 2')
    stamp('h2')
    for i in range(5): a(f'v_permlane32_swap_b32 v{g+i}, v{g+5+i}')
    for i in range(5): a(f'v_add_f32 v{g+i}, v{g+i}, v{g+5+i}')
    z = [g + 10, g + 11, g + 12]
    a(f'''
    v_mov_b32 v{g+5}, v{g+4}
    v_permlane16_swap_b32 v{g}, v{g+1}
    v_permlane16_swap_b32 v{g+2}, v{g+3}
    v_permlane16_swap_b32 v{g+4}, v{g+5}
    v_add_f32 v{g}, v{g}, v{g+1}
    v_add_f32 v{g+2}, v{g+2}, v{g+3}
    v_add_f32 v{g+4}, v{g+4}, v{g+5}
    ''')
    for k in range(3): a(f'v_add_f32_dpp v{z[k]}, v{g+2*k}, v{g+2*k} row_shl:4 row_mask:0xf bank_mask:0x5')
    for k in range(3): a(f'v_add_f32_dpp v{z[k]}, v{g+2*k}, v{g+2*k} row_shr:4 row_mask:0xf bank_mask:0xa')
    for k in range(2): a(f'v_cvt_pk_bf16_f32 v{z[k]}, v{z[k]}, v{z[k]}')
    a(f'v_mov_b32_dpp v{z[2]}, v{z[2]} quad_perm:[2,3,0,1] row_mask:0xa bank_mask:0xf')
    for k in range(2): a(f'v_lshlrev_b32 v{z[k]}, 16, v{z[k]}')
    a(f'v_cvt_pk_bf16_f32 v{z[2]}, v{z[2]}, v{z[2]}')
    for k in range(2): a(f'v_add_f32 v{z[k]}, v{z[k]}, v{vXv[k]}')
    a(f'v_lshlrev_b32 v{z[2]}, 16, v{z[2]}')
    for k in range(2): a(f'v_cvt_pk_bf16_f32 v{z[k]}, v{z[k]}, v{z[k]}')
    a(f'v_add_f32 v{z[2]}, v{z[2]}, v{vXv[2]}\nv_cvt_pk_bf16_f32 v{z[2]}, v{z[2]}, v{z[2]}')
    hh = [g, g + 1, g + 2]; s1, s2, t1, t2 = g + 4, g + 5, g + 6, g + 7
    side = []
    for k in range(3): side.append(f'v_lshlrev_b32 v{hh[k]}, 16, v{z[k]}')
    side += [f'v_add_f32 v{s1}, v{hh[0]}, v{hh[1]}', f'v_mul_f32 v{s2}, v{hh[0]}, v{hh[0]}', f'v_mul_f32 v{t1}, 0.5, v{hh[2]}',
             f'v_fmac_f32 v{s2}, v{hh[1]}, v{hh[1]}', f'v_add_f32 v{s1}, v{s1}, v{t1}', f'v_fmac_f32 v{s2}, v{t1}, v{hh[2]}']
    for k in range(3): side.append(f'ds_write_b32 v{vHA[k]}, v{hh[k]} offset:{L_HH}')
    for sel in ('quad_perm:[1,0,3,2]', 'quad_perm:[2,3,0,1]', 'row_ror:8'):
        side += [f'v_add_f32_dpp v{s1}, v{s1}, v{s1} {sel} {DPPF}', f'v_add_f32_dpp v{s2}, v{s2}, v{s2} {sel} {DPPF}', None]
    side += [f'v_permlane16_swap_b32 v{s1}, v{s2}', f'v_add_f32 v{s1}, v{s1}, v{s2}', f'v_mov_b32 v{t1}, v{s1}', None,
             f'v_permlane32_swap_b32 v{s1}, v{t1}', f'v_add_f32 v{s1}, v{s1}, v{t1}']
    def pre(k):
        cnt = 0
        while side and cnt < 4:
            x = side.pop(0)
            if x is None: break
            a(x); cnt += 1
    onehot_chain([(z[k], f'quad_perm:[{n},{n},{n},{n}]', wt + 4 * i) for i, (k, n) in enumerate(GSTEPS)], pre=pre)
    while side:
        x = side.pop(0)
        if x: a(x)
    a(f'''
    v_lshlrev_b32 v{t2}, 5, v{vT[2]}
    s_lshl_b32 s{sT3}, s{sW}, 2
    v_add_u32 v{t2}, s{sT3}, v{t2}
    ds_write_b32 v{t2}, v{s1} offset:{L_ST}
    ''')
    write_d_rr(L_GP)
    stamp('g1')
    a(f's_cmp_gt_u32 s{sW}, 4\ns_cbranch_scc1 L_f')
    if tprio: a('s_setprio 3')
    r = g; u = vACC
    for i in range(4): a(f'ds_read_b128 v[{u+4*i}:{u+4*i+3}], v{vZ} offset:{L_ST + 16*i}')
    lds_reduce16(L_GP, r)
    a('s_waitcnt lgkmcnt(4)')
    for e in range(4): a(f'v_add_f32 v{u+e}, v{u+e}, v{u+4+e}\nv_add_f32 v{u+8+e}, v{u+8+e}, v{u+12+e}')
    a(f'''
    v_add_f32 v{u}, v{u}, v{u+1}
    v_add_f32 v{u+8}, v{u+8}, v{u+9}
    v_add_f32 v{u+2}, v{u+2}, v{u+3}
    v_add_f32 v{u+10}, v{u+10}, v{u+11}
    v_add_f32 v{u}, v{u}, v{u+2}
    v_add_f32 v{u+8}, v{u+8}, v{u+10}
    s_waitcnt lgkmcnt(2)
    v_mul_f32 v{u}, {INV640:#x}, v{u}
    v_add_f32 v{r}, v{r}, v{r+4}
    v_mul_f32 v{u+8}, {INV640:#x}, v{u+8}
    v_add_f32 v{r+1}, v{r+1}, v{r+5}
    v_fma_f32 v{u+8}, -v{u}, v{u}, v{u+8}
    v_add_f32 v{r+2}, v{r+2}, v{r+6}
    v_max_f32 v{u+8}, 0, v{u+8}
    v_add_f32 v{r+3}, v{r+3}, v{r+7}
    v_cvt_pk_bf16_f32 v{u+8}, v{u+8}, v{u+8}
    s_waitcnt lgkmcnt(0)
    v_add_f32 v{r+8}, v{r+8}, v{r+12}
    v_lshlrev_b32 v{u+8}, 16, v{u+8}
    v_add_f32 v{r+9}, v{r+9}, v{r+13}
    v_add_f32 v{u+8}, {EPS:#x}, v{u+8}
    v_add_f32 v{r+10}, v{r+10}, v{r+14}
    v_cvt_pk_bf16_f32 v{u+8}, v{u+8}, v{u+8}
    v_add_f32 v{r+11}, v{r+11}, v{r+15}
    v_lshlrev_b32 v{u+8}, 16, v{u+8}
    v_add_f32 v{r}, v{r}, v{r+8}
    v_sqrt_f32 v{u+8}, v{u+8}
    v_add_f32 v{r+2}, v{r+2}, v{r+10}
    v_add_f32 v{r+1}, v{r+1}, v{r+9}
    v_add_f32 v{r+3}, v{r+3}, v{r+11}
    v_cvt_pk_bf16_f32 v{u+8}, v{u+8}, v{u+8}
    v_permlane32_swap_b32 v{r}, v{r+2}
    v_cvt_pk_bf16_f32 v{u}, v{u}, v{u}
    v_permlane32_swap_b32 v{r+1}, v{r+3}
    v_lshlrev_b32 v{u+8}, 16, v{u+8}
    v_add_f32 v{r}, v{r}, v{r+2}
    v_add_f32 v{r+1}, v{r+1}, v{r+3}
    v_rcp_f32 v{u+9}, v{u+8}
    v_lshlrev_b32 v{u}, 16, v{u}
    v_permlane16_swap_b32 v{r}, v{r+1}
    v_add_f32 v{r}, v{r}, v{r+1}
    v_fma_f32 v{r}, -v{u}, v{vCS}, v{r}
    v_mul_f32 v{r}, v{r}, v{u+9}
    ''')
    rbf(r, r)
    a(f'''
    v_mul_f32 v{r+1}, s{sC1}, v{r}
    v_exp_f32 v{r+1}, -v{r+1}
    v_add_f32 v{r+1}, 1.0, v{r+1}
    v_rcp_f32 v{r+2}, v{r+1}
    v_mul_f32 v{r+3}, v{r}, v{r+2}
    ''')
    rbf(r + 3, r + 3)
    a(f'''
    v_mul_f32_dpp v{r+3}, v{r}, v{r+3} row_ror:8 {DPPF}
    v_cvt_pk_bf16_f32 v{r+3}, v{r+3}, v{r+3}
    ''')
    onehot_chain([(r + 3, f'row_newbcast:{i}', wD + 4 * i) for i in range(8)])
    tagw([vD + i for i in range(4)])
    a(f'''
    s_mov_b32 exec_hi, 0
    buffer_store_dwordx4 v[{vD}:{vD+3}], v{vT[1]}, {WS_}, s{sT2} offen sc1
    s_mov_b64 exec, -1
    ''')
    if fgate: lds_add(L_CNT + 20)
    stamp('g')
    a('s_branch L_fin')
    a(f'''
    L_f:
    s_cmp_eq_u32 s{sW}, 7
    s_cbranch_scc1 L_f2
    s_cmp_lg_u32 s{sW}, 6
    s_cbranch_scc1 L_fin
    s_cmp_lg_u32 s{sFS}, 0
    s_cbranch_scc1 L_fin
    v_mov_b32 v{vT[4]}, s{sTAG}
    s_mov_b64 exec, 1
    buffer_store_dword v{vT[4]}, v{vZ}, {WS_}, 0 offen offset:{EPOCH} sc1
    s_mov_b64 exec, -1
    s_branch L_fin
    L_f2:
    s_setprio 0
    s_cmp_ge_u32 s{sFS}, 40
    s_cbranch_scc1 L_fin
    v_lshrrev_b32 v{vT[0]}, 2, v{vLANE}
    v_and_b32 v{vT[1]}, 3, v{vLANE}
    v_mul_u32_u24 v{vT[0]}, 2560, v{vT[0]}
    v_lshl_add_u32 v{vT[0]}, v{vT[1]}, 4, v{vT[0]}
    s_lshl_b32 s{sT3}, s{sFS}, 6
    s_add_u32 s{sT0}, s{sT3}, {P3:#x}
    s_add_u32 s{sT1}, s{sT0}, {16 * 2560}
    s_add_u32 s{sT2}, s{sT0}, {32 * 2560}
    s_add_u32 s{sOFF}, s{sT0}, {48 * 2560}
    v_lshl_add_u32 v{vT[1]}, v{vT[1]}, 2, v{vG}
    v_lshlrev_b32 v{vT[1]}, 2, v{vT[1]}
    v_add_u32 v{vT[1]}, s{sT3}, v{vT[1]}
    ds_read_b32 v{vT[2]}, v{vT[1]} offset:{L_HH}
    v_lshrrev_b32 v{vT[1]}, 1, v{vT[1]}
    ''')
    a(f'''
    s_waitcnt vmcnt(0)
    v_cmp_gt_u32 vcc, 24, v{vLANE}
    v_subrev_u32 v{vT[5]}, {16 * 2560}, v{vT[0]}
    v_cndmask_b32 v{vT[5]}, v{vT[5]}, v{vT[0]}, vcc
    v_add_u32 v{vT[5]}, {16 * 2560}, v{vT[5]}
    v_cndmask_b32 v{vT[3]}, 0, 1.0, vcc
    ''')
    def ld3(b):
        for i in range(3): a(f'buffer_load_dwordx4 v[{b+4*i}:{b+4*i+3}], v{vT[0]}, {WS_}, s{(sT0, sT1, sT2)[i]} offen sc1')
        a(f'buffer_load_dwordx4 v[{b+12}:{b+15}], v{vT[5]}, {WS_}, s{sT2} offen sc1')
    if fgate:
        lds_gate(L_CNT + 20, 4 + 5)
        if fgate > 1: a(f's_sleep {fgate}')
    poll2(ld3, 16, g, 4, fast[2], thr[2], wide=False)
    stamp('h3')
    for e in range(4): a(f'v_add_f32 v{g+e}, v{g+e}, v{g+4+e}')
    for e in range(4): a(f'v_fmac_f32 v{g+8+e}, v{vT[3]}, v{g+12+e}')
    for e in range(4): a(f'v_add_f32 v{g+e}, v{g+e}, v{g+8+e}')
    a(f'''
    v_permlane32_swap_b32 v{g}, v{g+2}
    v_permlane32_swap_b32 v{g+1}, v{g+3}
    v_add_f32 v{g}, v{g}, v{g+2}
    v_add_f32 v{g+1}, v{g+1}, v{g+3}
    v_permlane16_swap_b32 v{g}, v{g+1}
    v_add_f32 v{g}, v{g}, v{g+1}
    v_add_f32_dpp v{g}, v{g}, v{g} row_ror:8 {DPPF}
    v_add_f32_dpp v{g}, v{g}, v{g} row_ror:4 {DPPF}
    ''')
    rbf(g, g)
    a(f'''
    s_waitcnt lgkmcnt(0)
    v_add_f32 v{g}, v{g}, v{vT[2]}
    v_cvt_pk_bf16_f32 v{g}, v{g}, v{g}
    s_mov_b32 exec_lo, 0x000f000f
    s_mov_b32 exec_hi, 0x000f000f
    buffer_store_short v{g}, v{vT[1]}, {OUT_}, 0 offen
    s_mov_b64 exec, -1
    L_fin:
    ''')
    if diagpad:
        pad, ka, k, mult = diagpad
        a(f'''
        s_cmp_lg_u32 s{sW}, 7
        s_cbranch_scc1 L_end
        s_cmp_lg_u32 s{sROLE}, 2
        s_cbranch_scc1 L_end
        s_cmp_lg_u32 s{sFS}, 0
        s_cbranch_scc1 L_end
        v_readlane_b32 s{sT0}, v{vSTAMP}, 0
        v_readlane_b32 s{sT1}, v{vSTAMP}, {k}
        v_readlane_b32 s{sT2}, v{vSTAMP}, {ka}
        s_sub_u32 s{sT1}, s{sT1}, s{sT2}
        s_mul_i32 s{sT1}, s{sT1}, {mult}
        s_add_u32 s{sT1}, s{sT1}, {pad}
        L_diag:
        s_memrealtime s[96:97]
        s_waitcnt lgkmcnt(0)
        s_sub_u32 s{sT2}, s96, s{sT0}
        s_cmp_lt_u32 s{sT2}, s{sT1}
        s_cbranch_scc1 L_diag
        ''')
    elif stamps and dbgout:
        stamp('end')
        a(f'''
        s_cmp_lg_u32 s{sW}, 7
        s_cbranch_scc1 L_end
        s_cmp_lg_u32 s{sROLE}, 2
        s_cbranch_scc1 L_end
        s_cmp_gt_u32 s{sFS}, 1
        s_cbranch_scc1 L_end
        v_readlane_b32 s{sT0}, v{vSTAMP}, 0
        s_lshl_b32 s{sT1}, s{sFS}, 5
        v_lshlrev_b32 v{vT[0]}, 2, v{vLANE}
        v_add_u32 v{vT[0]}, s{sT1}, v{vT[0]}
        v_subrev_u32 v{vT[1]}, s{sT0}, v{vSTAMP}
        s_mov_b64 exec, 0xff
        global_store_dword v{vT[0]}, v{vT[1]}, s[36:37]
        ''')
    elif stamps:
        stamp('end')
        a(f'''
        s_cmp_lg_u32 s{sW}, {stampwave}
        s_cbranch_scc1 L_end
        s_add_u32 s24, s38, 0x10000000
        s_addc_u32 s25, s39, 0
        s_lshl_b32 s{sT0}, s2, 6
        v_lshlrev_b32 v{vT[0]}, 2, v{vLANE}
        v_add_u32 v{vT[0]}, s{sT0}, v{vT[0]}
        s_mov_b64 exec, 0x7fff
        global_store_dword v{vT[0]}, v{vSTAMP}, s[24:25]
        ''')
    a('L_end:\ns_endpgm')
    if rtab:
        tab = role_table()
        a('.p2align 6\n.type L_tab,@object\nL_tab:')
        for i in range(0, 256, 16): a('.byte ' + ', '.join(map(str, tab[i:i+16])))
        a('.size L_tab, 256')
    return build_file([f'; @launch grid=(256,1,1) block=(512,1,1) lds={lds}'], [(NAME + '_kernel', a.text(), V.high, 102)])

if __name__ == '__main__':
    import json
    out = sys.argv[1]
    kw = json.loads(sys.argv[2]) if len(sys.argv) > 2 else {}
    open(out, 'w').write(gen(**kw))
```
